```python
import torch

def _softmax(x, axis=-1):
    return torch.softmax(x, dim=axis)
def _gelu(x):
    return torch.nn.functional.gelu(x, approximate="tanh")
def _silu(x):
    return torch.nn.functional.silu(x)
def _sigmoid(x):
    return torch.sigmoid(x)
def _layernorm(x, axis=-1, eps=1e-5):
    m = x.mean(dim=axis, keepdim=True)
    v = x.var(dim=axis, keepdim=True, unbiased=False)
    return (x - m) / torch.sqrt(v + eps)
def _scatter_add(tgt, idx, src, axis=0):
    return tgt.clone().index_add_(axis, idx, src)
def _segment_sum(src, seg, n):
    out = torch.zeros((n,) + src.shape[1:], dtype=src.dtype)
    return out.index_add_(0, seg, src)
def _pad(x, pw):
    flat = tuple(v for pair in reversed(pw) for v in pair)
    return torch.nn.functional.pad(x, flat)

kernel_name = 'standalone__gqa_softmax__near_ridge'

def setup_inputs():

    _w = (lambda a: (lambda t: t.to(torch.bfloat16) if t.is_floating_point() else t)(torch.as_tensor(a)))
    B, Hq, Hkv, Sq, Sk, D = 16, 32, 32, 384, 1024, 128
    return {
        "q": _w((lambda *s: torch.randn(*s, dtype=torch.bfloat16) * 0.8)(B, Hq, Sq, D)),
        "k": _w((lambda *s: torch.randn(*s, dtype=torch.bfloat16) * 0.8)(B, Hkv, Sk, D)),
        "v": _w((lambda *s: torch.randn(*s, dtype=torch.bfloat16) * 0.05)(B, Hkv, Sk, D)),
    }

def reference(q, k, v):
    B, Hq, Sq, D = q.shape
    Hkv = k.shape[1]
    rep = Hq // Hkv
    k = (lambda x, n, axis: torch.repeat_interleave(x, n, dim=axis))(k, rep, axis=1)
    v = (lambda x, n, axis: torch.repeat_interleave(x, n, dim=axis))(v, rep, axis=1)
    scale = D ** -0.5
    scores = torch.einsum("bhqd,bhkd->bhqk", q, k) * scale
    p = _softmax(scores, axis=-1)
    return torch.einsum("bhqk,bhkd->bhqd", p, v)
```

```python
import re

VALU_KINDS = ('valu', 'trans', 'perm')
FRONT_KINDS = ('ds', 'dsw', 'vload', 'dma', 'vstore')
SCAL_KINDS = ('salu', 'wait', 'bar', 'nop', 'branch')
COST = {'valu': 4, 'trans': 8, 'perm': 8, 'ds': 4, 'dsw': 4, 'vload': 4, 'dma': 4, 'vstore': 4,
        'salu': 4, 'wait': 4, 'bar': 4, 'nop': 4, 'branch': 4, 'mfma': 8, 'label': 0}


def regs(prefix, start, n):
    return ['%s%d' % (prefix, start + i) for i in range(n)]


def rng(prefix, start, n):
    if n == 1:
        return '%s%d' % (prefix, start)
    return '%s[%d:%d]' % (prefix, start, start + n - 1)


class Ins:
    _n = 0

    def __init__(self, text, kind, rd=(), wr=(), name=None, srcc=(), passes=4):
        self.text = text
        self.kind = kind
        self.rd = [(r if isinstance(r, tuple) else (r, None)) for r in rd]
        self.wr = [(r if isinstance(r, tuple) else (r, None)) for r in wr]
        self.srcc = set(srcc)
        self.passes = passes
        self.name = name or text
        self.lo = None
        self.hi = None
        self.deps = []
        self.gap = None
        self.prio = 0
        self.meta = {}
        Ins._n += 1
        self.uid = Ins._n

    @property
    def cost(self):
        return self.meta.get('cost', COST[self.kind])

    def rdregs(self):
        return [r for r, _ in self.rd]

    def wrregs(self):
        return [r for r, _ in self.wr]

    def __repr__(self):
        return '<%s %s>' % (self.kind, self.text)


class Gap:
    def __init__(self):
        self.scal = []
        self.front = []
        self.valu = []
        self.reserved_scal = False

    def used(self):
        u = sum(i.cost for i in self.front) + sum(i.cost for i in self.valu)
        ns = len(self.scal) + (1 if self.reserved_scal else 0)
        if ns > 1:
            u += 4 * (ns - 1)
        return u

    def has_free_scal(self):
        return len(self.scal) == 0 and not self.reserved_scal


def schedule(backbone, flex, cap=8, verbose=False):
    n = len(backbone)
    gaps = [Gap() for _ in range(n)]
    for k, m in enumerate(backbone):
        m.gap = k
        if m.meta.get('reserve_scal'):
            gaps[k].reserved_scal = True
    succ = {}
    for f in flex:
        for d, delta in f.deps:
            succ.setdefault(d.uid, []).append((f, delta))
    order = list(flex)
    changed = True
    it = 0
    while changed:
        changed = False
        it += 1
        for f in reversed(order):
            for s, delta in succ.get(f.uid, []):
                if s.hi is not None:
                    h = s.hi - delta
                    if f.kind != 'mfma' and (f.hi is None or h < f.hi):
                        f.hi = h
                        changed = True
        assert it < 200
    pending = sorted(flex, key=lambda f: (f.lo if f.lo is not None else 0, f.uid))
    pi = 0
    avail = []
    for k in range(n):
        g = gaps[k]
        while pi < len(pending) and (pending[pi].lo is None or pending[pi].lo <= k):
            avail.append(pending[pi])
            pi += 1
        progress = True
        while progress:
            progress = False
            cands = []
            for f in avail:
                ok = True
                for d, delta in f.deps:
                    if d.gap is None or d.gap + delta > k:
                        ok = False
                        break
                    if d.gap == k and d.kind != 'mfma':
                        od = 0 if d.kind in SCAL_KINDS else 1 if d.kind in FRONT_KINDS else 2
                        of = 0 if f.kind in SCAL_KINDS else 1 if f.kind in FRONT_KINDS else 2
                        if od > of:
                            ok = False
                            break
                if ok:
                    cands.append(f)
            if not cands:
                break
            cands.sort(key=lambda f: (f.hi if f.hi is not None else 10 ** 9, -f.prio, f.uid))
            for f in cands:
                forced = f.hi is not None and f.hi <= k
                if f.kind in SCAL_KINDS:
                    fits = g.has_free_scal() or (g.used() + 4 <= cap and f.meta.get('scal_any'))
                else:
                    fits = g.used() + f.cost <= cap
                if fits or forced:
                    f.gap = k
                    if f.kind in SCAL_KINDS:
                        g.scal.append(f)
                    elif f.kind in FRONT_KINDS:
                        g.front.append(f)
                    else:
                        g.valu.append(f)
                    avail.remove(f)
                    progress = True
                    break
    left = avail + pending[pi:]
    if left:
        g = gaps[-1]
        k = n - 1
        rest = sorted(left, key=lambda f: f.uid)
        tail = []
        while rest:
            moved = False
            for f in rest:
                if all(d.gap is not None for d, _ in f.deps):
                    f.gap = k
                    tail.append(f)
                    rest.remove(f)
                    moved = True
                    break
            assert moved, rest[:5]
        g.tail = tail
    return gaps


def linearize(backbone, gaps):
    out = []
    for k, m in enumerate(backbone):
        for pre in m.meta.get('pre', []):
            out.append(pre)
        out.append(m)
        g = gaps[k]
        out.extend(g.scal)
        out.extend(g.front)
        out.extend(g.valu)
        out.extend(getattr(g, 'tail', []))
    return out


def mk_wait(vm=None, lgkm=None):
    t = 's_waitcnt'
    if vm is not None:
        t += ' vmcnt(%d)' % vm
    if lgkm is not None:
        t += ' lgkmcnt(%d)' % lgkm
    w = Ins(t, 'wait')
    w.meta['vm'] = vm
    w.meta['lgkm'] = lgkm
    return w


def insert_waits(prog):
    out = []
    vmq = []
    lgq = []
    pend = {}
    allvm = []

    def retire(q, upto):
        while q:
            x = q.pop(0)
            for r in x.wrregs():
                if pend.get(r, (None, None))[1] is x:
                    del pend[r]
            if x is upto:
                break

    def apply_wait(vm, lg):
        if vm is not None:
            while len(vmq) > vm:
                retire(vmq, vmq[0])
        if lg is not None:
            while len(lgq) > lg:
                retire(lgq, lgq[0])

    for ins in prog:
        if ins.kind == 'wait':
            if 'vm_for' in ins.meta:
                tgt = ins.meta['vm_for']
                nvm = min(ins.meta.get('vm_cap', 63), len(allvm) - 1 - allvm.index(tgt))
                lg = ins.meta.get('lgkm')
                if nvm is None and lg is None:
                    ins.text = 's_nop 0'
                    ins.kind = 'nop'
                    out.append(ins)
                    continue
                assert nvm is None or nvm <= 63, nvm
                w = mk_wait(nvm, lg)
                ins.text = w.text
                ins.meta['vm'] = nvm
            apply_wait(ins.meta.get('vm'), ins.meta.get('lgkm'))
            out.append(ins)
            continue
        need_vm = None
        need_lg = None
        touched = ins.rdregs() + ins.wrregs()
        for r in touched:
            if r in pend:
                qn, x = pend[r]
                if qn == 'vm':
                    i = vmq.index(x)
                    if need_vm is None or i > vmq.index(need_vm):
                        need_vm = x
                else:
                    i = lgq.index(x)
                    if need_lg is None or i > lgq.index(need_lg):
                        need_lg = x
        if need_vm is not None or need_lg is not None:
            pos = len(out)
            j = len(out) - 1
            while j >= 0 and out[j].kind not in ('mfma', 'label', 'branch', 'bar'):
                j -= 1
            hoist = False
            if j >= 0 and out[j].kind == 'mfma' and ins.kind == 'mfma':
                after = out[j + 1:]
                if (need_vm is None or need_vm not in after) and (need_lg is None or need_lg not in after):
                    hoist = True
            if hoist:
                after = out[j + 1:]
                nvm_after = sum(1 for x in after if x.kind in ('vload', 'dma', 'vstore'))
                nlg_after = sum(1 for x in after if x.kind in ('ds', 'dsw'))
                vm = lg = None
                if need_vm is not None:
                    vm = len(vmq) - 1 - vmq.index(need_vm) - nvm_after
                if need_lg is not None:
                    lg = len(lgq) - 1 - lgq.index(need_lg) - nlg_after
                assert (vm is None or vm >= 0) and (lg is None or lg >= 0)
                if j + 1 < len(out) and out[j + 1].kind == 'wait' and 'vm_for' not in out[j + 1].meta:
                    ex = out[j + 1]
                    evm, elg = ex.meta.get('vm'), ex.meta.get('lgkm')
                    vm2 = vm if evm is None else evm if vm is None else min(vm, evm)
                    lg2 = lg if elg is None else elg if lg is None else min(lg, elg)
                    nw = mk_wait(None if vm2 is None else min(vm2, 63), None if lg2 is None else min(lg2, 15))
                    out[j + 1] = nw
                else:
                    nw = mk_wait(None if vm is None else min(vm, 63), None if lg is None else min(lg, 15))
                    out.insert(j + 1, nw)
                if need_vm is not None:
                    retire(vmq, need_vm)
                if need_lg is not None:
                    retire(lgq, need_lg)
            else:
                vm = lg = None
                if need_vm is not None:
                    vm = min(63, len(vmq) - 1 - vmq.index(need_vm))
                if need_lg is not None:
                    lg = min(15, len(lgq) - 1 - lgq.index(need_lg))
                out.append(mk_wait(vm, lg))
                if need_vm is not None:
                    retire(vmq, need_vm)
                if need_lg is not None:
                    retire(lgq, need_lg)
        if ins.kind == 'bar' and ins.meta.get('assert_lg_done'):
            for x in lgq:
                assert x not in ins.meta['assert_lg_done'], ('LDS read still in flight at barrier', x)
        if ins.kind in ('vload', 'dma', 'vstore'):
            vmq.append(ins)
            allvm.append(ins)
            assert len(vmq) <= 63, 'vmcnt overflow'
            if ins.kind == 'vload':
                for r in ins.wrregs():
                    pend[r] = ('vm', ins)
        elif ins.kind in ('ds', 'dsw'):
            lgq.append(ins)
            if ins.kind == 'ds':
                for r in ins.wrregs():
                    pend[r] = ('lg', ins)
        out.append(ins)
    return out


def states(ins):
    if ins.kind == 'nop':
        m = re.match(r's_nop (\d+)', ins.text)
        return int(m.group(1)) + 1
    if ins.kind == 'label':
        return 0
    return 1


def fix_hazards(prog, verbose=False):
    out = []
    ninserted = 0
    LOOK = 24

    def dist_back(pred):
        d = 0
        for x in reversed(out[-LOOK:]):
            if pred(x):
                return d
            d += states(x)
        return 10 ** 6

    for ins in prog:
        need = 0
        rd = set(ins.rdregs())
        wr = set(ins.wrregs())
        isvalu = ins.kind in VALU_KINDS
        ismfma = ins.kind == 'mfma'
        ismem = ins.kind in FRONT_KINDS

        def req(n, pred):
            nonlocal need
            d = dist_back(pred)
            if d < n:
                need = max(need, n - d)

        if ismfma:
            req(2, lambda x: x.kind in VALU_KINDS and set(x.wrregs()) & rd)
            ab = rd - ins.srcc

            def p1(x):
                return x.kind == 'mfma' and set(x.wrregs()) & ab
            req(8, p1)

            def p2(x):
                if x.kind != 'mfma':
                    return False
                ov = set(x.wrregs()) & ins.srcc
                return bool(ov) and (set(x.wrregs()) != ins.srcc or x.meta.get('cls') != ins.meta.get('cls'))
            req(6, p2)
        if isvalu or ismem:
            req(8, lambda x: x.kind == 'mfma' and set(x.wrregs()) & (rd | wr))
        if isvalu:
            req(3, lambda x: x.kind == 'mfma' and x.srcc & wr)
            if ins.kind != 'trans':
                req(1, lambda x: x.kind == 'trans' and set(x.wrregs()) & rd)
            req(2, lambda x: x.kind == 'vstore' and set(x.rdregs()) & wr)
            req(2, lambda x: x.kind in VALU_KINDS and
                {r for r in x.wrregs() if r[0] == 's' or r == 'vcc'} & rd)
        if ismfma or ins.kind in ('ds', 'vload'):
            req(2, lambda x: x.kind == 'vstore' and set(x.rdregs()) & wr)
        if ins.kind == 'perm':
            req(2, lambda x: x.kind in VALU_KINDS and set(x.wrregs()) & (rd | wr))
        if ismem:
            req(5, lambda x: x.kind in VALU_KINDS and
                {r for r in x.wrregs() if r[0] == 's'} & rd)
            if ins.kind == 'dma':
                req(1, lambda x: x.kind == 'salu' and 'm0' in x.wrregs())
        if ins.kind == 'salu':
            req(2, lambda x: x.kind in VALU_KINDS and
                {r for r in x.wrregs() if r[0] == 's' or r == 'vcc'} & rd)
        if ins.text.startswith('v_readfirstlane') or ins.text.startswith('v_readlane'):
            req(1, lambda x: x.kind in VALU_KINDS and set(x.wrregs()) & rd)
        while need > 0:
            n = min(need, 16)
            out.append(Ins('s_nop %d' % (n - 1), 'nop'))
            ninserted += 1
            if verbose:
                print('hazard nop %d before %s' % (n, ins.text))
            need -= n
        out.append(ins)
    return out, ninserted


def check_tags(prog, init=None):
    st = dict(init or {})
    errs = 0
    for idx, ins in enumerate(prog):
        for r, tag in ins.rd:
            if tag is not None and st.get(r) != tag:
                errs += 1
                if errs < 20:
                    print('TAG MISMATCH at %d: %s reads %s expects %r has %r' % (idx, ins.text, r, tag, st.get(r)))
        for r, tag in ins.wr:
            st[r] = tag if tag is not None else ('?', ins.uid)
    return errs


def est_cycles(prog):
    t = 0
    last_mfma = -100
    prev = None
    for ins in prog:
        if ins.kind == 'label':
            continue
        if ins.kind == 'mfma':
            t = max(t, last_mfma + 4 * ins.passes)
            last_mfma = t
            t += 8
        elif ins.kind in SCAL_KINDS:
            if prev is not None and prev.kind == 'mfma':
                pass
            else:
                t += 4 * states(ins) if ins.kind == 'nop' else 4
        else:
            c = ins.cost
            if ins.kind in FRONT_KINDS and prev is not None and prev.kind in VALU_KINDS:
                c += 8
            t += c
        prev = ins
    return t
```

```python
import sys, os, struct
from sched import *

NAME = 'standalone__gqa_softmax__near_ridge'


class Cfg:
    R = 8
    U = 4
    LAT = 7
    loopA = (2, 26)
    loopB = (34, 62)
    qb_load_tile = 26
    thr = 0x4b800000
    debug = False


SLOT = 16896
KOFF, VOFF = 0, 8448
CH = 1056
NT = 64
NS = NT * 6
C_SCALE = 1.4426950408889634 * (128 ** -0.5)


def f32bits(x):
    return struct.unpack('<I', struct.pack('<f', x))[0]


def O(b, t): return 32 * b + 4 * t
def S(buf, u): return 192 + 8 * buf + 4 * u
def P(buf): return 208 + 4 * buf
def CI(b): return 216 + 4 * b
vIDX, vK, vV, vDMA = 240, 241, 242, 243
def T(i): return 244 + i
vQ, vO = T(10), T(11)
def Q(b, s): return 16 * b + 4 * s
def KF(u, s): return 96 + 16 * u + 4 * s
def VF(t): return 128 + 4 * t
def L(k): return 160 + 4 * k
SA = 172
def QR(b, s): return 176 + 16 * b + 4 * s

sK, sV, sQ, sO = 4, 8, 12, 16
sDOFF, sDLDS, sSLOT, sDELTA, sWPART, sTMP, sW, sIDX = 20, 21, 22, 23, 24, 25, 26, 27
sC, sTHR, sMASK = 28, 30, 31
sFLAG = [34, 36]
sCNT, sPHASE, sQOFF, sOOFF = 38, 39, 40, 41


def v(n): return 'v%d' % n
def a(n): return 'a%d' % n
def s(n): return 's%d' % n


def V_(text, rd=(), wr=(), kind='valu'):
    return Ins(text, kind, rd, wr)


def S_(text, rd=(), wr=()):
    return Ins(text, 'salu', rd, list(wr) + ['scc'])


class Gen:
    def __init__(self, cfg):
        self.cfg = cfg
        self.bb = []
        self.flex = []
        self.iQK = {}
        self.iPV = {}
        self.iZ = {}
        self.pos = {}
        self.pstart = {}
        self.pend_ = {}

    def mk_qk(self, n, u, st):
        j, b = (n % 192) // 6, n % 6
        J = n // 6
        d = S(n & 1, u)
        h = n // 192
        rd = [(a(KF(u, st) + i), ('K', J, u, st, i)) for i in range(4)]
        rd += [(a(Q(b, st) + i), ('Q', h, b, st, i)) for i in range(4)]
        if st == 0:
            if j == 0:
                c = '0'
                srcc = []
            else:
                c = rng('v', CI(b), 4)
                srcc = regs('v', CI(b), 4)
                rd += [(r, ('CI', h, b)) for r in srcc]
        else:
            c = rng('v', d, 4)
            srcc = regs('v', d, 4)
            rd += [(v(d + i), ('Sp', n, u, st - 1, i)) for i in range(4)]
        tag = 'Sp' if st < 3 else 'S'
        wr = [(v(d + i), (tag, n, u, st, i) if st < 3 else ('S', n, u, i)) for i in range(4)]
        m = Ins('v_mfma_f32_16x16x32_bf16 %s, %s, %s, %s' % (rng('v', d, 4), rng('a', KF(u, st), 4),
                                                          rng('a', Q(b, st), 4), c),
                'mfma', rd, wr, srcc=srcc)
        m.meta['cls'] = 'xdl'
        return m

    def mk_pv(self, n, t):
        j, b = (n % 192) // 6, n % 6
        J = n // 6
        h = n // 192
        d = O(b, t)
        rd = [(a(VF(t) + i), ('V', J, t, i)) for i in range(4)]
        rd += [(v(P(n & 1) + i), ('P', n, i)) for i in range(4)]
        if j == 0:
            c = '0'
            srcc = []
        else:
            c = rng('v', d, 4)
            srcc = regs('v', d, 4)
            rd += [(v(d + i), ('O', h, b, t, j - 1, i)) for i in range(4)]
        wr = [(v(d + i), ('O', h, b, t, j, i)) for i in range(4)]
        m = Ins('v_mfma_f32_16x16x32_bf16 %s, %s, %s, %s' % (rng('v', d, 4), rng('a', VF(t), 4),
                                                          rng('v', P(n & 1), 4), c),
                'mfma', rd, wr, srcc=srcc)
        m.meta['cls'] = 'xdl'
        return m

    def mk_z(self, p):
        n0 = p - 2
        h, j, k = n0 // 192, (n0 % 192) // 6, (n0 % 6) // 2
        d = L(k)
        rd = [(v(P(0) + i), ('P', n0, i)) for i in range(4)] + [(v(P(1) + i), ('P', n0 + 1, i)) for i in range(4)]
        rd += [(a(SA + i), 'SA') for i in range(4)] + [(v(vIDX), 'IDX')]
        rd += [(a(d + i), ('L', h, k, j - 1, i)) for i in range(4)]
        wr = [(a(d + i), ('L', h, k, j, i)) for i in range(4)]
        m = Ins('v_smfmac_f32_16x16x64_bf16 %s, %s, %s, %s' % (rng('a', d, 4), rng('a', SA, 4),
                                                            rng('v', P(0), 8), v(vIDX)),
                'mfma', rd, wr, srcc=regs('a', d, 4))
        m.meta['cls'] = 'smf'
        return m

    def build_backbone(self):
        bb = self.bb
        for p in range(-1, NS + 1):
            qk = p + 1 if p + 1 < NS else None
            pv = p - 1 if 0 <= p - 1 < NS else None
            z = p >= 2 and p % 2 == 0
            self.pstart[p] = len(bb)
            seq = []
            for i in range(8):
                if qk is not None:
                    seq.append(('q', i >> 2, i & 3))
                if pv is not None:
                    seq.append(('p', i))
            zdone = not z
            npos = 0
            for it in seq:
                if it[0] == 'q':
                    m = self.mk_qk(qk, it[1], it[2])
                    self.iQK[(qk, it[1], it[2])] = len(bb)
                else:
                    m = self.mk_pv(pv, it[1])
                    self.iPV[(pv, it[1])] = len(bb)
                self.pos[(p, npos)] = len(bb)
                npos += 1
                bb.append(m)
                if it[0] == 'p' and not zdone:
                    self.iZ[p] = len(bb)
                    bb.append(self.mk_z(p))
                    zdone = True
            self.pend_[p] = len(bb) - 1
        for J in range(1, NT):
            k = self.pstart[6 * J]
            bb[k].meta['tile_start'] = J
            bb[k].meta['reserve_scal'] = True
            bb[k - 1].meta['reserve_scal'] = True

    def add(self, ins, lo=None, hi=None, deps=(), prio=0):
        ins.lo, ins.hi, ins.prio = lo, hi, prio
        ins.deps = [d if isinstance(d, tuple) else (d, 0) for d in deps if d is not None]
        self.flex.append(ins)
        return ins

    def softmax(self):
        lastcvt = {}
        for n in range(NS):
            j, b, h = (n % 192) // 6, n % 6, n // 192
            buf = n & 1
            sr = [S(buf, u) + i for u in range(2) for i in range(4)]
            firstpv = self.iPV[(n, 0)]
            normal = j != 0 and (n, 15) in self.pos
            stag = [('S', n, r >> 2, r & 3) for r in range(8)]
            pre = None
            if j == 0:
                t0, t1 = T(0), T(1)
                lo0 = self.iQK[(n, 0, 3)] + 4
                lo1 = self.iQK[(n, 1, 3)] + 4
                prevuse = self.t0_last if hasattr(self, 't0_last') else None
                c = self.add(V_('v_max3_f32 %s, %s, %s, %s' % (v(t0), v(sr[0]), v(sr[1]), v(sr[2])),
                                [(v(sr[i]), stag[i]) for i in range(3)], [(v(t0), ('m0', n))]), lo=lo0,
                             deps=[prevuse])
                c = self.add(V_('v_max_f32 %s, %s, %s' % (v(t0), v(t0), v(sr[3])),
                                [(v(t0), ('m0', n)), (v(sr[3]), stag[3])], [(v(t0), ('m1', n))]), lo=lo0, deps=[c])
                c = self.add(V_('v_max3_f32 %s, %s, %s, %s' % (v(t0), v(t0), v(sr[4]), v(sr[5])),
                                [(v(t0), ('m1', n)), (v(sr[4]), stag[4]), (v(sr[5]), stag[5])],
                                [(v(t0), ('m2', n))]), lo=lo1, deps=[c])
                c = self.add(V_('v_max3_f32 %s, %s, %s, %s' % (v(t0), v(t0), v(sr[6]), v(sr[7])),
                                [(v(t0), ('m2', n)), (v(sr[6]), stag[6]), (v(sr[7]), stag[7])],
                                [(v(t0), ('m3', n))]), lo=lo1, deps=[c])
                c = self.add(V_('v_mov_b32 %s, %s' % (v(t1), v(t0)), [(v(t0), ('m3', n))], [(v(t1), ('m3c', n))]),
                             deps=[c], lo=lo1)
                c = self.add(V_('v_permlane16_swap_b32 %s, %s' % (v(t0), v(t1)),
                                [(v(t0), ('m3', n)), (v(t1), ('m3c', n))],
                                [(v(t0), ('m4a', n)), (v(t1), ('m4b', n))], kind='perm'), deps=[(c, 1)], lo=lo1)
                c = self.add(V_('v_max_f32 %s, %s, %s' % (v(t0), v(t0), v(t1)),
                                [(v(t0), ('m4a', n)), (v(t1), ('m4b', n))], [(v(t0), ('m5', n))]), deps=[c], lo=lo1)
                c = self.add(V_('v_mov_b32 %s, %s' % (v(t1), v(t0)), [(v(t0), ('m5', n))], [(v(t1), ('m5c', n))]),
                             deps=[c], lo=lo1)
                c = self.add(V_('v_permlane32_swap_b32 %s, %s' % (v(t0), v(t1)),
                                [(v(t0), ('m5', n)), (v(t1), ('m5c', n))],
                                [(v(t0), ('m6a', n)), (v(t1), ('m6b', n))], kind='perm'), deps=[(c, 1)], lo=lo1)
                cis = []
                for i in range(4):
                    c = self.add(V_('v_min_f32 %s, -%s, -%s' % (v(CI(b) + i), v(t0), v(t1)),
                                    [(v(t0), ('m6a', n)), (v(t1), ('m6b', n))], [(v(CI(b) + i), ('CI', h, b))]),
                                 deps=[c], lo=lo1)
                    cis.append(c)
                self.t0_last = cis[-1]
                for cc in cis:
                    cc.hi = self.iQK[(n + 6, 0, 0)] - 2
                pre = []
                for r in range(8):
                    c = self.add(V_('v_add_f32 %s, %s, %s' % (v(sr[r]), v(CI(b)), v(sr[r])),
                                    [(v(CI(b)), ('CI', h, b)), (v(sr[r]), stag[r])], [(v(sr[r]), ('Ss', n, r))]),
                                 deps=[cis[0]], lo=lo1)
                    pre.append(c)
                stag = [('Ss', n, r) for r in range(8)]
            exps = []
            for r in range(8):
                e = V_('v_exp_f32 %s, %s' % (v(sr[r]), v(sr[r])), [(v(sr[r]), stag[r])],
                       [(v(sr[r]), ('E', n, r))], kind='trans')
                if normal:
                    g = self.pos[(n, 2 * r)]
                    self.add(e, lo=g, hi=g, prio=5)
                else:
                    lo = self.iQK[(n, r >> 2, 3)] + 4
                    self.add(e, lo=lo, deps=[pre[r]] if pre else [])
                exps.append(e)
            for i in range(4):
                c = V_('v_cvt_pk_bf16_f32 %s, %s, %s' % (v(P(buf) + i), v(sr[2 * i]), v(sr[2 * i + 1])),
                       [(v(sr[2 * i]), ('E', n, 2 * i)), (v(sr[2 * i + 1]), ('E', n, 2 * i + 1))],
                       [(v(P(buf) + i), ('P', n, i))])
                lo = 0
                if n >= 2:
                    lo = self.iPV[(n - 2, 7)]
                    zp = n if n % 2 == 0 else n - 1
                    zp = (n - 2) - ((n - 2) % 2) + 2
                    lo = max(lo, self.iZ[zp])
                if normal:
                    g = self.pos[(n, 4 * i + 3)]
                    assert g >= lo
                    self.add(c, lo=g, hi=g, deps=[(exps[2 * i], 1), (exps[2 * i + 1], 1)], prio=5)
                else:
                    self.add(c, lo=lo, hi=firstpv - 2, deps=[(exps[2 * i], 1), (exps[2 * i + 1], 1)])

    def kv_stream(self):
        cfg = self.cfg
        R = cfg.R
        self.bar = {}
        self.lastdma = {}
        vreads = {}
        kreads = {}
        chain = None
        lastdma_prev = None
        self.adv = {}
        for J in range(0, NT):
            p3 = 6 * J + 3
            last = J == NT - 1
            lo = self.pstart[6 * J + 2] + 4
            hi = self.pstart[p3] + 8
            if not last:
                a1 = self.add(S_('s_add_u32 %s, %s, %s' % (s(sDLDS), s(sSLOT), s(sWPART)),
                                 [s(sSLOT), s(sWPART)], [s(sDLDS)]), lo=lo, hi=hi, deps=[(chain, 1)] if chain else [])
                a2 = self.add(S_('s_add_u32 %s, %s, 1' % (s(sIDX), s(sIDX)), [s(sIDX)], [s(sIDX)]), lo=lo, hi=hi,
                              deps=[(a1, 1)])
                a3 = self.add(S_('s_and_b32 %s, %s, %d' % (s(sIDX), s(sIDX), R - 1), [s(sIDX)], [s(sIDX)]),
                              lo=lo, hi=hi, deps=[(a2, 1)])
                a4 = self.add(Ins('s_mul_i32 %s, %s, %d' % (s(sTMP), s(sIDX), SLOT), 'salu', [s(sIDX)], [s(sTMP)]),
                              lo=lo, hi=hi, deps=[(a3, 1)])
                a5 = self.add(S_('s_sub_u32 %s, %s, %s' % (s(sDELTA), s(sTMP), s(sSLOT)), [s(sTMP), s(sSLOT)],
                                 [s(sDELTA)]), lo=lo, hi=hi, deps=[(a4, 1)])
                a6 = self.add(Ins('s_mov_b32 %s, %s' % (s(sSLOT), s(sTMP)), 'salu', [s(sTMP)], [s(sSLOT)]),
                              lo=lo, hi=hi + 2, deps=[(a5, 1)])
                chain = a6
                uk = self.add(V_('v_add_u32 %s, %s, %s' % (v(vK), s(sDELTA), v(vK)),
                                 [s(sDELTA), (v(vK), ('vK', J))], [(v(vK), ('vK', J + 1))]),
                              lo=lo, hi=self.pend_[p3] - 1, deps=[(a5, 1)] + [(x, 0) for x in kreads.get(J, [])])
                uv = self.add(V_('v_add_u32 %s, %s, %s' % (v(vV), s(sDELTA), v(vV)),
                                 [s(sDELTA), (v(vV), ('vV', J))], [(v(vV), ('vV', J + 1))]),
                              lo=lo, hi=self.pend_[p3] + 8, deps=[(a5, 1)])
                self.adv[J] = (uk, uv)
            vr = []
            for t in range(8):
                for pp in range(2):
                    d = VF(t) + 2 * pp
                    ins = Ins('ds_read_b64_tr_b16 %s, %s offset:%d' % (rng('a', d, 2), v(vV), 512 * pp + 32 * t),
                              'ds', [(v(vV), ('vV', J))],
                              [(a(d + i), ('V', J, t, 2 * pp + i)) for i in range(2)])
                    lo_ = self.iPV[(6 * J - 1, t)] if J > 0 else 0
                    hi_ = self.iPV[(6 * J, t)] - cfg.LAT
                    deps = []
                    if J > 0:
                        deps = [(self.adv[J - 1][1], 1), (self.bar[J - 1], 0)]
                    self.add(ins, lo=lo_, hi=max(hi_, lo_), deps=deps)
                    vr.append(ins)
            vreads[J] = vr
            if not last:
                uv = self.adv[J][1]
                uv.deps += [(x, 0) for x in vr]
            e = self.pend_[p3]
            w = Ins('s_waitcnt vmcnt(0)', 'wait')
            if not last:
                w.meta['tile_wait'] = J + 1
                if cfg.loopA[0] <= J < cfg.loopA[1] or cfg.loopB[0] <= J < cfg.loopB[1]:
                    w.meta['vm_cap'] = 4 * (R - 2)
            else:
                w.meta['tile_wait'] = 'all'
            self.add(w, lo=e - 2, hi=e - 1, deps=[(chain, 1)] if False else [])
            bar = Ins('s_barrier', 'bar')
            bar.meta['assert_lg_done'] = set(vr) | set(kreads.get(J, []))
            self.add(bar, lo=e - 1, hi=e, deps=[(w, 1)])
            self.bar[J] = bar
            self.barwait = getattr(self, 'barwait', {})
            self.barwait[J] = w
            if last:
                break
            kr = []
            for u in range(2):
                for st in range(4):
                    d = KF(u, st)
                    ins = Ins('ds_read_b128 %s, %s offset:%d' % (rng('a', d, 4), v(vK), 512 * u + 64 * st), 'ds',
                              [(v(vK), ('vK', J + 1))], [(a(d + i), ('K', J + 1, u, st, i)) for i in range(4)])
                    lo_ = self.iQK[(6 * J + 5, u, st)]
                    hi_ = self.iQK[(6 * J + 6, u, st)] - cfg.LAT
                    self.add(ins, lo=lo_, hi=max(hi_, lo_), deps=[(self.adv[J][0], 1), (bar, 0)])
                    kr.append(ins)
            kreads[J + 1] = kr
            JJ = J + R
            inloop = (cfg.loopA[0] <= J + 1 and J < cfg.loopA[1]) or (cfg.loopB[0] <= J + 1 and J < cfg.loopB[1])
            if JJ < NT or inloop:
                prev = None
                lo_ = self.pstart[6 * J + 5] - 2
                hi_ = self.pend_[6 * J + 5] - 1
                for i in range(4):
                    off = (0, 32, VOFF, VOFF + 32)[i]
                    if off == 0:
                        m = Ins('s_mov_b32 m0, %s' % s(sDLDS), 'salu', [s(sDLDS)], ['m0'])
                    else:
                        m = S_('s_add_u32 m0, %s, %d' % (s(sDLDS), off), [s(sDLDS)], ['m0'])
                    self.add(m, lo=lo_, hi=hi_, deps=[(bar, 1), (a6, 1)] + ([(prev, 1)] if prev else []))
                    srd = sK if i < 2 else sV
                    dma = Ins('buffer_load_dwordx4 %s, %s, %s offen%s lds' % (
                        v(vDMA), rng('s', srd, 4), s(sDOFF), ' offset:1024' if i & 1 else ''), 'dma',
                        [v(vDMA), 'm0', s(sDOFF)] + regs('s', srd, 4), [])
                    dma.meta['tile'] = JJ
                    self.add(dma, lo=lo_, hi=hi_, deps=[(m, 1)])
                    prev = dma
                self.lastdma[JJ] = prev
                chain = self.add(S_('s_add_u32 %s, %s, 8192' % (s(sDOFF), s(sDOFF)), [s(sDOFF)], [s(sDOFF)]),
                                 lo=lo_, hi=self.pend_[6 * J + 5] + 6, deps=[(prev, 1)])

    def epilogue(self, h):
        cfg = self.cfg
        prevchain = getattr(self, 'sq_chain', None)
        lread = {}
        for b in range(6):
            n = 192 * h + 186 + b
            k, e = b >> 1, b & 1
            zi = self.iZ[192 * h + 188 + 2 * k]
            x = T(2 + (b & 1))
            y = T(4)
            nxt = n + 6 if h == 0 else None
            jl = 31
            prevx = getattr(self, 'xlast', {}).get(b & 1)
            r0 = self.add(V_('v_accvgpr_read_b32 %s, %s' % (v(x), a(L(k) + 2 * e)),
                             [(a(L(k) + 2 * e), ('L', h, k, jl, 2 * e))], [(v(x), ('l0', h, b))]),
                          lo=zi + 5, deps=[prevx])
            r1 = self.add(V_('v_accvgpr_read_b32 %s, %s' % (v(y), a(L(k) + 2 * e + 1)),
                             [(a(L(k) + 2 * e + 1), ('L', h, k, jl, 2 * e + 1))], [(v(y), ('l1', h, b))]),
                          lo=zi + 5, deps=[getattr(self, 'ylast', None)])
            lread[b] = (r0, r1)
            ad = self.add(V_('v_add_f32 %s, %s, %s' % (v(x), v(x), v(y)),
                             [(v(x), ('l0', h, b)), (v(y), ('l1', h, b))], [(v(x), ('l', h, b))]), deps=[r0, r1],
                          lo=zi + 5)
            self.ylast = ad
            cmp_ = self.add(V_('v_cmp_nge_f32 vcc, %s, %s' % (s(sTHR), v(x)), [s(sTHR), (v(x), ('l', h, b))],
                               [('vcc', ('chk', h, b))]), deps=[ad, getattr(self, 'vcc_last', None)], lo=zi + 5)
            fl = self.add(S_('s_or_b64 %s, %s, vcc' % (rng('s', sFLAG[h], 2), rng('s', sFLAG[h], 2)),
                             [('vcc', ('chk', h, b))] + regs('s', sFLAG[h], 2), regs('s', sFLAG[h], 2)),
                          deps=[(cmp_, 1)], lo=zi + 5)
            self.vcc_last = (fl, 1)
            rc = self.add(V_('v_rcp_f32 %s, %s' % (v(x), v(x)), [(v(x), ('l', h, b))], [(v(x), ('r', h, b))],
                             kind='trans'), deps=[cmp_], lo=zi + 5)
            fl.hi = None
            so = self.add(Ins('s_mov_b32 %s, %d' % (s(sOOFF), h * 98304 + b * 4096), 'salu', [], [s(sOOFF)]),
                          deps=[(getattr(self, 'st_last', None), 1)] if getattr(self, 'st_last', None) else [],
                          lo=zi)
            last_in_block = None
            for tau in range(4):
                t0, t1 = 2 * tau, 2 * tau + 1
                muls = {}
                lo = self.iPV[(n, t1)] + 5
                for t in (t0, t1):
                    for i in range(4):
                        r = O(b, t) + i
                        muls[(t, i)] = self.add(V_('v_mul_f32 %s, %s, %s' % (v(r), v(x), v(r)),
                                                   [(v(x), ('r', h, b)), (v(r), ('O', h, b, t, jl, i))],
                                                   [(v(r), ('On', h, b, t, i))]), lo=lo, deps=[(rc, 1)])
                base = O(b, t0)
                cv = []
                src = [(t0, 0), (t0, 2), (t1, 0), (t1, 2)]
                for q, (t, i) in enumerate(src):
                    d = base + q
                    deps = [muls[(t, i)], muls[(t, i + 1)]]
                    if q == 1:
                        deps.append(cv[0])
                    if q == 2:
                        deps += [cv[1]]
                    if q == 3:
                        deps += [cv[1], cv[2]]
                    c = self.add(V_('v_cvt_pk_bf16_f32 %s, %s, %s' % (v(d), v(O(b, t) + i), v(O(b, t) + i + 1)),
                                    [(v(O(b, t) + i), ('On', h, b, t, i)), (v(O(b, t) + i + 1), ('On', h, b, t, i + 1))],
                                    [(v(d), ('Oc', h, b, tau, q))]), lo=lo, deps=deps)
                    cv.append(c)
                s0 = self.add(V_('v_permlane16_swap_b32 %s, %s' % (v(base), v(base + 2)),
                                 [(v(base), ('Oc', h, b, tau, 0)), (v(base + 2), ('Oc', h, b, tau, 2))],
                                 [(v(base), ('Os', h, b, tau, 0)), (v(base + 2), ('Os', h, b, tau, 2))], kind='perm'),
                              deps=[(cv[0], 1), (cv[2], 1)], lo=lo)
                s1 = self.add(V_('v_permlane16_swap_b32 %s, %s' % (v(base + 1), v(base + 3)),
                                 [(v(base + 1), ('Oc', h, b, tau, 1)), (v(base + 3), ('Oc', h, b, tau, 3))],
                                 [(v(base + 1), ('Os', h, b, tau, 1)), (v(base + 3), ('Os', h, b, tau, 3))],
                                 kind='perm'), deps=[(cv[1], 1), (cv[3], 1)], lo=lo)
                st = Ins('buffer_store_dwordx4 %s, %s, %s, %s offen offset:%d' % (
                    rng('v', base, 4), v(vO), rng('s', sO, 4), s(sOOFF), 64 * tau), 'vstore',
                    [(v(base + q), ('Os', h, b, tau, q)) for q in range(4)] + [v(vO), s(sOOFF)] + regs('s', sO, 4), [])
                hi = None
                if nxt is not None:
                    hi = self.iPV[(nxt, t0)] - 2
                self.add(st, lo=lo, hi=hi, deps=[(s0, 1), (s1, 1), (so, 1)])
                if nxt is not None:
                    for q in (2, 3):
                        cv[q].hi = min(self.iPV[(nxt, t1)] - 2, cv[q].hi if cv[q].hi is not None else 10 ** 9)
                self.st_last = st
                last_in_block = muls[(t1, 3)]
            self.xlast = getattr(self, 'xlast', {})
            self.xlast[b & 1] = last_in_block
        if h == 0:
            for k in range(3):
                zi_next = self.iZ[192 + 2 + 2 * k]
                for i in range(4):
                    bb_ = 2 * k + (i >> 1)
                    self.add(V_('v_accvgpr_write_b32 %s, 0' % a(L(k) + i), [],
                                [(a(L(k) + i), ('L', 1, k, -1, i))]),
                             deps=[lread[bb_][i & 1]], hi=zi_next - 2, lo=0)

    def qb(self):
        cfg = self.cfg
        h = 1
        J0 = cfg.qb_load_tile
        lo = self.pstart[6 * J0] + 2
        prev = None
        loads = {}
        cnt = 0
        span = (self.pstart[6 * (J0 + 2)] - lo) // 24
        for b in range(6):
            so = self.add(Ins('s_mov_b32 %s, %d' % (s(sQOFF), 98304 + b * 4096), 'salu', [], [s(sQOFF)]),
                          lo=lo + cnt * span, deps=[(prev, 1)] if prev else [])
            for st in range(4):
                if b < 5:
                    d = QR(b, st)
                    ins = Ins('buffer_load_dwordx4 %s, %s, %s, %s offen offset:%d' % (
                        rng('a', d, 4), v(vQ), rng('s', sQ, 4), s(sQOFF), 64 * st), 'vload',
                        [v(vQ), s(sQOFF)] + regs('s', sQ, 4), [(a(d + i), ('QR', b, st, i)) for i in range(4)])
                    self.add(ins, lo=lo + cnt * span, hi=lo + cnt * span + 40, deps=[(so, 1)])
                else:
                    wlo, whi = self.pstart[6 * (J0 + 2) + 1], self.pend_[6 * (J0 + 2) + 3] - 4
                    m = S_('s_add_u32 m0, %s, %d' % (s(42), st * 1024 - st * 64), [s(42)], ['m0'])
                    self.add(m, lo=wlo, hi=whi, deps=[(so, 1)] + ([(prev, 1)] if prev else []))
                    ins = Ins('buffer_load_dwordx4 %s, %s, %s offen offset:%d lds' % (
                        v(vQ), rng('s', sQ, 4), s(sQOFF), 64 * st), 'dma',
                        [v(vQ), 'm0', s(sQOFF)] + regs('s', sQ, 4), [])
                    self.add(ins, lo=wlo, hi=whi, deps=[(m, 1)])
                    ins.meta['m0user'] = m
                    self.qstage_last = ins
                prev = ins
                loads[(b, st)] = ins
                cnt += 1
        self.qb_loads = loads
        nlast = 192 - 6 + 5
        ad = self.add(V_('v_add_u32 %s, %s, %s' % (v(T(7)), s(43), v(vDMA)), [s(43), v(vDMA)], [(v(T(7)), 'qsaddr')]),
                      lo=self.pstart[186])
        wq = Ins('s_waitcnt vmcnt(0)', 'wait')
        wq.meta['vm_for'] = self.qstage_last
        self.add(wq, lo=self.pstart[186], hi=self.pstart[187], deps=[(self.qstage_last, 1)])
        raw5 = {}
        for st in range(4):
            d = Q(5, st)
            ins = Ins('ds_read_b128 %s, %s offset:%d' % (rng('a', d, 4), v(T(7)), 1024 * st), 'ds',
                      [(v(T(7)), 'qsaddr')], [(a(d + i), ('QR', 5, st, i)) for i in range(4)])
            self.add(ins, lo=max(self.iQK[(nlast, 0, st)], self.iQK[(nlast, 1, st)]), deps=[(ad, 1), (wq, 1)])
            raw5[st] = ins
        chain = None
        for b in range(6):
            nlast = 192 - 6 + b
            nfirst = 192 + b
            for st in range(4):
                free = max(self.iQK[(nlast, 0, st)], self.iQK[(nlast, 1, st)])
                dl = self.iQK[(nfirst, 0, st)] - 2
                for i in range(4):
                    src = (QR(b, st) if b < 5 else Q(b, st)) + i
                    dst = Q(b, st) + i
                    ta, tb = T(5), T(6)
                    key = (b, st, i)
                    lo = self.pstart[184]
                    d0 = [chain] if chain else []
                    if b == 5:
                        d0.append((raw5[st], 1))
                    c = self.add(V_('v_accvgpr_read_b32 %s, %s' % (v(ta), a(src)), [(a(src), ('QR', b, st, i))],
                                    [(v(ta), ('qa', key))]), lo=lo, deps=d0)
                    c = self.add(V_('v_lshlrev_b32 %s, 16, %s' % (v(tb), v(ta)), [(v(ta), ('qa', key))],
                                    [(v(tb), ('qb', key))]), lo=lo, deps=[c])
                    c = self.add(V_('v_and_b32 %s, %s, %s' % (v(ta), s(sMASK), v(ta)), [(v(ta), ('qa', key)), s(sMASK)],
                                    [(v(ta), ('qc', key))]), lo=lo, deps=[c])
                    c = self.add(V_('v_mul_f32 %s, %s, %s' % (v(tb), s(sC), v(tb)), [(v(tb), ('qb', key)), s(sC)],
                                    [(v(tb), ('qd', key))]), lo=lo, deps=[c])
                    c = self.add(V_('v_mul_f32 %s, %s, %s' % (v(ta), s(sC), v(ta)), [(v(ta), ('qc', key)), s(sC)],
                                    [(v(ta), ('qe', key))]), lo=lo, deps=[c])
                    c = self.add(V_('v_cvt_pk_bf16_f32 %s, %s, %s' % (v(ta), v(tb), v(ta)),
                                    [(v(ta), ('qe', key)), (v(tb), ('qd', key))], [(v(ta), ('qf', key))]),
                                 lo=lo, deps=[c])
                    c = self.add(V_('v_accvgpr_write_b32 %s, %s' % (a(dst), v(ta)), [(v(ta), ('qf', key))],
                                    [(a(dst), ('Q', 1, b, st, i))]), lo=free, hi=dl, deps=[c])
                    chain = c

    def prologue(self):
        cfg = self.cfg
        R = cfg.R
        o = []

        def e(text, kind='valu', rd=(), wr=()):
            i = Ins(text, kind, rd, wr)
            o.append(i)
            return i
        e('s_cmp_ge_u32 s2, 256', 'salu')
        e('s_cbranch_scc1 L_done', 'branch')
        e('s_load_dwordx4 s[44:47], s[0:1], 0', 'salu')
        e('s_load_dwordx4 s[48:51], s[0:1], 16', 'salu')
        t = [T(i) for i in range(10)]
        e('v_lshrrev_b32 %s, 6, v0' % v(t[0]), wr=[v(t[0])])
        e('v_and_b32 %s, 63, v0' % v(t[1]), wr=[v(t[1])])
        e('v_readfirstlane_b32 %s, %s' % (s(sW), v(t[0])), rd=[v(t[0])], wr=[s(sW)])
        e('v_and_b32 %s, 15, %s' % (v(t[2]), v(t[1])))
        e('v_lshrrev_b32 %s, 4, %s' % (v(t[3]), v(t[1])))
        e('v_and_b32 %s, 7, %s' % (v(t[4]), v(t[2])))
        e('v_mul_u32_u24 %s, %d, %s' % (v(vK), CH, v(t[4])))
        e('v_lshrrev_b32 %s, 3, %s' % (v(t[4]), v(t[2])))
        e('v_lshl_add_u32 %s, %s, 8, %s' % (v(vK), v(t[4]), v(vK)))
        e('v_lshl_add_u32 %s, %s, 4, %s' % (v(vK), v(t[3]), v(vK)), wr=[(v(vK), ('vK', 0))])
        e('v_bfe_u32 %s, %s, 2, 3' % (v(t[4]), v(t[1])))
        e('v_mul_u32_u24 %s, %d, %s' % (v(vV), CH, v(t[4])))
        e('v_lshrrev_b32 %s, 5, %s' % (v(t[4]), v(t[1])))
        e('v_lshl_add_u32 %s, %s, 8, %s' % (v(vV), v(t[4]), v(vV)))
        e('v_and_b32 %s, 3, %s' % (v(t[4]), v(t[1])))
        e('v_lshl_add_u32 %s, %s, 3, %s' % (v(vV), v(t[4]), v(vV)))
        e('v_add_u32 %s, %d, %s' % (v(vV), VOFF, v(vV)), wr=[(v(vV), ('vV', 0))])
        e('v_lshlrev_b32 %s, 4, %s' % (v(vDMA), v(t[1])))
        e('v_lshl_add_u32 %s, %s, 11, %s' % (v(vDMA), v(t[0]), v(vDMA)), wr=[v(vDMA)])
        e('v_mul_u32_u24 %s, %d, %s' % (v(t[4]), 24576, v(t[0])))
        e('v_lshl_add_u32 %s, %s, 8, %s' % (v(t[4]), v(t[2]), v(t[4])))
        e('v_lshl_add_u32 %s, %s, 4, %s' % (v(vQ), v(t[3]), v(t[4])), wr=[v(vQ)])
        e('v_and_b32 %s, 1, %s' % (v(t[5]), v(t[3])))
        e('v_lshl_add_u32 %s, %s, 5, %s' % (v(t[4]), v(t[5]), v(t[4])))
        e('v_lshrrev_b32 %s, 1, %s' % (v(t[5]), v(t[3])))
        e('v_lshl_add_u32 %s, %s, 4, %s' % (v(vO), v(t[5]), v(t[4])), wr=[v(vO)])
        e('s_mul_i32 %s, %s, %d' % (s(sWPART), s(sW), 2 * CH), 'salu', rd=[s(sW)], wr=[s(sWPART)])
        e('s_mov_b32 %s, 0x%08x' % (s(sC), f32bits(C_SCALE)), 'salu')
        e('s_mov_b32 %s, 0x%08x' % (s(sC + 1), f32bits(C_SCALE)), 'salu')
        e('s_mov_b32 %s, 0x%08x' % (s(sTHR), cfg.thr), 'salu')
        e('s_mov_b32 %s, 0xffff0000' % s(sMASK), 'salu')
        e('s_mov_b64 %s, 0' % rng('s', sFLAG[0], 2), 'salu')
        e('s_mov_b64 %s, 0' % rng('s', sFLAG[1], 2), 'salu')
        e('s_mov_b32 %s, 0' % s(sSLOT), 'salu')
        e('s_mov_b32 %s, 0' % s(sIDX), 'salu')
        e('s_lshl_b32 s42, %s, 12' % s(sW), 'salu')
        e('s_add_u32 s42, s42, %d' % (R * SLOT), 'salu')
        e('s_lshl_b32 s43, %s, 11' % s(sW), 'salu')
        e('s_add_u32 s43, s43, %d' % (R * SLOT), 'salu')
        e('s_waitcnt lgkmcnt(0)', 'wait')
        for srd, ptr, per in ((sK, 46, 524288), (sV, 48, 524288), (sQ, 44, 196608), (sO, 50, 196608)):
            e('s_mul_i32 s3, s2, %d' % per, 'salu')
            e('s_add_u32 %s, %s, s3' % (s(srd), s(ptr)), 'salu')
            e('s_addc_u32 %s, %s, 0' % (s(srd + 1), s(ptr + 1)), 'salu')
            e('s_and_b32 %s, %s, 0xffff' % (s(srd + 1), s(srd + 1)), 'salu')
            e('s_mov_b32 %s, %d' % (s(srd + 2), per), 'salu')
            e('s_mov_b32 %s, 0x20000' % s(srd + 3), 'salu')

        def dma_tile(J):
            last = None
            e('s_mov_b32 %s, %d' % (s(sDOFF), J * 8192), 'salu')
            for i in range(4):
                off = (0, 32, VOFF, VOFF + 32)[i]
                e('s_add_u32 m0, %s, %d' % (s(sWPART), (J % R) * SLOT + off), 'salu', wr=['m0'])
                srd = sK if i < 2 else sV
                last = e('buffer_load_dwordx4 %s, %s, %s offen%s lds' % (
                    v(vDMA), rng('s', srd, 4), s(sDOFF), ' offset:1024' if i & 1 else ''), 'dma', rd=['m0'])
                last.meta['tile'] = J
            self.lastdma[J] = last
        dma_tile(0)
        RAW = 96
        for b in range(6):
            e('s_mov_b32 %s, %d' % (s(sQOFF), b * 4096), 'salu')
            for st in range(4):
                d = RAW + 16 * b + 4 * st
                e('buffer_load_dwordx4 %s, %s, %s, %s offen offset:%d' % (
                    rng('v', d, 4), v(vQ), rng('s', sQ, 4), s(sQOFF), 64 * st), 'vload', wr=regs('v', d, 4))
        for J in range(1, R):
            dma_tile(J)
        e('s_mov_b32 %s, %d' % (s(sDOFF), R * 8192), 'salu')
        e('v_and_b32 %s, 1, %s' % (v(t[4]), v(t[2])))
        e('v_mov_b32 %s, 0x4444' % v(t[5]))
        e('v_mov_b32 %s, 0xeeee' % v(t[6]))
        e('v_cmp_eq_u32 vcc, 0, %s' % v(t[4]), wr=['vcc'])
        e('v_cndmask_b32 %s, %s, %s, vcc' % (v(vIDX), v(t[6]), v(t[5])), rd=['vcc'], wr=[(v(vIDX), 'IDX')])
        e('v_bfe_u32 %s, %s, 1, 1' % (v(t[4]), v(t[2])))
        e('v_lshrrev_b32 %s, 1, %s' % (v(t[5]), v(t[3])))
        e('v_cmp_eq_u32 vcc, %s, %s' % (v(t[4]), v(t[5])), wr=['vcc'])
        e('v_mov_b32 %s, 0x3f803f80' % v(t[6]))
        e('v_cndmask_b32 %s, 0, %s, vcc' % (v(t[4]), v(t[6])), rd=['vcc'], wr=[v(t[4])])
        for i in range(4):
            e('v_accvgpr_write_b32 %s, %s' % (a(SA + i), v(t[4])), rd=[v(t[4])], wr=[(a(SA + i), 'SA')])
        for k in range(3):
            for i in range(4):
                e('v_accvgpr_write_b32 %s, 0' % a(L(k) + i), wr=[(a(L(k) + i), ('L', 0, k, -1, i))])
        for b in range(6):
            for st in range(4):
                d = RAW + 16 * b + 4 * st
                tb = 8 * ((4 * b + st) & 1)
                for i in range(4):
                    e('v_lshlrev_b32 %s, 16, %s' % (v(tb + 2 * i), v(d + i)), rd=[v(d + i)], wr=[v(tb + 2 * i)])
                    e('v_and_b32 %s, %s, %s' % (v(tb + 2 * i + 1), s(sMASK), v(d + i)), rd=[v(d + i)],
                      wr=[v(tb + 2 * i + 1)])
                for i in range(4):
                    e('v_pk_mul_f32 %s, %s, %s' % (rng('v', tb + 2 * i, 2), rng('v', tb + 2 * i, 2), rng('s', sC, 2)),
                      rd=regs('v', tb + 2 * i, 2), wr=regs('v', tb + 2 * i, 2))
                for i in range(4):
                    e('v_cvt_pk_bf16_f32 %s, %s, %s' % (v(d + i), v(tb + 2 * i), v(tb + 2 * i + 1)),
                      rd=regs('v', tb + 2 * i, 2), wr=[v(d + i)])
                for i in range(4):
                    e('v_accvgpr_write_b32 %s, %s' % (a(Q(b, st) + i), v(d + i)), rd=[v(d + i)],
                      wr=[(a(Q(b, st) + i), ('Q', 0, b, st, i))])
        w = e('s_waitcnt vmcnt(0)', 'wait')
        w.meta['vm_for'] = self.lastdma[0]
        e('s_barrier', 'bar')
        for u in range(2):
            for st in range(4):
                d = KF(u, st)
                e('ds_read_b128 %s, %s offset:%d' % (rng('a', d, 4), v(vK), 512 * u + 64 * st), 'ds',
                  rd=[(v(vK), ('vK', 0))], wr=[(a(d + i), ('K', 0, u, st, i)) for i in range(4)])
        return o

    def slowpath(self):
        o = []
        e = o.append
        e('L_slow:')
        e('s_waitcnt vmcnt(0) lgkmcnt(0)')
        e('s_mul_i32 s52, %s, %d' % (s(sW), SLOT))
        e('v_and_b32 v1, 63, %s' % v(vDMA))
        e('v_lshrrev_b32 v162, 4, %s' % v(vDMA))
        e('v_and_b32 v162, 63, v162')
        e('v_and_b32 v2, 15, v162')
        e('v_lshrrev_b32 v3, 4, v162')
        e('v_and_b32 v4, 7, v2')
        e('v_mul_u32_u24 v160, %d, v4' % CH)
        e('v_lshrrev_b32 v4, 3, v2')
        e('v_lshl_add_u32 v160, v4, 8, v160')
        e('v_lshl_add_u32 v160, v3, 4, v160')
        e('v_add_u32 v160, s52, v160')
        e('v_bfe_u32 v4, v162, 2, 3')
        e('v_mul_u32_u24 v161, %d, v4' % CH)
        e('v_lshrrev_b32 v4, 5, v162')
        e('v_lshl_add_u32 v161, v4, 8, v161')
        e('v_and_b32 v4, 3, v162')
        e('v_lshl_add_u32 v161, v4, 3, v161')
        e('v_add_u32 v161, %d, v161' % VOFF)
        e('v_add_u32 v161, s52, v161')
        e('v_lshlrev_b32 v162, 4, v162')
        e('s_mov_b32 s53, 0')
        e('L_slow_head:')
        e('s_cmp_eq_u32 s53, 0')
        e('s_cselect_b64 s[54:55], %s, %s' % (rng('s', sFLAG[0], 2), rng('s', sFLAG[1], 2)))
        e('s_cmp_eq_u64 s[54:55], 0')
        e('s_cbranch_scc1 L_slow_next')
        e('s_mov_b32 s56, 0')
        e('L_slow_blk:')
        e('s_mul_i32 s57, s53, 98304')
        e('s_lshl_b32 s58, s56, 12')
        e('s_add_u32 s57, s57, s58')
        for st in range(4):
            e('buffer_load_dwordx4 v[%d:%d], %s, %s, s57 offen offset:%d' % (
                4 * st, 4 * st + 3, v(vQ), rng('s', sQ, 4), 64 * st))
        e('s_waitcnt vmcnt(0)')
        for i in range(16):
            e('v_lshlrev_b32 v42, 16, v%d' % i)
            e('v_and_b32 v43, %s, v%d' % (s(sMASK), i))
            e('v_mul_f32 v42, %s, v42' % s(sC))
            e('v_mul_f32 v43, %s, v43' % s(sC))
            e('v_cvt_pk_bf16_f32 v%d, v42, v43' % (16 + i))
        e('v_mov_b32 v32, 0xff800000')
        e('v_mov_b32 v33, 0')
        for i in range(32):
            e('v_mov_b32 v%d, 0' % (64 + i))
        e('s_mul_i32 s59, s53, 262144')
        e('s_mov_b32 s60, 0')
        e('L_slow_tile:')
        for c in range(8):
            for which, srd in ((0, sK), (VOFF, sV)):
                e('s_add_u32 m0, s52, %d' % (which + c * CH))
                e('s_add_u32 s61, s59, %d' % (c * 1024))
                e('buffer_load_dwordx4 v162, %s, s61 offen lds' % rng('s', srd, 4))
        e('s_waitcnt vmcnt(0)')
        for u in range(2):
            for st in range(4):
                d = 96 + 16 * u + 4 * st
                e('ds_read_b128 v[%d:%d], v160 offset:%d' % (d, d + 3, 512 * u + 64 * st))
        e('s_waitcnt lgkmcnt(0)')
        for t in range(8):
            for pp in range(2):
                d = 128 + 4 * t + 2 * pp
                e('ds_read_b64_tr_b16 v[%d:%d], v161 offset:%d' % (d, d + 1, 512 * pp + 32 * t))
            if t == 3:
                e('s_waitcnt lgkmcnt(0)')
        e('s_waitcnt lgkmcnt(0)')
        for u in range(2):
            for st in range(4):
                d = 34 + 4 * u
                k = 96 + 16 * u + 4 * st
                e('v_mfma_f32_16x16x32_bf16 v[%d:%d], v[%d:%d], v[%d:%d], %s' % (
                    d, d + 3, k, k + 3, 16 + 4 * st, 19 + 4 * st, '0' if st == 0 else 'v[%d:%d]' % (d, d + 3)))
        e('s_nop 15')
        e('v_max3_f32 v42, v34, v35, v36')
        e('v_max3_f32 v42, v42, v37, v38')
        e('v_max3_f32 v42, v42, v39, v40')
        e('v_max3_f32 v42, v42, v41, v32')
        e('v_mov_b32 v43, v42')
        e('s_nop 2')
        e('v_permlane16_swap_b32 v42, v43')
        e('s_nop 2')
        e('v_max_f32 v42, v42, v43')
        e('v_mov_b32 v43, v42')
        e('s_nop 2')
        e('v_permlane32_swap_b32 v42, v43')
        e('s_nop 2')
        e('v_max_f32 v42, v42, v43')
        e('v_sub_f32 v44, v32, v42')
        e('v_exp_f32 v44, v44')
        e('v_mov_b32 v32, v42')
        for r in range(8):
            e('v_sub_f32 v%d, v%d, v42' % (34 + r, 34 + r))
        for r in range(8):
            e('v_exp_f32 v%d, v%d' % (34 + r, 34 + r))
        e('s_nop 1')
        e('v_mul_f32 v33, v33, v44')
        for i in range(4):
            e('v_cvt_pk_bf16_f32 v%d, v%d, v%d' % (48 + i, 34 + 2 * i, 35 + 2 * i))
        for i in range(4):
            e('v_lshlrev_b32 v45, 16, v%d' % (48 + i))
            e('v_and_b32 v46, %s, v%d' % (s(sMASK), 48 + i))
            e('v_add_f32 v33, v33, v45')
            e('v_add_f32 v33, v33, v46')
        for i in range(32):
            e('v_mul_f32 v%d, v%d, v44' % (64 + i, 64 + i))
        e('s_nop 2')
        for t in range(8):
            d = 64 + 4 * t
            e('v_mfma_f32_16x16x32_bf16 v[%d:%d], v[%d:%d], v[48:51], v[%d:%d]' % (
                d, d + 3, 128 + 4 * t, 131 + 4 * t, d, d + 3))
        e('s_nop 15')
        e('s_add_u32 s59, s59, 8192')
        e('s_add_u32 s60, s60, 1')
        e('s_cmp_lt_u32 s60, 32')
        e('s_cbranch_scc1 L_slow_tile')
        e('v_mov_b32 v43, v33')
        e('s_nop 2')
        e('v_permlane16_swap_b32 v33, v43')
        e('s_nop 2')
        e('v_add_f32 v33, v33, v43')
        e('v_mov_b32 v43, v33')
        e('s_nop 2')
        e('v_permlane32_swap_b32 v33, v43')
        e('s_nop 2')
        e('v_add_f32 v33, v33, v43')
        e('v_rcp_f32 v33, v33')
        e('s_nop 1')
        for i in range(32):
            e('v_mul_f32 v%d, v%d, v33' % (64 + i, 64 + i))
        for tau in range(4):
            b0 = 64 + 8 * tau
            e('v_cvt_pk_bf16_f32 v%d, v%d, v%d' % (b0, b0, b0 + 1))
            e('v_cvt_pk_bf16_f32 v%d, v%d, v%d' % (b0 + 1, b0 + 2, b0 + 3))
            e('v_cvt_pk_bf16_f32 v%d, v%d, v%d' % (b0 + 2, b0 + 4, b0 + 5))
            e('v_cvt_pk_bf16_f32 v%d, v%d, v%d' % (b0 + 3, b0 + 6, b0 + 7))
            e('s_nop 2')
            e('v_permlane16_swap_b32 v%d, v%d' % (b0, b0 + 2))
            e('v_permlane16_swap_b32 v%d, v%d' % (b0 + 1, b0 + 3))
            e('s_nop 2')
            e('buffer_store_dwordx4 v[%d:%d], %s, %s, s57 offen offset:%d' % (
                b0, b0 + 3, v(vO), rng('s', sO, 4), 64 * tau))
        e('s_waitcnt vmcnt(0)')
        e('s_add_u32 s56, s56, 1')
        e('s_cmp_lt_u32 s56, 6')
        e('s_cbranch_scc1 L_slow_blk')
        e('L_slow_next:')
        e('s_add_u32 s53, s53, 1')
        e('s_cmp_lt_u32 s53, 2')
        e('s_cbranch_scc1 L_slow_head')
        e('s_endpgm')
        return o

    def build(self):
        cfg = self.cfg
        self.lastdma = {}
        self.build_backbone()
        pro_holder = {}
        self.softmax()
        ld0 = {}
        self.kv_stream()
        self.epilogue(0)
        self.qb()
        self.epilogue(1)
        saved = dict(self.lastdma)
        pro = self.prologue()
        self.lastdma.update({k: x for k, x in saved.items()})
        alld = [x for x in pro if x.kind == 'dma'] + [x for x in self.flex if x.kind == 'dma']
        for J, w in self.barwait.items():
            tw = w.meta['tile_wait']
            if tw == 'all':
                w.meta['vm_for_last_dma'] = True
            else:
                w.meta['vm_for'] = self.lastdma[tw]
        gaps = schedule(self.bb, self.flex)
        body = linearize(self.bb, gaps)
        prog = pro + body
        lastd = None
        for ins in prog:
            if ins.kind == 'dma':
                lastd = ins
            if ins.meta.get('vm_for_last_dma'):
                ins.meta['vm_for'] = lastd
        prog = insert_waits(prog)
        prog, nn = fix_hazards(prog, verbose=cfg.debug)
        errs = check_tags(prog)
        assert errs == 0, errs
        self.check_m0(prog)
        self.gaps = gaps
        self.prog = prog
        self.nnops = nn
        return prog

    def check_m0(self, prog):
        lastm0 = None
        used = set()
        for ins in prog:
            if 'm0' in ins.wrregs():
                lastm0 = ins
            if ins.kind == 'dma':
                assert lastm0 is not None and lastm0.uid not in used, ('M0 reuse', ins.text)
                for d, _ in ins.deps:
                    if 'm0' in d.wrregs():
                        assert d is lastm0, ('M0 clobbered', ins.text)
                used.add(lastm0.uid)

    def roll(self):
        cfg = self.cfg
        prog = self.prog
        segs = []
        cur = []
        names = ['pre']
        for ins in prog:
            cur.append(ins)
            if ins.kind == 'mfma' and 'tile_start' in ins.meta:
                segs.append(cur)
                cur = []
                names.append(ins.meta['tile_start'])
        segs.append(cur)
        seg = dict(zip(names, segs))
        txt = lambda J: [i.text for i in seg[J]]
        a0, a1 = cfg.loopA
        b0, b1 = cfg.loopB
        U = cfg.U
        assert (a1 - a0) % U == 0 and (b1 - b0) % U == 0
        ref = txt(a0)
        for J in list(range(a0, a1)) + list(range(b0, b1)):
            if txt(J) != ref:
                x, y = txt(J), ref
                for i in range(min(len(x), len(y))):
                    if x[i] != y[i]:
                        print('tile', J, 'differs at', i, x[i], '|', y[i])
                        break
                raise Exception('tile %d not periodic' % J)
        out = []
        emit = lambda J: out.extend('    ' + i.text for i in seg[J])
        emit('pre')
        for J in range(1, a0):
            emit(J)
        out.append('    s_mov_b32 %s, %d' % (s(sCNT), (a1 - a0) // U - 1))
        out.append('    s_mov_b32 %s, 0' % s(sPHASE))
        out.append('L_loop:')
        for r in range(U):
            lines = ['    ' + i.text for i in seg[a0]]
            if r == U - 1:
                idx = [k for k, i in enumerate(seg[a0]) if i.kind == 'mfma']
                k = idx[-2]
                for i in seg[a0][k + 1:]:
                    assert 'scc' not in i.wrregs(), i.text
                lines.insert(k + 1, '    s_sub_u32 %s, %s, 1' % (s(sCNT), s(sCNT)))
                lines.append('    s_cbranch_scc0 L_loop')
            out.extend(lines)
        out.append('    s_cmp_lg_u32 %s, 0' % s(sPHASE))
        out.append('    s_cbranch_scc1 L_tail')
        for J in range(a1, b0):
            emit(J)
        out.append('    s_mov_b32 %s, %d' % (s(sCNT), (b1 - b0) // U - 1))
        out.append('    s_mov_b32 %s, 1' % s(sPHASE))
        out.append('    s_branch L_loop')
        out.append('L_tail:')
        for J in range(b1, NT):
            emit(J)
        out.append('    s_or_b64 s[54:55], %s, %s' % (rng('s', sFLAG[0], 2), rng('s', sFLAG[1], 2)))
        out.append('    s_cbranch_scc1 L_slow')
        out.append('L_done:')
        out.append('    s_endpgm')
        for l in self.slowpath():
            out.append(l if l.endswith(':') else '    ' + l)
        return out, seg


HEADER = """; Kernarg layout for this problem (48 bytes, ptrs only, base s[0:1]):
; @launch grid=(256,1,1) block=(256,1,1) lds=%d
.amdgcn_target "amdgcn-amd-amdhsa--gfx950"
.text
.globl NAME_kernel
.p2align 8
.type NAME_kernel,@function
NAME_kernel:
"""
FOOTER = """
.section .rodata,"a"
.p2align 6
.amdhsa_kernel NAME_kernel
  .amdhsa_next_free_vgpr 512
  .amdhsa_next_free_sgpr 102
  .amdhsa_accum_offset 256
  .amdhsa_group_segment_fixed_size 0
  .amdhsa_kernarg_size 48
  .amdhsa_user_sgpr_count 2
  .amdhsa_user_sgpr_kernarg_segment_ptr 1
  .amdhsa_system_sgpr_workgroup_id_x 1
.end_amdhsa_kernel
"""


def generate(cfg):
    g = Gen(cfg)
    g.build()
    lines, seg = g.roll()
    lds = cfg.R * SLOT + 16384
    src = (HEADER % lds).replace('NAME', NAME) + '\n'.join(lines) + '\n' + FOOTER.replace('NAME', NAME)
    return src, g, seg


if __name__ == '__main__':
    cfg = Cfg()
    out = sys.argv[1] if len(sys.argv) > 1 else 'cdna_kernels/%s.s' % NAME
    for kv in sys.argv[2:]:
        k, val = kv.split('=')
        setattr(cfg, k, eval(val))
    src, g, seg = generate(cfg)
    open(out, 'w').write(src)
    print('nops inserted', g.nnops, 'total est cycles', est_cycles(g.prog), 'lines', src.count('\n'))
    for J in ['pre', 1, 2, 3, 25, 26, 27, 28, 29, 30, 31, 32, 33, 34, 61, 62, 63]:
        print('seg', J, 'n', len(seg[J]), 'est', est_cycles(seg[J]))
```

```python
import re

VALU_KINDS = ('valu', 'trans', 'perm')
FRONT_KINDS = ('ds', 'dsw', 'vload', 'dma', 'vstore')
SCAL_KINDS = ('salu', 'wait', 'bar', 'nop', 'branch')
COST = {'valu': 4, 'trans': 8, 'perm': 8, 'ds': 4, 'dsw': 8, 'vload': 8, 'dma': 8, 'vstore': 8,
        'salu': 4, 'wait': 4, 'bar': 4, 'nop': 4, 'branch': 4, 'mfma': 8, 'label': 0}


def regs(prefix, start, n):
    return ['%s%d' % (prefix, start + i) for i in range(n)]


def rng(prefix, start, n):
    if n == 1:
        return '%s%d' % (prefix, start)
    return '%s[%d:%d]' % (prefix, start, start + n - 1)


class Ins:
    _n = 0

    def __init__(self, text, kind, rd=(), wr=(), name=None, srcc=(), passes=4):
        self.text = text
        self.kind = kind
        self.rd = [(r if isinstance(r, tuple) else (r, None)) for r in rd]
        self.wr = [(r if isinstance(r, tuple) else (r, None)) for r in wr]
        self.srcc = set(srcc)
        self.passes = passes
        self.name = name or text
        self.lo = None
        self.hi = None
        self.deps = []
        self.gap = None
        self.prio = 0
        self.meta = {}
        Ins._n += 1
        self.uid = Ins._n

    @property
    def cost(self):
        return self.meta.get('cost', COST[self.kind])

    def rdregs(self):
        return [r for r, _ in self.rd]

    def wrregs(self):
        return [r for r, _ in self.wr]

    def __repr__(self):
        return '<%s %s>' % (self.kind, self.text)


class Gap:
    def __init__(self):
        self.scal = []
        self.front = []
        self.valu = []
        self.reserved_scal = False

    def used(self):
        u = sum(i.cost for i in self.front) + sum(i.cost for i in self.valu)
        ns = len(self.scal) + (1 if self.reserved_scal else 0)
        if ns > 1:
            u += 4 * (ns - 1)
        return u

    def has_free_scal(self):
        return len(self.scal) == 0 and not self.reserved_scal


def schedule(backbone, flex, cap=8, verbose=False):
    n = len(backbone)
    gaps = [Gap() for _ in range(n)]
    for k, m in enumerate(backbone):
        m.gap = k
        if m.meta.get('reserve_scal'):
            gaps[k].reserved_scal = True
    succ = {}
    for f in flex:
        for d, delta in f.deps:
            succ.setdefault(d.uid, []).append((f, delta))
    order = list(flex)
    changed = True
    it = 0
    while changed:
        changed = False
        it += 1
        for f in reversed(order):
            for s, delta in succ.get(f.uid, []):
                if s.hi is not None:
                    h = s.hi - delta
                    if f.kind != 'mfma' and (f.hi is None or h < f.hi):
                        f.hi = h
                        changed = True
        assert it < 200
    pending = sorted(flex, key=lambda f: (f.lo if f.lo is not None else 0, f.uid))
    pi = 0
    avail = []
    for k in range(n):
        g = gaps[k]
        while pi < len(pending) and (pending[pi].lo is None or pending[pi].lo <= k):
            avail.append(pending[pi])
            pi += 1
        progress = True
        while progress:
            progress = False
            cands = []
            for f in avail:
                ok = True
                for d, delta in f.deps:
                    if d.gap is None or d.gap + delta > k:
                        ok = False
                        break
                    if d.gap == k and d.kind != 'mfma':
                        od = 0 if d.kind in SCAL_KINDS else 1 if d.kind in FRONT_KINDS else 2
                        of = 0 if f.kind in SCAL_KINDS else 1 if f.kind in FRONT_KINDS else 2
                        if od > of:
                            ok = False
                            break
                if ok:
                    cands.append(f)
            if not cands:
                break
            cands.sort(key=lambda f: (-1 if f.meta.get('asap') else f.hi if f.hi is not None else 10 ** 9,
                                      -f.prio, f.uid))
            for f in cands:
                forced = (f.hi is not None and f.hi <= k) or f.meta.get('asap')
                if f.kind in SCAL_KINDS:
                    fits = g.has_free_scal() or (g.used() + 4 <= cap and f.meta.get('scal_any'))
                else:
                    fits = g.used() + f.cost <= cap
                if fits or forced:
                    f.gap = k
                    if f.kind in SCAL_KINDS:
                        g.scal.append(f)
                    elif f.kind in FRONT_KINDS:
                        g.front.append(f)
                    else:
                        g.valu.append(f)
                    avail.remove(f)
                    progress = True
                    break
    left = avail + pending[pi:]
    if left:
        g = gaps[-1]
        k = n - 1
        rest = sorted(left, key=lambda f: f.uid)
        tail = []
        while rest:
            moved = False
            for f in rest:
                if all(d.gap is not None for d, _ in f.deps):
                    f.gap = k
                    tail.append(f)
                    rest.remove(f)
                    moved = True
                    break
            assert moved, rest[:5]
        g.tail = tail
    return gaps


def linearize(backbone, gaps):
    out = []
    for k, m in enumerate(backbone):
        for pre in m.meta.get('pre', []):
            out.append(pre)
        out.append(m)
        g = gaps[k]
        out.extend(g.scal)
        out.extend(g.front)
        out.extend(g.valu)
        out.extend(getattr(g, 'tail', []))
    return out


def mk_wait(vm=None, lgkm=None):
    t = 's_waitcnt'
    if vm is not None:
        t += ' vmcnt(%d)' % vm
    if lgkm is not None:
        t += ' lgkmcnt(%d)' % lgkm
    w = Ins(t, 'wait')
    w.meta['vm'] = vm
    w.meta['lgkm'] = lgkm
    return w


def insert_waits(prog):
    out = []
    vmq = []
    lgq = []
    pend = {}
    allvm = []

    def retire(q, upto):
        while q:
            x = q.pop(0)
            for r in x.wrregs():
                if pend.get(r, (None, None))[1] is x:
                    del pend[r]
            if x is upto:
                break

    def apply_wait(vm, lg):
        if vm is not None:
            while len(vmq) > vm:
                retire(vmq, vmq[0])
        if lg is not None:
            while len(lgq) > lg:
                retire(lgq, lgq[0])

    for ins in prog:
        if ins.kind == 'wait':
            if 'vm_for' in ins.meta:
                tgt = ins.meta['vm_for']
                nvm = min(ins.meta.get('vm_cap', 63), len(allvm) - 1 - allvm.index(tgt))
                lg = ins.meta.get('lgkm')
                if nvm is None and lg is None:
                    ins.text = 's_nop 0'
                    ins.kind = 'nop'
                    out.append(ins)
                    continue
                assert nvm is None or nvm <= 63, nvm
                w = mk_wait(nvm, lg)
                ins.text = w.text
                ins.meta['vm'] = nvm
            apply_wait(ins.meta.get('vm'), ins.meta.get('lgkm'))
            out.append(ins)
            continue
        need_vm = None
        need_lg = None
        touched = ins.rdregs() + ins.wrregs()
        for r in touched:
            if r in pend:
                qn, x = pend[r]
                if qn == 'vm':
                    i = vmq.index(x)
                    if need_vm is None or i > vmq.index(need_vm):
                        need_vm = x
                else:
                    i = lgq.index(x)
                    if need_lg is None or i > lgq.index(need_lg):
                        need_lg = x
        if need_vm is not None or need_lg is not None:
            pos = len(out)
            j = len(out) - 1
            while j >= 0 and out[j].kind not in ('mfma', 'label', 'branch', 'bar'):
                j -= 1
            hoist = False
            if j >= 0 and out[j].kind == 'mfma':
                after = out[j + 1:]
                if (need_vm is None or need_vm not in after) and (need_lg is None or need_lg not in after):
                    hoist = True
            if hoist:
                after = out[j + 1:]
                nvm_after = sum(1 for x in after if x.kind in ('vload', 'dma', 'vstore'))
                nlg_after = sum(1 for x in after if x.kind in ('ds', 'dsw'))
                vm = lg = None
                if need_vm is not None:
                    vm = len(vmq) - 1 - vmq.index(need_vm) - nvm_after
                if need_lg is not None:
                    lg = len(lgq) - 1 - lgq.index(need_lg) - nlg_after
                assert (vm is None or vm >= 0) and (lg is None or lg >= 0)
                if j + 1 < len(out) and out[j + 1].kind == 'wait' and 'vm_for' not in out[j + 1].meta:
                    ex = out[j + 1]
                    evm, elg = ex.meta.get('vm'), ex.meta.get('lgkm')
                    vm2 = vm if evm is None else evm if vm is None else min(vm, evm)
                    lg2 = lg if elg is None else elg if lg is None else min(lg, elg)
                    nw = mk_wait(None if vm2 is None else min(vm2, 63), None if lg2 is None else min(lg2, 15))
                    out[j + 1] = nw
                else:
                    nw = mk_wait(None if vm is None else min(vm, 63), None if lg is None else min(lg, 15))
                    out.insert(j + 1, nw)
                if need_vm is not None:
                    retire(vmq, need_vm)
                if need_lg is not None:
                    retire(lgq, need_lg)
            else:
                vm = lg = None
                if need_vm is not None:
                    vm = min(63, len(vmq) - 1 - vmq.index(need_vm))
                if need_lg is not None:
                    lg = min(15, len(lgq) - 1 - lgq.index(need_lg))
                out.append(mk_wait(vm, lg))
                if need_vm is not None:
                    retire(vmq, need_vm)
                if need_lg is not None:
                    retire(lgq, need_lg)
        if ins.kind == 'bar' and ins.meta.get('assert_lg_done'):
            for x in lgq:
                assert x not in ins.meta['assert_lg_done'], ('LDS read still in flight at barrier', x)
        if ins.kind in ('vload', 'dma', 'vstore'):
            vmq.append(ins)
            allvm.append(ins)
            assert len(vmq) <= 63, 'vmcnt overflow'
            if ins.kind == 'vload':
                for r in ins.wrregs():
                    pend[r] = ('vm', ins)
        elif ins.kind in ('ds', 'dsw'):
            lgq.append(ins)
            if ins.kind == 'ds':
                for r in ins.wrregs():
                    pend[r] = ('lg', ins)
        out.append(ins)
    return out


def states(ins):
    if ins.kind == 'nop':
        m = re.match(r's_nop (\d+)', ins.text)
        return int(m.group(1)) + 1
    if ins.kind == 'label':
        return 0
    return 1


def fix_hazards(prog, verbose=False):
    out = []
    ninserted = 0
    LOOK = 24

    def dist_back(pred):
        d = 0
        for x in reversed(out[-LOOK:]):
            if pred(x):
                return d
            d += states(x)
        return 10 ** 6

    for ins in prog:
        need = 0
        rd = set(ins.rdregs())
        wr = set(ins.wrregs())
        isvalu = ins.kind in VALU_KINDS
        ismfma = ins.kind == 'mfma'
        ismem = ins.kind in FRONT_KINDS

        def req(n, pred):
            nonlocal need
            d = dist_back(pred)
            if d < n:
                need = max(need, n - d)

        if ismfma:
            req(2, lambda x: x.kind in VALU_KINDS and set(x.wrregs()) & rd)
            ab = rd - ins.srcc

            def p1(x):
                return x.kind == 'mfma' and set(x.wrregs()) & ab
            req(8, p1)

            def p2(x):
                if x.kind != 'mfma':
                    return False
                ov = set(x.wrregs()) & ins.srcc
                return bool(ov) and (set(x.wrregs()) != ins.srcc or x.meta.get('cls') != ins.meta.get('cls'))
            req(6, p2)
        if isvalu or ismem:
            req(8, lambda x: x.kind == 'mfma' and set(x.wrregs()) & (rd | wr))
        if isvalu:
            req(3, lambda x: x.kind == 'mfma' and x.srcc & wr)
            if ins.kind != 'trans':
                req(1, lambda x: x.kind == 'trans' and set(x.wrregs()) & rd)
            req(2, lambda x: x.kind == 'vstore' and set(x.rdregs()) & wr)
            req(2, lambda x: x.kind in VALU_KINDS and
                {r for r in x.wrregs() if r[0] == 's' or r == 'vcc'} & rd)
        if ismfma or ins.kind in ('ds', 'vload'):
            req(2, lambda x: x.kind == 'vstore' and set(x.rdregs()) & wr)
        if ins.kind == 'perm':
            req(2, lambda x: x.kind in VALU_KINDS and set(x.wrregs()) & (rd | wr))
        if ismem:
            req(5, lambda x: x.kind in VALU_KINDS and
                {r for r in x.wrregs() if r[0] == 's'} & rd)
            if ins.kind == 'dma':
                req(1, lambda x: x.kind == 'salu' and 'm0' in x.wrregs())
        if ins.kind == 'salu':
            req(2, lambda x: x.kind in VALU_KINDS and
                {r for r in x.wrregs() if r[0] == 's' or r == 'vcc'} & rd)
        if ins.text.startswith('v_readfirstlane') or ins.text.startswith('v_readlane'):
            req(1, lambda x: x.kind in VALU_KINDS and set(x.wrregs()) & rd)
        while need > 0:
            n = min(need, 16)
            out.append(Ins('s_nop %d' % (n - 1), 'nop'))
            ninserted += 1
            if verbose:
                print('hazard nop %d before %s' % (n, ins.text))
            need -= n
        out.append(ins)
    return out, ninserted


def check_tags(prog, init=None):
    st = dict(init or {})
    errs = 0
    for idx, ins in enumerate(prog):
        for r, tag in ins.rd:
            if tag is not None and st.get(r) != tag:
                errs += 1
                if errs < 20:
                    print('TAG MISMATCH at %d: %s reads %s expects %r has %r' % (idx, ins.text, r, tag, st.get(r)))
        for r, tag in ins.wr:
            st[r] = tag if tag is not None else ('?', ins.uid)
    return errs


def est_cycles(prog):
    t = 0
    last_mfma = -100
    prev = None
    for ins in prog:
        if ins.kind == 'label':
            continue
        if ins.kind == 'mfma':
            t = max(t, last_mfma + 4 * ins.passes)
            last_mfma = t
            t += 8
        elif ins.kind in SCAL_KINDS:
            if prev is not None and prev.kind == 'mfma':
                pass
            else:
                t += 4 * states(ins) if ins.kind == 'nop' else 4
        else:
            c = 20 if ins.kind in ('dsw', 'vstore') else ins.cost
            if ins.kind in FRONT_KINDS and prev is not None and prev.kind in VALU_KINDS:
                c += 8
            t += c
        prev = ins
    return t
```

```python
import sys, os, struct
from sched import *

NAME = 'standalone__gqa_softmax__near_ridge'


class Cfg:
    R = 3
    D = 3
    U = 3
    LAT = 7
    loopA = (2, 29)
    loopB = (34, 61)
    thr = 0x4b800000
    debug = False
    stamps = False
    nt = ' nt'
    st_mod = ''
    no_dma = False
    no_qb = False
    no_drain = False


SLOT = 16896
KOFF, VOFF = 0, 8448
CH = 1056
NT = 64
NS = NT * 6
DUMMY = 3 * SLOT
STAGE0 = DUMMY + 3 * CH
STAGEW = 24 * CH
LDS_BYTES = STAGE0 + 4 * STAGEW
C_SCALE = 1.4426950408889634 * (128 ** -0.5)


def f32bits(x):
    return struct.unpack('<I', struct.pack('<f', x))[0]


def O(b, t): return 32 * b + 4 * t
def S(buf, u): return 192 + 8 * buf + 4 * u
def P(buf): return 208 + 4 * buf
def CI(b): return 216 + 4 * b
vIDX, vK, vV, vDMA = 240, 241, 242, 243
def T(i): return 244 + i
vQ, vO = T(10), T(11)
def Q(b, s): return 16 * b + 4 * s
def KF(u, s): return 96 + 16 * u + 4 * s
def VF(t): return 128 + 4 * t
def L(k): return 160 + 4 * k
SA = 172
def QR(b, s): return 176 + 16 * b + 4 * s
def qoff(b): return 8192 * (b >> 1) + 512 * (b & 1)

sK, sV, sQ, sO = 4, 8, 12, 16
sDOFF, sDLDS, sSLOT, sDELTA, sWPART, sTMP, sW, sIDX = 20, 21, 22, 23, 24, 25, 26, 27
sC, sTHR, sMASK = 28, 30, 31
sFLAG = [34, 36]
sCNT, sPHASE, sQOFF, sOOFF = 38, 39, 40, 41
sSTG, sQI, sQREL, sQM, sQSO, sQT, sQT2 = 42, 44, 45, 46, 47, 48, 49
sOI, sOSO, sOT, sOT2, sOINC = 50, 51, 32, 33, 62


def v(n): return 'v%d' % n
def a(n): return 'a%d' % n
def s(n): return 's%d' % n


def V_(text, rd=(), wr=(), kind='valu'):
    return Ins(text, kind, rd, wr)


def S_(text, rd=(), wr=()):
    return Ins(text, 'salu', rd, list(wr) + ['scc'])


class Gen:
    def __init__(self, cfg):
        self.cfg = cfg
        self.bb = []
        self.flex = []
        self.iQK = {}
        self.iPV = {}
        self.iZ = {}
        self.pos = {}
        self.pstart = {}
        self.pend_ = {}

    def mk_qk(self, n, u, st):
        j, b = (n % 192) // 6, n % 6
        J = n // 6
        d = S(n & 1, u)
        h = n // 192
        rd = [(a(KF(u, st) + i), ('K', J, u, st, i)) for i in range(4)]
        rd += [(a(Q(b, st) + i), ('Q', h, b, st, i)) for i in range(4)]
        if st == 0:
            if j == 0:
                c = '0'
                srcc = []
            else:
                c = rng('v', CI(b), 4)
                srcc = regs('v', CI(b), 4)
                rd += [(r, ('CI', h, b)) for r in srcc]
        else:
            c = rng('v', d, 4)
            srcc = regs('v', d, 4)
            rd += [(v(d + i), ('Sp', n, u, st - 1, i)) for i in range(4)]
        tag = 'Sp' if st < 3 else 'S'
        wr = [(v(d + i), (tag, n, u, st, i) if st < 3 else ('S', n, u, i)) for i in range(4)]
        m = Ins('v_mfma_f32_16x16x32_bf16 %s, %s, %s, %s' % (rng('v', d, 4), rng('a', KF(u, st), 4),
                                                          rng('a', Q(b, st), 4), c),
                'mfma', rd, wr, srcc=srcc)
        m.meta['cls'] = 'xdl'
        return m

    def mk_pv(self, n, t):
        j, b = (n % 192) // 6, n % 6
        J = n // 6
        h = n // 192
        d = O(b, t)
        rd = [(a(VF(t) + i), ('V', J, t, i)) for i in range(4)]
        rd += [(v(P(n & 1) + i), ('P', n, i)) for i in range(4)]
        if j == 0:
            c = '0'
            srcc = []
        else:
            c = rng('v', d, 4)
            srcc = regs('v', d, 4)
            rd += [(v(d + i), ('O', h, b, t, j - 1, i)) for i in range(4)]
        wr = [(v(d + i), ('O', h, b, t, j, i)) for i in range(4)]
        m = Ins('v_mfma_f32_16x16x32_bf16 %s, %s, %s, %s' % (rng('v', d, 4), rng('a', VF(t), 4),
                                                          rng('v', P(n & 1), 4), c),
                'mfma', rd, wr, srcc=srcc)
        m.meta['cls'] = 'xdl'
        return m

    def mk_z(self, p):
        n0 = p - 2
        h, j, k = n0 // 192, (n0 % 192) // 6, (n0 % 6) // 2
        d = L(k)
        rd = [(v(P(0) + i), ('P', n0, i)) for i in range(4)] + [(v(P(1) + i), ('P', n0 + 1, i)) for i in range(4)]
        rd += [(a(SA + i), 'SA') for i in range(4)] + [(v(vIDX), 'IDX')]
        rd += [(a(d + i), ('L', h, k, j - 1, i)) for i in range(4)]
        wr = [(a(d + i), ('L', h, k, j, i)) for i in range(4)]
        m = Ins('v_smfmac_f32_16x16x64_bf16 %s, %s, %s, %s' % (rng('a', d, 4), rng('a', SA, 4),
                                                            rng('v', P(0), 8), v(vIDX)),
                'mfma', rd, wr, srcc=regs('a', d, 4))
        m.meta['cls'] = 'smf'
        return m

    def build_backbone(self):
        bb = self.bb
        for p in range(-1, NS + 1):
            qk = p + 1 if p + 1 < NS else None
            pv = p - 1 if 0 <= p - 1 < NS else None
            z = p >= 2 and p % 2 == 0
            self.pstart[p] = len(bb)
            seq = []
            for i in range(8):
                if qk is not None:
                    seq.append(('q', i >> 2, i & 3))
                if pv is not None:
                    seq.append(('p', i))
            zdone = not z
            npos = 0
            for it in seq:
                if it[0] == 'q':
                    m = self.mk_qk(qk, it[1], it[2])
                    self.iQK[(qk, it[1], it[2])] = len(bb)
                else:
                    m = self.mk_pv(pv, it[1])
                    self.iPV[(pv, it[1])] = len(bb)
                self.pos[(p, npos)] = len(bb)
                npos += 1
                bb.append(m)
                if it[0] == 'p' and not zdone:
                    self.iZ[p] = len(bb)
                    bb.append(self.mk_z(p))
                    zdone = True
            self.pend_[p] = len(bb) - 1
        for J in range(1, NT):
            k = self.pstart[6 * J]
            bb[k].meta['tile_start'] = J
            bb[k].meta['reserve_scal'] = True
            bb[k - 1].meta['reserve_scal'] = True

    def add(self, ins, lo=None, hi=None, deps=(), prio=0):
        ins.lo, ins.hi, ins.prio = lo, hi, prio
        ins.deps = [d if isinstance(d, tuple) else (d, 0) for d in deps if d is not None]
        self.flex.append(ins)
        return ins

    def softmax(self):
        lastcvt = {}
        for n in range(NS):
            j, b, h = (n % 192) // 6, n % 6, n // 192
            buf = n & 1
            sr = [S(buf, u) + i for u in range(2) for i in range(4)]
            firstpv = self.iPV[(n, 0)]
            normal = j != 0 and (n, 15) in self.pos
            stag = [('S', n, r >> 2, r & 3) for r in range(8)]
            pre = None
            if j == 0:
                t0, t1 = T(0), T(1)
                lo0 = self.iQK[(n, 0, 3)] + 4
                lo1 = self.iQK[(n, 1, 3)] + 4
                prevuse = self.t0_last if hasattr(self, 't0_last') else None
                c = self.add(V_('v_max3_f32 %s, %s, %s, %s' % (v(t0), v(sr[0]), v(sr[1]), v(sr[2])),
                                [(v(sr[i]), stag[i]) for i in range(3)], [(v(t0), ('m0', n))]), lo=lo0,
                             deps=[prevuse])
                c = self.add(V_('v_max_f32 %s, %s, %s' % (v(t0), v(t0), v(sr[3])),
                                [(v(t0), ('m0', n)), (v(sr[3]), stag[3])], [(v(t0), ('m1', n))]), lo=lo0, deps=[c])
                c = self.add(V_('v_max3_f32 %s, %s, %s, %s' % (v(t0), v(t0), v(sr[4]), v(sr[5])),
                                [(v(t0), ('m1', n)), (v(sr[4]), stag[4]), (v(sr[5]), stag[5])],
                                [(v(t0), ('m2', n))]), lo=lo1, deps=[c])
                c = self.add(V_('v_max3_f32 %s, %s, %s, %s' % (v(t0), v(t0), v(sr[6]), v(sr[7])),
                                [(v(t0), ('m2', n)), (v(sr[6]), stag[6]), (v(sr[7]), stag[7])],
                                [(v(t0), ('m3', n))]), lo=lo1, deps=[c])
                c = self.add(V_('v_mov_b32 %s, %s' % (v(t1), v(t0)), [(v(t0), ('m3', n))], [(v(t1), ('m3c', n))]),
                             deps=[c], lo=lo1)
                c = self.add(V_('v_permlane16_swap_b32 %s, %s' % (v(t0), v(t1)),
                                [(v(t0), ('m3', n)), (v(t1), ('m3c', n))],
                                [(v(t0), ('m4a', n)), (v(t1), ('m4b', n))], kind='perm'), deps=[(c, 1)], lo=lo1)
                c = self.add(V_('v_max_f32 %s, %s, %s' % (v(t0), v(t0), v(t1)),
                                [(v(t0), ('m4a', n)), (v(t1), ('m4b', n))], [(v(t0), ('m5', n))]), deps=[c], lo=lo1)
                c = self.add(V_('v_mov_b32 %s, %s' % (v(t1), v(t0)), [(v(t0), ('m5', n))], [(v(t1), ('m5c', n))]),
                             deps=[c], lo=lo1)
                c = self.add(V_('v_permlane32_swap_b32 %s, %s' % (v(t0), v(t1)),
                                [(v(t0), ('m5', n)), (v(t1), ('m5c', n))],
                                [(v(t0), ('m6a', n)), (v(t1), ('m6b', n))], kind='perm'), deps=[(c, 1)], lo=lo1)
                cis = []
                for i in range(4):
                    c = self.add(V_('v_min_f32 %s, -%s, -%s' % (v(CI(b) + i), v(t0), v(t1)),
                                    [(v(t0), ('m6a', n)), (v(t1), ('m6b', n))], [(v(CI(b) + i), ('CI', h, b))]),
                                 deps=[c], lo=lo1)
                    cis.append(c)
                self.t0_last = cis[-1]
                for cc in cis:
                    cc.hi = self.iQK[(n + 6, 0, 0)] - 2
                pre = []
                for r in range(8):
                    c = self.add(V_('v_add_f32 %s, %s, %s' % (v(sr[r]), v(CI(b)), v(sr[r])),
                                    [(v(CI(b)), ('CI', h, b)), (v(sr[r]), stag[r])], [(v(sr[r]), ('Ss', n, r))]),
                                 deps=[cis[0]], lo=lo1)
                    pre.append(c)
                stag = [('Ss', n, r) for r in range(8)]
            exps = []
            for r in range(8):
                e = V_('v_exp_f32 %s, %s' % (v(sr[r]), v(sr[r])), [(v(sr[r]), stag[r])],
                       [(v(sr[r]), ('E', n, r))], kind='trans')
                if normal:
                    g = self.pos[(n, 2 * r)]
                    self.add(e, lo=g, hi=g, prio=5)
                else:
                    lo = self.iQK[(n, r >> 2, 3)] + 4
                    self.add(e, lo=lo, deps=[pre[r]] if pre else [])
                exps.append(e)
            for i in range(4):
                c = V_('v_cvt_pk_bf16_f32 %s, %s, %s' % (v(P(buf) + i), v(sr[2 * i]), v(sr[2 * i + 1])),
                       [(v(sr[2 * i]), ('E', n, 2 * i)), (v(sr[2 * i + 1]), ('E', n, 2 * i + 1))],
                       [(v(P(buf) + i), ('P', n, i))])
                lo = 0
                if n >= 2:
                    lo = self.iPV[(n - 2, 7)]
                    zp = n if n % 2 == 0 else n - 1
                    zp = (n - 2) - ((n - 2) % 2) + 2
                    lo = max(lo, self.iZ[zp])
                if normal:
                    g = self.pos[(n, 4 * i + 3)]
                    assert g >= lo
                    self.add(c, lo=g, hi=g, deps=[(exps[2 * i], 1), (exps[2 * i + 1], 1)], prio=5)
                else:
                    self.add(c, lo=lo, hi=firstpv - 2, deps=[(exps[2 * i], 1), (exps[2 * i + 1], 1)])

    def inloop(self, J):
        return any(a_ <= J < b_ for a_, b_ in (self.cfg.loopA, self.cfg.loopB))

    def dma_group(self, JJ, lo, hi, deps, which=(0, 1, 2, 3)):
        cfg = self.cfg
        prev = self.m0chain
        base = (JJ % cfg.R) * SLOT
        for i in which:
            off = (0, 32, VOFF, VOFF + 32)[i]
            m = S_('s_add_u32 m0, %s, %d' % (s(sWPART), base + off), [s(sWPART)], ['m0'])
            self.add(m, lo=lo, hi=hi, deps=list(deps) + ([(prev, 1)] if prev else []))
            srd = sK if i < 2 else sV
            dma = Ins('buffer_load_dwordx4 %s, %s, %s offen%s%s lds' % (
                v(vDMA), rng('s', srd, 4), s(sDOFF), ' offset:1024' if i & 1 else '', cfg.nt), 'dma',
                [v(vDMA), 'm0', s(sDOFF)] + regs('s', srd, 4), [])
            dma.meta['tile'] = JJ
            self.add(dma, lo=lo, hi=hi, deps=[(m, 1)] + list(deps))
            prev = dma
        self.m0chain = prev
        self.lastdma[JJ] = prev
        return prev

    def kv_stream(self):
        cfg = self.cfg
        R, D = cfg.R, cfg.D
        self.bar = {}
        self.barwait = {}
        kreads = {}
        chain = None
        for J in range(0, NT):
            p3 = 6 * J + 3
            last = J == NT - 1
            if cfg.loopA[0] <= J < cfg.loopA[1] and not cfg.no_qb:
                self.q_stage_tile(J)
            if cfg.loopB[0] <= J < cfg.loopB[1] and not cfg.no_drain:
                self.o_drain_tile(J)
            vr = []
            for t in range(8):
                for pp in range(2):
                    d = VF(t) + 2 * pp
                    ins = Ins('ds_read_b64_tr_b16 %s, %s offset:%d' % (
                        rng('a', d, 2), v(vV), (J % R) * SLOT + 512 * pp + 32 * t),
                        'ds', [v(vV)], [(a(d + i), ('V', J, t, 2 * pp + i)) for i in range(2)])
                    lo_ = self.iPV[(6 * J - 1, t)] if J > 0 else 0
                    hi_ = self.iPV[(6 * J, t)] - cfg.LAT
                    if J > 0:
                        deps = [(self.bar[J - 1], 0)]
                    else:
                        deps = [(self.bar_v0, 0)]
                        lo_ = max(lo_, self.bar_v0.lo)
                    self.add(ins, lo=lo_, hi=max(hi_, lo_), deps=deps)
                    vr.append(ins)
            e = self.pend_[p3]
            w = Ins('s_waitcnt vmcnt(0)', 'wait')
            w.meta['tile_wait'] = J + 1 if not last else 'all'
            self.add(w, lo=e - 2, hi=e - 1)
            bar = Ins('s_barrier', 'bar')
            bar.meta['assert_lg_done'] = set(vr) | set(kreads.get(J, []))
            self.add(bar, lo=e - 1, hi=e, deps=[(w, 1)])
            self.bar[J] = bar
            self.barwait[J] = w
            if last:
                break
            kr = []
            for u in range(2):
                for st in range(4):
                    d = KF(u, st)
                    ins = Ins('ds_read_b128 %s, %s offset:%d' % (
                        rng('a', d, 4), v(vK), ((J + 1) % R) * SLOT + 512 * u + 64 * st), 'ds',
                        [v(vK)], [(a(d + i), ('K', J + 1, u, st, i)) for i in range(4)])
                    lo_ = self.iQK[(6 * J + 5, u, st)]
                    hi_ = self.iQK[(6 * J + 6, u, st)] - cfg.LAT
                    self.add(ins, lo=lo_, hi=max(hi_, lo_), deps=[(bar, 0)])
                    kr.append(ins)
            kreads[J + 1] = kr
            JJ = J + D
            if JJ < NT and not (cfg.no_dma and self.inloop(J)):
                lo_ = self.pstart[6 * J + 5] - 2
                hi_ = self.pend_[6 * J + 5] - 1
                prev = self.dma_group(JJ, lo_, hi_, [(bar, 1)] + ([(self.doff_final, 1)] if J == 0 else [])
                                      + ([(chain, 1)] if chain else []))
                chain = self.add(S_('s_add_u32 %s, %s, 8192' % (s(sDOFF), s(sDOFF)), [s(sDOFF)], [s(sDOFF)]),
                                 lo=lo_, hi=self.pend_[6 * J + 5] + 6, deps=[(prev, 1)])

    def q_stage_tile(self, J):
        cfg = self.cfg
        lo, hi = self.pstart[6 * J] + 2, self.pend_[6 * J + 1]
        prev = self.qs_chain

        def sc(ins, h=hi):
            nonlocal prev
            prev = self.add(ins, lo=lo, hi=h, deps=[(prev, 1)] if prev else [])
            return prev
        sc(S_('s_sub_u32 %s, %s, 24' % (s(sQM), s(sQI)), [s(sQI)], [s(sQM)]))
        sc(S_('s_ashr_i32 %s, %s, 31' % (s(sQM), s(sQM)), [s(sQM)], [s(sQM)]))
        sc(S_('s_and_b32 %s, %s, %s' % (s(sQT), s(sQREL), s(sQM)), [s(sQREL), s(sQM)], [s(sQT)]))
        sc(S_('s_andn2_b32 %s, 0x40000000, %s' % (s(sQT2), s(sQM)), [s(sQM)], [s(sQT2)]))
        so = sc(S_('s_or_b32 %s, %s, %s' % (s(sQT2), s(sQT2), s(sQSO)), [s(sQT2), s(sQSO)], [s(sQT2)]))
        wlo, whi = self.pstart[6 * J + 2], self.pend_[6 * J + 3] - 4
        m = S_('s_add_u32 m0, %s, %d' % (s(sQT), DUMMY), [s(sQT)], ['m0'])
        self.add(m, lo=wlo, hi=whi, deps=[(so, 1)] + ([(self.m0chain, 1)] if self.m0chain else []))
        dma = Ins('buffer_load_dwordx4 %s, %s, %s offen%s lds' % (v(vDMA), rng('s', sQ, 4), s(sQT2), cfg.nt), 'dma',
                  [v(vDMA), 'm0', s(sQT2)] + regs('s', sQ, 4), [])
        self.add(dma, lo=wlo, hi=whi, deps=[(m, 1)])
        self.m0chain = dma
        prev = dma
        lo, hi = wlo, self.pend_[6 * J + 4]
        sc(S_('s_add_u32 %s, %s, 1' % (s(sQI), s(sQI)), [s(sQI)], [s(sQI)]), hi)
        sc(S_('s_add_u32 %s, %s, %d' % (s(sQREL), s(sQREL), CH), [s(sQREL)], [s(sQREL)]), hi)
        sc(S_('s_add_u32 %s, %s, 1024' % (s(sQSO), s(sQSO)), [s(sQSO)], [s(sQSO)]), hi)
        self.qs_chain = prev
        t0, tb, ad = T(0), T(4), T(5)
        key = ('qc', J)
        lo = self.pstart[6 * J + 1] + 6
        hi = self.pend_[6 * J + 5] - 2
        rd = Ins('ds_read_b128 %s, %s' % (rng('v', t0, 4), v(ad)), 'ds', [v(ad)],
                 [(v(t0 + i), (key, 'raw', i)) for i in range(4)])
        self.add(rd, lo=lo, hi=self.pstart[6 * J + 2] + 2, deps=[(self.qc_chain, 1)] if self.qc_chain else [])
        c = None
        lo2 = self.pstart[6 * J + 2] + 4
        for i in range(4):
            r = t0 + i
            c = self.add(V_('v_lshlrev_b32 %s, 16, %s' % (v(tb), v(r)), [(v(r), (key, 'raw', i))], [(v(tb), (key, 'b', i))]),
                         lo=lo2, deps=[(rd, 3), c] if c else [(rd, 3)])
            c = self.add(V_('v_and_b32 %s, %s, %s' % (v(r), s(sMASK), v(r)), [(v(r), (key, 'raw', i)), s(sMASK)],
                            [(v(r), (key, 'c', i))]), lo=lo2, deps=[c])
            c = self.add(V_('v_mul_f32 %s, %s, %s' % (v(tb), s(sC), v(tb)), [(v(tb), (key, 'b', i)), s(sC)],
                            [(v(tb), (key, 'd', i))]), lo=lo2, deps=[c])
            c = self.add(V_('v_mul_f32 %s, %s, %s' % (v(r), s(sC), v(r)), [(v(r), (key, 'c', i)), s(sC)],
                            [(v(r), (key, 'e', i))]), lo=lo2, deps=[c])
            c = self.add(V_('v_cvt_pk_bf16_f32 %s, %s, %s' % (v(r), v(tb), v(r)),
                            [(v(r), (key, 'e', i)), (v(tb), (key, 'd', i))], [(v(r), (key, 'f', i))]), lo=lo2, deps=[c])
        wr = Ins('ds_write_b128 %s, %s' % (v(ad), rng('v', t0, 4)), 'dsw',
                 [v(ad)] + [(v(t0 + i), (key, 'f', i)) for i in range(4)], [])
        wr.meta['cost'] = 8
        self.add(wr, lo=lo2, hi=hi, deps=[(c, 1)])
        up = self.add(V_('v_add_u32 %s, %d, %s' % (v(ad), CH, v(ad)), [v(ad)], [v(ad)]), lo=lo2, hi=hi + 1,
                      deps=[(wr, 0)])
        self.qc_chain = up
        self.qc_lastwrite = wr

    def o_drain_tile(self, J):
        cfg = self.cfg
        ph = (J - cfg.loopB[0]) % cfg.U
        if ph == 0:
            lo, hi = self.pstart[6 * J] + 2, self.pend_[6 * J + 1]
            prev = self.od_chain

            def sc(ins):
                nonlocal prev
                prev = self.add(ins, lo=lo, hi=hi, deps=[(prev, 1)] if prev else [])
                return prev
            sc(S_('s_lshr_b32 %s, %s, 1' % (s(sOT), s(sOI)), [s(sOI)], [s(sOT)]))
            sc(S_('s_lshl_b32 %s, %s, 13' % (s(sOT), s(sOT)), [s(sOT)], [s(sOT)]))
            sc(S_('s_and_b32 %s, %s, 1' % (s(sOT2), s(sOI)), [s(sOI)], [s(sOT2)]))
            sc(S_('s_lshl_b32 %s, %s, 9' % (s(sOT2), s(sOT2)), [s(sOT2)], [s(sOT2)]))
            sc(S_('s_add_u32 %s, %s, %s' % (s(sOSO), s(sOT), s(sOT2)), [s(sOT), s(sOT2)], [s(sOSO)]))
            sc(S_('s_sub_u32 %s, %s, 6' % (s(sOT), s(sOI)), [s(sOI)], [s(sOT)]))
            sc(S_('s_ashr_i32 %s, %s, 31' % (s(sOT), s(sOT)), [s(sOT)], [s(sOT)]))
            sc(S_('s_andn2_b32 %s, 0x40000000, %s' % (s(sOT2), s(sOT)), [s(sOT)], [s(sOT2)]))
            sc(S_('s_or_b32 %s, %s, %s' % (s(sOSO), s(sOSO), s(sOT2)), [s(sOSO), s(sOT2)], [s(sOSO)]))
            sc(S_('s_and_b32 %s, %d, %s' % (s(sOINC), 2 * CH, s(sOT)), [s(sOT)], [s(sOINC)]))
            sc(S_('s_add_u32 %s, %s, 1' % (s(sOI), s(sOI)), [s(sOI)], [s(sOI)]))
            self.od_scal = prev
            self.od_chain = prev
        if ph > 1:
            return
        ad = T(8)
        key = ('od', J)
        lo = self.pstart[6 * J + 2] - 2
        rds = []
        for q in range(2):
            t0 = T(4 * q)
            rd = Ins('ds_read_b128 %s, %s offset:%d' % (rng('v', t0, 4), v(ad), CH * q), 'ds', [v(ad)],
                     [(v(t0 + i), (key, q, i)) for i in range(4)])
            self.add(rd, lo=lo, hi=lo + 6, deps=[(self.od_st, 1)] if self.od_st else [])
            rds.append(rd)
        up = self.add(V_('v_add_u32 %s, %s, %s' % (v(ad), s(sOINC), v(ad)), [v(ad), s(sOINC)], [v(ad)]),
                      lo=lo, hi=self.pend_[6 * J + 3], deps=[(rds[0], 0), (rds[1], 0), (self.od_scal, 1)])
        for q in range(2):
            t0 = T(4 * q)
            st = Ins('buffer_store_dwordx4 %s, %s, %s, %s offen offset:%d%s' % (
                rng('v', t0, 4), v(vO), rng('s', sO, 4), s(sOSO), 128 * ph + 64 * q, cfg.st_mod), 'vstore',
                [(v(t0 + i), (key, q, i)) for i in range(4)] + [v(vO), s(sOSO)] + regs('s', sO, 4), [])
            self.add(st, lo=lo + 8, hi=self.pend_[6 * J + 3] - 3, deps=[(rds[q], 6), (self.od_scal, 1)])
            self.od_st = st
        self.od_chain = self.od_st if ph == 1 else self.od_chain

    def epilogue(self, h):
        cfg = self.cfg
        self.st_last = None
        prevchain = getattr(self, 'sq_chain', None)
        lread = {}
        for b in range(6):
            n = 192 * h + 186 + b
            k, e = b >> 1, b & 1
            zi = self.iZ[192 * h + 188 + 2 * k]
            x = T(2 + (b & 1))
            y = T(4)
            nxt = n + 6 if h == 0 else None
            jl = 31
            prevx = getattr(self, 'xlast', {}).get(b & 1)
            r0 = self.add(V_('v_accvgpr_read_b32 %s, %s' % (v(x), a(L(k) + 2 * e)),
                             [(a(L(k) + 2 * e), ('L', h, k, jl, 2 * e))], [(v(x), ('l0', h, b))]),
                          lo=zi + 5, deps=[prevx])
            r1 = self.add(V_('v_accvgpr_read_b32 %s, %s' % (v(y), a(L(k) + 2 * e + 1)),
                             [(a(L(k) + 2 * e + 1), ('L', h, k, jl, 2 * e + 1))], [(v(y), ('l1', h, b))]),
                          lo=zi + 5, deps=[getattr(self, 'ylast', None)])
            lread[b] = (r0, r1)
            ad = self.add(V_('v_add_f32 %s, %s, %s' % (v(x), v(x), v(y)),
                             [(v(x), ('l0', h, b)), (v(y), ('l1', h, b))], [(v(x), ('l', h, b))]), deps=[r0, r1],
                          lo=zi + 5)
            self.ylast = ad
            cmp_ = self.add(V_('v_cmp_nge_f32 vcc, %s, %s' % (s(sTHR), v(x)), [s(sTHR), (v(x), ('l', h, b))],
                               [('vcc', ('chk', h, b))]), deps=[ad, getattr(self, 'vcc_last', None)], lo=zi + 5)
            fl = self.add(S_('s_or_b64 %s, %s, vcc' % (rng('s', sFLAG[h], 2), rng('s', sFLAG[h], 2)),
                             [('vcc', ('chk', h, b))] + regs('s', sFLAG[h], 2), regs('s', sFLAG[h], 2)),
                          deps=[(cmp_, 1)], lo=zi + 5)
            self.vcc_last = (fl, 1)
            rc = self.add(V_('v_rcp_f32 %s, %s' % (v(x), v(x)), [(v(x), ('l', h, b))], [(v(x), ('r', h, b))],
                             kind='trans'), deps=[cmp_], lo=zi + 5)
            fl.hi = None
            so = None
            if h == 1:
                so = self.add(Ins('s_mov_b32 %s, %d' % (s(sOOFF), h * 98304 + qoff(b)), 'salu', [], [s(sOOFF)]),
                              deps=[(self.st_last, 1)] if self.st_last is not None and b > 0 else [], lo=zi)
            last_in_block = None
            for tau in range(4):
                t0, t1 = 2 * tau, 2 * tau + 1
                muls = {}
                lo = self.iPV[(n, t1)] + 5
                for t in (t0, t1):
                    for i in range(4):
                        r = O(b, t) + i
                        muls[(t, i)] = self.add(V_('v_mul_f32 %s, %s, %s' % (v(r), v(x), v(r)),
                                                   [(v(x), ('r', h, b)), (v(r), ('O', h, b, t, jl, i))],
                                                   [(v(r), ('On', h, b, t, i))]), lo=lo, deps=[(rc, 1)])
                base = O(b, t0)
                cv = []
                src = [(t0, 0), (t0, 2), (t1, 0), (t1, 2)]
                for q, (t, i) in enumerate(src):
                    d = base + q
                    deps = [muls[(t, i)], muls[(t, i + 1)]]
                    if q == 1:
                        deps.append(cv[0])
                    if q == 2:
                        deps += [cv[1]]
                    if q == 3:
                        deps += [cv[1], cv[2]]
                    c = self.add(V_('v_cvt_pk_bf16_f32 %s, %s, %s' % (v(d), v(O(b, t) + i), v(O(b, t) + i + 1)),
                                    [(v(O(b, t) + i), ('On', h, b, t, i)), (v(O(b, t) + i + 1), ('On', h, b, t, i + 1))],
                                    [(v(d), ('Oc', h, b, tau, q))]), lo=lo, deps=deps)
                    cv.append(c)
                s0 = self.add(V_('v_permlane16_swap_b32 %s, %s' % (v(base), v(base + 2)),
                                 [(v(base), ('Oc', h, b, tau, 0)), (v(base + 2), ('Oc', h, b, tau, 2))],
                                 [(v(base), ('Os', h, b, tau, 0)), (v(base + 2), ('Os', h, b, tau, 2))], kind='perm'),
                              deps=[(cv[0], 1), (cv[2], 1)], lo=lo)
                s1 = self.add(V_('v_permlane16_swap_b32 %s, %s' % (v(base + 1), v(base + 3)),
                                 [(v(base + 1), ('Oc', h, b, tau, 1)), (v(base + 3), ('Oc', h, b, tau, 3))],
                                 [(v(base + 1), ('Os', h, b, tau, 1)), (v(base + 3), ('Os', h, b, tau, 3))],
                                 kind='perm'), deps=[(cv[1], 1), (cv[3], 1)], lo=lo)
                hi = None
                if h == 0:
                    st = Ins('ds_write_b128 %s, %s offset:%d' % (v(T(8)), rng('v', base, 4), CH * (4 * b + tau)), 'dsw',
                             [(v(base + q), ('Os', h, b, tau, q)) for q in range(4)] + [(v(T(8)), 'ostage')], [])
                    st.meta['cost'] = 8
                    hi = self.iPV[(nxt, t0)] - 2
                    deps = [(s0, 1), (s1, 1), (self.ostage_addr, 1)]
                    deps += [(x, 0) for x in self.qb_reads[2 * (b >> 1)] + self.qb_reads[2 * (b >> 1) + 1]]
                    self.add(st, lo=lo, hi=hi, deps=deps)
                else:
                    st = Ins('buffer_store_dwordx4 %s, %s, %s, %s offen offset:%d%s' % (
                        rng('v', base, 4), v(vO), rng('s', sO, 4), s(sOOFF), 64 * tau, cfg.st_mod), 'vstore',
                        [(v(base + q), ('Os', h, b, tau, q)) for q in range(4)] + [v(vO), s(sOOFF)] + regs('s', sO, 4), [])
                    self.add(st, lo=lo, hi=hi, deps=[(s0, 1), (s1, 1), (so, 1)])
                if nxt is not None:
                    for q in (2, 3):
                        cv[q].hi = min(self.iPV[(nxt, t1)] - 2, cv[q].hi if cv[q].hi is not None else 10 ** 9)
                self.st_last = st
                last_in_block = muls[(t1, 3)]
            self.xlast = getattr(self, 'xlast', {})
            self.xlast[b & 1] = last_in_block
        if h == 0:
            for k in range(3):
                zi_next = self.iZ[192 + 2 + 2 * k]
                for i in range(4):
                    bb_ = 2 * k + (i >> 1)
                    self.add(V_('v_accvgpr_write_b32 %s, 0' % a(L(k) + i), [],
                                [(a(L(k) + i), ('L', 1, k, -1, i))]),
                             deps=[lread[bb_][i & 1]], hi=zi_next - 2, lo=0)

    def qb(self):
        cfg = self.cfg
        lo = self.pstart[6 * cfg.loopA[1]] + 2
        ad = self.add(V_('v_add_u32 %s, %s, %s' % (v(T(5)), s(sSTG), v(vK)), [s(sSTG), v(vK)], [(v(T(5)), 'qsaddr')]),
                      lo=lo, hi=self.pstart[184], deps=[(self.qc_chain, 1)] if self.qc_chain else [])
        self.qb_reads = {}
        for b in range(6):
            nlast, nfirst = 186 + b, 192 + b
            lst = []
            for st in range(4):
                d = Q(b, st)
                ins = Ins('ds_read_b128 %s, %s offset:%d' % (
                    rng('a', d, 4), v(T(5)), (b >> 1) * 8 * CH + 512 * (b & 1) + 64 * st), 'ds',
                    [(v(T(5)), 'qsaddr')], [(a(d + i), ('Q', 1, b, st, i)) for i in range(4)])
                lo_ = max(self.iQK[(nlast, 0, st)], self.iQK[(nlast, 1, st)])
                self.add(ins, lo=lo_, hi=self.iQK[(nfirst, 0, st)] - cfg.LAT, deps=[(ad, 1)])
                lst.append(ins)
            self.qb_reads[b] = lst
        self.ostage_addr = self.add(V_('v_add_u32 %s, %s, %s' % (v(T(8)), s(43), v(vDMA)), [s(43), v(vDMA)],
                                       [(v(T(8)), 'ostage')]), lo=lo, hi=self.pstart[184])

    RAW = 96

    def q_load(self, b, add):
        cfg = self.cfg
        out = []
        so = add(Ins('s_mov_b32 %s, %d' % (s(sQOFF), qoff(b)), 'salu', [], [s(sQOFF)]), None)
        for st in range(4):
            d = self.RAW + 16 * b + 4 * st
            out.append(add(Ins('buffer_load_dwordx4 %s, %s, %s, %s offen offset:%d%s' % (
                rng('v', d, 4), v(vQ), rng('s', sQ, 4), s(sQOFF), 64 * st, cfg.nt), 'vload',
                [v(vQ), s(sQOFF)] + regs('s', sQ, 4), [(v(d + i), ('QA', b, st, i)) for i in range(4)]), so))
        return out

    def prologue(self):
        cfg = self.cfg
        R = cfg.R
        o = []

        def e(text, kind='valu', rd=(), wr=()):
            i = Ins(text, kind, rd, wr)
            o.append(i)
            return i

        def srd_setup(srd, ptr, per):
            e('s_mul_i32 s3, s2, %d' % per, 'salu')
            e('s_add_u32 %s, %s, s3' % (s(srd), s(ptr)), 'salu')
            e('s_addc_u32 %s, %s, 0' % (s(srd + 1), s(ptr + 1)), 'salu')
            e('s_and_b32 %s, %s, 0xffff' % (s(srd + 1), s(srd + 1)), 'salu')
            e('s_mov_b32 %s, %d' % (s(srd + 2), per), 'salu')
            e('s_mov_b32 %s, 0x20000' % s(srd + 3), 'salu')

        def dma(J, which):
            last = None
            for i in which:
                off = (0, 32, VOFF, VOFF + 32)[i]
                e('s_add_u32 m0, %s, %d' % (s(sWPART), (J % R) * SLOT + off), 'salu', wr=['m0'])
                srd = sK if i < 2 else sV
                e('s_nop 0', 'nop')
                last = e('buffer_load_dwordx4 %s, %s, %s offen%s%s lds' % (
                    v(vDMA), rng('s', srd, 4), s(sDOFF), ' offset:1024' if i & 1 else '', cfg.nt), 'dma', rd=['m0'])
                last.meta['tile'] = J
            return last

        def addq(ins, dep):
            o.append(ins)
            return ins
        e('s_cmp_ge_u32 s2, 256', 'salu')
        e('s_cbranch_scc1 L_done', 'branch')
        e('s_load_dwordx4 s[44:47], s[0:1], 0', 'salu')
        e('s_load_dwordx4 s[48:51], s[0:1], 16', 'salu')
        t = [T(i) for i in range(10)]
        e('v_lshrrev_b32 %s, 6, v0' % v(t[0]), wr=[v(t[0])])
        e('v_and_b32 %s, 63, v0' % v(t[1]), wr=[v(t[1])])
        e('v_readfirstlane_b32 %s, %s' % (s(sW), v(t[0])), rd=[v(t[0])], wr=[s(sW)])
        e('v_and_b32 %s, 15, %s' % (v(t[2]), v(t[1])))
        e('v_lshrrev_b32 %s, 4, %s' % (v(t[3]), v(t[1])))
        e('v_lshlrev_b32 %s, 4, %s' % (v(vDMA), v(t[1])))
        e('v_lshl_add_u32 %s, %s, 11, %s' % (v(vDMA), v(t[0]), v(vDMA)), wr=[v(vDMA)])
        e('v_mul_u32_u24 %s, %d, %s' % (v(t[4]), 24576, v(t[0])))
        e('v_and_b32 %s, 7, %s' % (v(t[5]), v(t[2])))
        e('v_lshl_add_u32 %s, %s, 10, %s' % (v(t[4]), v(t[5]), v(t[4])))
        e('v_lshrrev_b32 %s, 3, %s' % (v(t[5]), v(t[2])))
        e('v_lshl_add_u32 %s, %s, 8, %s' % (v(t[4]), v(t[5]), v(t[4])))
        e('v_lshl_add_u32 %s, %s, 4, %s' % (v(vQ), v(t[3]), v(t[4])), wr=[v(vQ)])
        e('s_mul_i32 %s, %s, %d' % (s(sWPART), s(sW), 2 * CH), 'salu', rd=[s(sW)], wr=[s(sWPART)])
        e('s_mov_b32 %s, 0' % s(sDOFF), 'salu')
        e('s_waitcnt lgkmcnt(0)', 'wait')
        srd_setup(sK, 46, 524288)
        srd_setup(sQ, 44, 196608)
        k0 = dma(0, (0, 1))
        q0 = self.q_load(0, addq)
        q1 = self.q_load(1, addq)
        srd_setup(sV, 48, 524288)
        v0 = dma(0, (2, 3))
        self.lastdma[0] = v0
        srd_setup(sO, 50, 196608)
        e('v_and_b32 %s, 1, %s' % (v(t[5]), v(t[3])))
        e('v_lshl_add_u32 %s, %s, 5, %s' % (v(t[4]), v(t[5]), v(t[4])))
        e('v_lshrrev_b32 %s, 1, %s' % (v(t[5]), v(t[3])))
        e('v_lshl_add_u32 %s, %s, 4, %s' % (v(vO), v(t[5]), v(t[4])), wr=[v(vO)])
        e('v_and_b32 %s, 7, %s' % (v(t[4]), v(t[2])))
        e('v_mul_u32_u24 %s, %d, %s' % (v(vK), CH, v(t[4])))
        e('v_lshrrev_b32 %s, 3, %s' % (v(t[4]), v(t[2])))
        e('v_lshl_add_u32 %s, %s, 8, %s' % (v(vK), v(t[4]), v(vK)))
        e('v_lshl_add_u32 %s, %s, 4, %s' % (v(vK), v(t[3]), v(vK)), wr=[v(vK)])
        e('v_bfe_u32 %s, %s, 2, 3' % (v(t[4]), v(t[1])))
        e('v_mul_u32_u24 %s, %d, %s' % (v(vV), CH, v(t[4])))
        e('v_lshrrev_b32 %s, 5, %s' % (v(t[4]), v(t[1])))
        e('v_lshl_add_u32 %s, %s, 8, %s' % (v(vV), v(t[4]), v(vV)))
        e('v_and_b32 %s, 3, %s' % (v(t[4]), v(t[1])))
        e('v_lshl_add_u32 %s, %s, 3, %s' % (v(vV), v(t[4]), v(vV)))
        e('v_add_u32 %s, %d, %s' % (v(vV), VOFF, v(vV)), wr=[v(vV)])
        e('s_mov_b32 %s, 0x%08x' % (s(sC), f32bits(C_SCALE)), 'salu')
        e('s_mov_b32 %s, 0x%08x' % (s(sC + 1), f32bits(C_SCALE)), 'salu')
        e('s_mov_b32 %s, 0x%08x' % (s(sTHR), cfg.thr), 'salu')
        e('s_mov_b32 %s, 0xffff0000' % s(sMASK), 'salu')
        e('s_mov_b64 %s, 0' % rng('s', sFLAG[0], 2), 'salu')
        e('s_mov_b64 %s, 0' % rng('s', sFLAG[1], 2), 'salu')
        e('s_mul_i32 %s, %s, %d' % (s(sSTG), s(sW), STAGEW), 'salu')
        e('s_add_u32 %s, %s, %d' % (s(sQREL), s(sSTG), STAGE0 - DUMMY), 'salu')
        e('s_add_u32 %s, %s, %d' % (s(sSTG), s(sSTG), STAGE0), 'salu')
        e('s_lshl_b32 s3, %s, 11' % s(sW), 'salu')
        e('s_sub_u32 s43, %s, s3' % s(sSTG), 'salu')
        e('s_sub_u32 s63, s43, %d' % (3 * CH), 'salu')
        e('s_mov_b32 %s, 0' % s(sQI), 'salu')
        e('s_mul_i32 %s, %s, %d' % (s(sQSO), s(sW), 24576 - 2048), 'salu')
        e('s_add_u32 %s, %s, 98304' % (s(sQSO), s(sQSO)), 'salu')
        e('s_mov_b32 %s, 0' % s(sOI), 'salu')
        e('v_and_b32 %s, 1, %s' % (v(t[4]), v(t[2])))
        e('v_mov_b32 %s, 0x4444' % v(t[5]))
        e('v_mov_b32 %s, 0xeeee' % v(t[6]))
        e('v_cmp_eq_u32 vcc, 0, %s' % v(t[4]), wr=['vcc'])
        e('v_cndmask_b32 %s, %s, %s, vcc' % (v(vIDX), v(t[6]), v(t[5])), rd=['vcc'], wr=[(v(vIDX), 'IDX')])
        e('v_bfe_u32 %s, %s, 1, 1' % (v(t[4]), v(t[2])))
        e('v_lshrrev_b32 %s, 1, %s' % (v(t[5]), v(t[3])))
        e('v_cmp_eq_u32 vcc, %s, %s' % (v(t[4]), v(t[5])), wr=['vcc'])
        e('v_mov_b32 %s, 0x3f803f80' % v(t[6]))
        e('v_cndmask_b32 %s, 0, %s, vcc' % (v(t[4]), v(t[6])), rd=['vcc'], wr=[v(t[4])])
        for i in range(4):
            e('v_accvgpr_write_b32 %s, %s' % (a(SA + i), v(t[4])), rd=[v(t[4])], wr=[(a(SA + i), 'SA')])
        for k in range(3):
            for i in range(4):
                e('v_accvgpr_write_b32 %s, 0' % a(L(k) + i), wr=[(a(L(k) + i), ('L', 0, k, -1, i))])
        w = e('s_waitcnt vmcnt(0)', 'wait')
        w.meta['vm_for'] = q0[-1]
        w.meta['stamp'] = True
        self.q_load(2, addq)
        b = 0
        for st in range(4):
            d = self.RAW + 16 * b + 4 * st
            tb = 8 * (st & 1)
            for i in range(4):
                e('v_lshlrev_b32 %s, 16, %s' % (v(tb + 2 * i), v(d + i)), rd=[(v(d + i), ('QA', b, st, i))],
                  wr=[v(tb + 2 * i)])
                e('v_and_b32 %s, %s, %s' % (v(tb + 2 * i + 1), s(sMASK), v(d + i)), rd=[v(d + i)],
                  wr=[v(tb + 2 * i + 1)])
            for i in range(4):
                e('v_pk_mul_f32 %s, %s, %s' % (rng('v', tb + 2 * i, 2), rng('v', tb + 2 * i, 2), rng('s', sC, 2)),
                  rd=regs('v', tb + 2 * i, 2), wr=regs('v', tb + 2 * i, 2))
            for i in range(4):
                e('v_cvt_pk_bf16_f32 %s, %s, %s' % (v(d + i), v(tb + 2 * i), v(tb + 2 * i + 1)),
                  rd=regs('v', tb + 2 * i, 2), wr=[v(d + i)])
            for i in range(4):
                e('v_accvgpr_write_b32 %s, %s' % (a(Q(b, st) + i), v(d + i)), rd=[v(d + i)],
                  wr=[(a(Q(b, st) + i), ('Q', 0, b, st, i))])
        e('s_barrier', 'bar')
        for u in range(2):
            for st in range(4):
                d = KF(u, st)
                e('ds_read_b128 %s, %s offset:%d' % (rng('a', d, 4), v(vK), 512 * u + 64 * st), 'ds',
                  rd=[v(vK)], wr=[(a(d + i), ('K', 0, u, st, i)) for i in range(4)])
        return o

    def early(self):
        cfg = self.cfg
        R, D = cfg.R, cfg.D
        firstop = {}
        chain = None
        qprev = None
        tiles = list(range(1, D))
        plan = {1: tiles[0:1], 2: [], 3: tiles[1:2], 4: tiles[2:3], 5: tiles[3:]}
        if D == 3:
            plan = {1: tiles[0:1], 2: [], 3: [], 4: tiles[1:2], 5: []}
        doff = None
        self.m0chain = None
        for b in range(1, 6):
            first = None
            for st in range(4):
                dl = self.iQK[(b, 0, st)] - 2
                for i in range(4):
                    r = self.RAW + 16 * b + 4 * st + i
                    tb = T(5 + (i & 1))
                    key = (b, st, i)
                    c = self.add(V_('v_lshlrev_b32 %s, 16, %s' % (v(tb), v(r)), [(v(r), ('QA', b, st, i))],
                                    [(v(tb), ('qb', key))]), lo=0, deps=[chain])
                    if first is None:
                        first = c
                    c = self.add(V_('v_and_b32 %s, %s, %s' % (v(r), s(sMASK), v(r)), [(v(r), ('QA', b, st, i)), s(sMASK)],
                                    [(v(r), ('qc', key))]), lo=0, deps=[c])
                    c = self.add(V_('v_mul_f32 %s, %s, %s' % (v(tb), s(sC), v(tb)), [(v(tb), ('qb', key)), s(sC)],
                                    [(v(tb), ('qd', key))]), lo=0, deps=[c])
                    c = self.add(V_('v_mul_f32 %s, %s, %s' % (v(r), s(sC), v(r)), [(v(r), ('qc', key)), s(sC)],
                                    [(v(r), ('qe', key))]), lo=0, deps=[c])
                    c = self.add(V_('v_cvt_pk_bf16_f32 %s, %s, %s' % (v(r), v(tb), v(r)),
                                    [(v(r), ('qe', key)), (v(tb), ('qd', key))], [(v(r), ('qf', key))]), lo=0, deps=[c])
                    c = self.add(V_('v_accvgpr_write_b32 %s, %s' % (a(Q(b, st) + i), v(r)), [(v(r), ('qf', key))],
                                    [(a(Q(b, st) + i), ('Q', 0, b, st, i))]), lo=0, hi=dl, deps=[c])
                    chain = c
            firstop[b] = first
            mark = len(self.flex)
            if b + 2 <= 5:
                def addq(ins, dep, first=first):
                    nonlocal qprev
                    deps = [(first, 1)]
                    if dep is not None:
                        deps.append((dep, 1))
                    elif qprev is not None:
                        deps.append((qprev, 1))
                    self.add(ins, lo=0, hi=None, deps=deps, prio=3)
                    ins.hi = None
                    return ins
                ql = self.q_load(b + 2, addq)
                qprev = ql[-1]
            for J in plan[b]:
                doff = self.add(Ins('s_mov_b32 %s, %d' % (s(sDOFF), J * 8192), 'salu', [], [s(sDOFF)]), lo=0,
                                deps=[(first, 1)] + ([(self.m0chain, 1)] if self.m0chain else []))
                self.dma_group(J, 0, None, [(doff, 1)])
            for x in self.flex[mark:]:
                x.meta['asap'] = True
        self.qoff_last = qprev
        self.qc_chain = self.add(V_('v_add_u32 %s, s63, %s' % (v(T(5)), v(vDMA)), [v(vDMA)], [v(T(5))]), lo=0,
                                 hi=self.pstart[6 * cfg.loopA[0]] - 4, deps=[chain])
        self.doff_final = self.add(Ins('s_mov_b32 %s, %d' % (s(sDOFF), D * 8192), 'salu', [], [s(sDOFF)]), lo=0,
                                   hi=self.pstart[5] - 4, deps=[(self.m0chain, 1)])
        k = self.pstart[0] + 1
        w = Ins('s_waitcnt vmcnt(0)', 'wait')
        w.meta['vm_for_tile0'] = True
        self.add(w, lo=k, hi=k)
        self.bar_v0 = Ins('s_barrier', 'bar')
        self.add(self.bar_v0, lo=k + 1, hi=k + 1, deps=[(w, 1)])
        self.v0wait = w

    def slowpath(self):
        o = []
        e = o.append
        e('L_slow:')
        e('s_waitcnt vmcnt(0) lgkmcnt(0)')
        e('s_mul_i32 s52, %s, %d' % (s(sW), SLOT))
        e('v_and_b32 v1, 63, %s' % v(vDMA))
        e('v_lshrrev_b32 v162, 4, %s' % v(vDMA))
        e('v_and_b32 v162, 63, v162')
        e('v_and_b32 v2, 15, v162')
        e('v_lshrrev_b32 v3, 4, v162')
        e('v_and_b32 v4, 7, v2')
        e('v_mul_u32_u24 v160, %d, v4' % CH)
        e('v_lshrrev_b32 v4, 3, v2')
        e('v_lshl_add_u32 v160, v4, 8, v160')
        e('v_lshl_add_u32 v160, v3, 4, v160')
        e('v_add_u32 v160, s52, v160')
        e('v_bfe_u32 v4, v162, 2, 3')
        e('v_mul_u32_u24 v161, %d, v4' % CH)
        e('v_lshrrev_b32 v4, 5, v162')
        e('v_lshl_add_u32 v161, v4, 8, v161')
        e('v_and_b32 v4, 3, v162')
        e('v_lshl_add_u32 v161, v4, 3, v161')
        e('v_add_u32 v161, %d, v161' % VOFF)
        e('v_add_u32 v161, s52, v161')
        e('v_lshlrev_b32 v162, 4, v162')
        e('s_mov_b32 s53, 0')
        e('L_slow_head:')
        e('s_cmp_eq_u32 s53, 0')
        e('s_cselect_b64 s[54:55], %s, %s' % (rng('s', sFLAG[0], 2), rng('s', sFLAG[1], 2)))
        e('s_cmp_eq_u64 s[54:55], 0')
        e('s_cbranch_scc1 L_slow_next')
        e('s_mov_b32 s56, 0')
        e('L_slow_blk:')
        e('s_mul_i32 s57, s53, 98304')
        e('s_lshr_b32 s58, s56, 1')
        e('s_lshl_b32 s58, s58, 13')
        e('s_add_u32 s57, s57, s58')
        e('s_and_b32 s58, s56, 1')
        e('s_lshl_b32 s58, s58, 9')
        e('s_add_u32 s57, s57, s58')
        for st in range(4):
            e('buffer_load_dwordx4 v[%d:%d], %s, %s, s57 offen offset:%d' % (
                4 * st, 4 * st + 3, v(vQ), rng('s', sQ, 4), 64 * st))
        e('s_waitcnt vmcnt(0)')
        for i in range(16):
            e('v_lshlrev_b32 v42, 16, v%d' % i)
            e('v_and_b32 v43, %s, v%d' % (s(sMASK), i))
            e('v_mul_f32 v42, %s, v42' % s(sC))
            e('v_mul_f32 v43, %s, v43' % s(sC))
            e('v_cvt_pk_bf16_f32 v%d, v42, v43' % (16 + i))
        e('v_mov_b32 v32, 0xff800000')
        e('v_mov_b32 v33, 0')
        for i in range(32):
            e('v_mov_b32 v%d, 0' % (64 + i))
        e('s_mul_i32 s59, s53, 262144')
        e('s_mov_b32 s60, 0')
        e('L_slow_tile:')
        for c in range(8):
            for which, srd in ((0, sK), (VOFF, sV)):
                e('s_add_u32 m0, s52, %d' % (which + c * CH))
                e('s_add_u32 s61, s59, %d' % (c * 1024))
                e('buffer_load_dwordx4 v162, %s, s61 offen lds' % rng('s', srd, 4))
        e('s_waitcnt vmcnt(0)')
        for u in range(2):
            for st in range(4):
                d = 96 + 16 * u + 4 * st
                e('ds_read_b128 v[%d:%d], v160 offset:%d' % (d, d + 3, 512 * u + 64 * st))
        e('s_waitcnt lgkmcnt(0)')
        for t in range(8):
            for pp in range(2):
                d = 128 + 4 * t + 2 * pp
                e('ds_read_b64_tr_b16 v[%d:%d], v161 offset:%d' % (d, d + 1, 512 * pp + 32 * t))
            if t == 3:
                e('s_waitcnt lgkmcnt(0)')
        e('s_waitcnt lgkmcnt(0)')
        for u in range(2):
            for st in range(4):
                d = 34 + 4 * u
                k = 96 + 16 * u + 4 * st
                e('v_mfma_f32_16x16x32_bf16 v[%d:%d], v[%d:%d], v[%d:%d], %s' % (
                    d, d + 3, k, k + 3, 16 + 4 * st, 19 + 4 * st, '0' if st == 0 else 'v[%d:%d]' % (d, d + 3)))
        e('s_nop 15')
        e('v_max3_f32 v42, v34, v35, v36')
        e('v_max3_f32 v42, v42, v37, v38')
        e('v_max3_f32 v42, v42, v39, v40')
        e('v_max3_f32 v42, v42, v41, v32')
        e('v_mov_b32 v43, v42')
        e('s_nop 2')
        e('v_permlane16_swap_b32 v42, v43')
        e('s_nop 2')
        e('v_max_f32 v42, v42, v43')
        e('v_mov_b32 v43, v42')
        e('s_nop 2')
        e('v_permlane32_swap_b32 v42, v43')
        e('s_nop 2')
        e('v_max_f32 v42, v42, v43')
        e('v_sub_f32 v44, v32, v42')
        e('v_exp_f32 v44, v44')
        e('v_mov_b32 v32, v42')
        for r in range(8):
            e('v_sub_f32 v%d, v%d, v42' % (34 + r, 34 + r))
        for r in range(8):
            e('v_exp_f32 v%d, v%d' % (34 + r, 34 + r))
        e('s_nop 1')
        e('v_mul_f32 v33, v33, v44')
        for i in range(4):
            e('v_cvt_pk_bf16_f32 v%d, v%d, v%d' % (48 + i, 34 + 2 * i, 35 + 2 * i))
        for i in range(4):
            e('v_lshlrev_b32 v45, 16, v%d' % (48 + i))
            e('v_and_b32 v46, %s, v%d' % (s(sMASK), 48 + i))
            e('v_add_f32 v33, v33, v45')
            e('v_add_f32 v33, v33, v46')
        for i in range(32):
            e('v_mul_f32 v%d, v%d, v44' % (64 + i, 64 + i))
        e('s_nop 2')
        for t in range(8):
            d = 64 + 4 * t
            e('v_mfma_f32_16x16x32_bf16 v[%d:%d], v[%d:%d], v[48:51], v[%d:%d]' % (
                d, d + 3, 128 + 4 * t, 131 + 4 * t, d, d + 3))
        e('s_nop 15')
        e('s_add_u32 s59, s59, 8192')
        e('s_add_u32 s60, s60, 1')
        e('s_cmp_lt_u32 s60, 32')
        e('s_cbranch_scc1 L_slow_tile')
        e('v_mov_b32 v43, v33')
        e('s_nop 2')
        e('v_permlane16_swap_b32 v33, v43')
        e('s_nop 2')
        e('v_add_f32 v33, v33, v43')
        e('v_mov_b32 v43, v33')
        e('s_nop 2')
        e('v_permlane32_swap_b32 v33, v43')
        e('s_nop 2')
        e('v_add_f32 v33, v33, v43')
        e('v_rcp_f32 v33, v33')
        e('s_nop 1')
        for i in range(32):
            e('v_mul_f32 v%d, v%d, v33' % (64 + i, 64 + i))
        for tau in range(4):
            b0 = 64 + 8 * tau
            e('v_cvt_pk_bf16_f32 v%d, v%d, v%d' % (b0, b0, b0 + 1))
            e('v_cvt_pk_bf16_f32 v%d, v%d, v%d' % (b0 + 1, b0 + 2, b0 + 3))
            e('v_cvt_pk_bf16_f32 v%d, v%d, v%d' % (b0 + 2, b0 + 4, b0 + 5))
            e('v_cvt_pk_bf16_f32 v%d, v%d, v%d' % (b0 + 3, b0 + 6, b0 + 7))
            e('s_nop 2')
            e('v_permlane16_swap_b32 v%d, v%d' % (b0, b0 + 2))
            e('v_permlane16_swap_b32 v%d, v%d' % (b0 + 1, b0 + 3))
            e('s_nop 2')
            e('buffer_store_dwordx4 v[%d:%d], %s, %s, s57 offen offset:%d' % (
                b0, b0 + 3, v(vO), rng('s', sO, 4), 64 * tau))
        e('s_waitcnt vmcnt(0)')
        e('s_add_u32 s56, s56, 1')
        e('s_cmp_lt_u32 s56, 6')
        e('s_cbranch_scc1 L_slow_blk')
        e('L_slow_next:')
        e('s_add_u32 s53, s53, 1')
        e('s_cmp_lt_u32 s53, 2')
        e('s_cbranch_scc1 L_slow_head')
        e('s_endpgm')
        return o

    def build(self):
        cfg = self.cfg
        self.lastdma = {}
        self.qs_chain = self.od_chain = self.od_st = None
        self.build_backbone()
        pro = self.prologue()
        self.early()
        self.v0wait.meta['vm_for'] = self.lastdma[0]
        self.softmax()
        self.kv_stream()
        self.qb()
        self.epilogue(0)
        self.epilogue(1)
        for J, w in self.barwait.items():
            tw = w.meta['tile_wait']
            if cfg.no_dma and self.inloop(J):
                w.text = 's_nop 0'
                w.kind = 'nop'
            elif tw == 'all':
                w.meta['vm_for_last_dma'] = True
            elif tw in self.lastdma:
                w.meta['vm_for'] = self.lastdma[tw]
            else:
                assert cfg.no_dma
                w.text = 's_nop 0'
                w.kind = 'nop'
        gaps = schedule(self.bb, self.flex)
        body = linearize(self.bb, gaps)
        prog0 = pro + body
        lastd = None
        for ins in prog0:
            if ins.kind == 'dma':
                lastd = ins
            if ins.meta.get('vm_for_last_dma'):
                ins.meta['vm_for'] = lastd
        insert_waits(prog0)
        for l0, l1 in (cfg.loopA, cfg.loopB):
            for ph in range(cfg.U):
                ws = [self.barwait[J] for J in range(l0 + ph, l1, cfg.U) if self.barwait[J].kind == 'wait']
                if ws:
                    cap = min(w.meta['vm'] for w in ws)
                    for w in ws:
                        w.meta['vm_cap'] = cap
        prog = insert_waits(prog0)
        prog, nn = fix_hazards(prog, verbose=cfg.debug)
        errs = check_tags(prog)
        assert errs == 0, errs
        self.check_m0(prog)
        self.gaps = gaps
        self.prog = prog
        self.nnops = nn
        return prog

    def check_m0(self, prog):
        lastm0 = None
        used = set()
        for ins in prog:
            if 'm0' in ins.wrregs():
                lastm0 = ins
            if ins.kind == 'dma':
                assert lastm0 is not None and lastm0.uid not in used, ('M0 reuse', ins.text)
                for d, _ in ins.deps:
                    if 'm0' in d.wrregs():
                        assert d is lastm0, ('M0 clobbered', ins.text)
                used.add(lastm0.uid)

    def roll(self):
        cfg = self.cfg
        prog = self.prog
        segs = []
        cur = []
        names = ['pre']
        for ins in prog:
            cur.append(ins)
            if ins.kind == 'mfma' and 'tile_start' in ins.meta:
                segs.append(cur)
                cur = []
                names.append(ins.meta['tile_start'])
        segs.append(cur)
        seg = dict(zip(names, segs))
        txt = lambda J: [i.text for i in seg[J]]
        U = cfg.U
        loops = [cfg.loopA, cfg.loopB]
        for l0, l1 in loops:
            assert (l1 - l0) % U == 0, (l0, l1)
            for J in range(l0, l1):
                ref = txt(l0 + (J - l0) % U)
                if txt(J) != ref:
                    x, y = txt(J), ref
                    for i in range(min(len(x), len(y))):
                        if x[i] != y[i]:
                            print('tile', J, 'differs at', i, x[i], '|', y[i])
                            break
                    raise Exception('tile %d not periodic' % J)
        out = []
        nst = [0]

        def stamp(real=False):
            if not cfg.stamps:
                return
            k = 64 + 2 * nst[0]
            nst[0] += 1
            out.append('    s_waitcnt lgkmcnt(0)')
            out.append('    %s s[%d:%d]' % ('s_memrealtime' if real else 's_memtime', k, k + 1))
            out.append('    s_waitcnt lgkmcnt(0)')

        def emit(J):
            for i in seg[J]:
                if cfg.stamps and i.meta.get('stamp'):
                    stamp()
                out.append('    ' + i.text)
        stamp(True)
        stamp()
        emit('pre')
        J = 1
        for li, (l0, l1) in enumerate(loops):
            while J < l0:
                emit(J)
                J += 1
            stamp()
            out.append('    s_mov_b32 %s, %d' % (s(sCNT), (l1 - l0) // U - 1))
            out.append('L_loop%d:' % li)
            for r in range(U):
                sg = seg[l0 + r]
                lines = ['    ' + i.text for i in sg]
                if r == U - 1:
                    idx = [k for k, i in enumerate(sg) if i.kind == 'mfma']
                    k = idx[-2]
                    for i in sg[k + 1:]:
                        assert 'scc' not in i.wrregs(), i.text
                    lines.insert(k + 1, '    s_sub_u32 %s, %s, 1' % (s(sCNT), s(sCNT)))
                    lines.append('    s_cbranch_scc0 L_loop%d' % li)
                out.extend(lines)
            stamp()
            J = l1
        while J < NT:
            emit(J)
            J += 1
        stamp()
        if cfg.stamps:
            out.append('    s_waitcnt vmcnt(0)')
            stamp()
            stamp(True)
            out.append('    s_load_dwordx2 s[44:45], s[0:1], 40')
            out.append('    s_waitcnt lgkmcnt(0)')
            out.append('    s_and_b32 s45, s45, 0xffff')
            out.append('    s_mov_b32 s46, 0x100000')
            out.append('    s_mov_b32 s47, 0x20000')
            out.append('    s_lshl_b32 s3, s2, 2')
            out.append('    s_add_u32 s3, s3, %s' % s(sW))
            out.append('    s_lshl_b32 s3, s3, 7')
            for k in range(nst[0]):
                out.append('    v_mov_b32 v0, s%d' % (64 + 2 * k))
                out.append('    v_mov_b32 v1, s3')
                out.append('    s_mov_b64 s[32:33], exec')
                out.append('    s_mov_b64 exec, 1')
                out.append('    buffer_store_dword v0, v1, s[44:47], 0 offen offset:%d' % (4 * k))
                out.append('    s_waitcnt vmcnt(0)')
                out.append('    s_mov_b64 exec, s[32:33]')
        out.append('    s_or_b64 s[54:55], %s, %s' % (rng('s', sFLAG[0], 2), rng('s', sFLAG[1], 2)))
        out.append('    s_cbranch_scc1 L_slow')
        out.append('L_done:')
        out.append('    s_endpgm')
        for l in self.slowpath():
            out.append(l if l.endswith(':') else '    ' + l)
        return out, seg


HEADER = """; Kernarg layout for this problem (48 bytes, ptrs only, base s[0:1]):
; @launch grid=(256,1,1) block=(256,1,1) lds=%d
.amdgcn_target "amdgcn-amd-amdhsa--gfx950"
.text
.globl NAME_kernel
.p2align 8
.type NAME_kernel,@function
NAME_kernel:
"""
FOOTER = """
.section .rodata,"a"
.p2align 6
.amdhsa_kernel NAME_kernel
  .amdhsa_next_free_vgpr 512
  .amdhsa_next_free_sgpr 102
  .amdhsa_accum_offset 256
  .amdhsa_group_segment_fixed_size 0
  .amdhsa_kernarg_size 48
  .amdhsa_user_sgpr_count 2
  .amdhsa_user_sgpr_kernarg_segment_ptr 1
  .amdhsa_system_sgpr_workgroup_id_x 1
.end_amdhsa_kernel
"""


def generate(cfg):
    g = Gen(cfg)
    g.build()
    lines, seg = g.roll()
    lds = LDS_BYTES
    src = (HEADER % lds).replace('NAME', NAME) + '\n'.join(lines) + '\n' + FOOTER.replace('NAME', NAME)
    return src, g, seg


if __name__ == '__main__':
    cfg = Cfg()
    out = sys.argv[1] if len(sys.argv) > 1 else 'cdna_kernels/%s.s' % NAME
    for kv in sys.argv[2:]:
        k, val = kv.split('=')
        setattr(cfg, k, eval(val))
    src, g, seg = generate(cfg)
    open(out, 'w').write(src)
    print('nops inserted', g.nnops, 'total est cycles', est_cycles(g.prog), 'lines', src.count('\n'))
    print(' '.join('%s:%d' % (J, est_cycles(seg[J])) for J in seg))
```

```python
import sys, os, struct
from sched import *

NAME = 'standalone__gqa_softmax__near_ridge'


class Cfg:
    R = 3
    D = 3
    U = 3
    LAT = 7
    loopA = (2, 29)
    loopB = (34, 61)
    thr = 0x4b800000
    debug = False
    stamps = False
    nt = ' nt'
    st_mod = ' nt sc1'
    st_mod2 = ' nt sc1'
    no_dma = False
    no_qb = False
    no_drain = False
    pair_cvt = True
    xp = ''
    bar_stamps = False
    dma_early = True
    qrd_lat = 8


SLOT = 16896
KOFF, VOFF = 0, 8448
CH = 1056
NT = 64
NS = NT * 6
DUMMY = 3 * SLOT
STAGE0 = DUMMY + 3 * CH
STAGEW = 24 * CH
LDS_BYTES = STAGE0 + 4 * STAGEW
C_SCALE = 1.4426950408889634 * (128 ** -0.5)


def f32bits(x):
    return struct.unpack('<I', struct.pack('<f', x))[0]


def O(b, t): return 32 * b + 4 * t
def S(buf, u): return 192 + 8 * buf + 4 * u
def P(buf): return 208 + 4 * buf
def CI(b): return 216 + 4 * b
vIDX, vK, vV, vDMA = 240, 241, 242, 243
def T(i): return 244 + i
vQ, vO = T(10), T(11)
def Q(b, s): return 16 * b + 4 * s
def KF(u, s): return 96 + 16 * u + 4 * s
def VF(t): return 128 + 4 * t
def L(k): return 160 + 4 * k
SA = 172
def QR(b, s): return 176 + 16 * b + 4 * s
def qoff(b): return 8192 * (b >> 1) + 512 * (b & 1)

sK, sV, sQ, sO = 4, 8, 12, 16
sDOFF, sDLDS, sSLOT, sDELTA, sWPART, sTMP, sW, sIDX = 20, 21, 22, 23, 24, 25, 26, 27
sC, sTHR, sMASK = 28, 30, 31
sFLAG = [34, 36]
sCNT, sPHASE, sQOFF, sOOFF = 38, 39, 40, 41
sSTG, sQI, sQREL, sQM, sQSO, sQT, sQT2 = 42, 44, 45, 46, 47, 48, 49
sOI, sOSO, sOT, sOT2, sOINC = 50, 51, 32, 33, 62


def v(n): return 'v%d' % n
def a(n): return 'a%d' % n
def s(n): return 's%d' % n


def V_(text, rd=(), wr=(), kind='valu'):
    return Ins(text, kind, rd, wr)


def S_(text, rd=(), wr=()):
    return Ins(text, 'salu', rd, list(wr) + ['scc'])


class Gen:
    def __init__(self, cfg):
        self.cfg = cfg
        self.bb = []
        self.flex = []
        self.iQK = {}
        self.iPV = {}
        self.iZ = {}
        self.pos = {}
        self.pstart = {}
        self.pend_ = {}

    def mk_qk(self, n, u, st):
        j, b = (n % 192) // 6, n % 6
        J = n // 6
        d = S(n & 1, u)
        h = n // 192
        rd = [(a(KF(u, st) + i), ('K', J, u, st, i)) for i in range(4)]
        rd += [(a(Q(b, st) + i), ('Q', h, b, st, i)) for i in range(4)]
        if st == 0:
            if j == 0:
                c = '0'
                srcc = []
            else:
                c = rng('v', CI(b), 4)
                srcc = regs('v', CI(b), 4)
                rd += [(r, ('CI', h, b)) for r in srcc]
        else:
            c = rng('v', d, 4)
            srcc = regs('v', d, 4)
            rd += [(v(d + i), ('Sp', n, u, st - 1, i)) for i in range(4)]
        tag = 'Sp' if st < 3 else 'S'
        wr = [(v(d + i), (tag, n, u, st, i) if st < 3 else ('S', n, u, i)) for i in range(4)]
        m = Ins('v_mfma_f32_16x16x32_bf16 %s, %s, %s, %s' % (rng('v', d, 4), rng('a', KF(u, st), 4),
                                                          rng('a', Q(b, st), 4), c),
                'mfma', rd, wr, srcc=srcc)
        m.meta['cls'] = 'xdl'
        return m

    def mk_pv(self, n, t):
        j, b = (n % 192) // 6, n % 6
        J = n // 6
        h = n // 192
        d = O(b, t)
        rd = [(a(VF(t) + i), ('V', J, t, i)) for i in range(4)]
        rd += [(v(P(n & 1) + i), ('P', n, i)) for i in range(4)]
        if j == 0:
            c = '0'
            srcc = []
        else:
            c = rng('v', d, 4)
            srcc = regs('v', d, 4)
            rd += [(v(d + i), ('O', h, b, t, j - 1, i)) for i in range(4)]
        wr = [(v(d + i), ('O', h, b, t, j, i)) for i in range(4)]
        m = Ins('v_mfma_f32_16x16x32_bf16 %s, %s, %s, %s' % (rng('v', d, 4), rng('a', VF(t), 4),
                                                          rng('v', P(n & 1), 4), c),
                'mfma', rd, wr, srcc=srcc)
        m.meta['cls'] = 'xdl'
        return m

    def mk_z(self, p):
        n0 = p - 2
        h, j, k = n0 // 192, (n0 % 192) // 6, (n0 % 6) // 2
        d = L(k)
        rd = [(v(P(0) + i), ('P', n0, i)) for i in range(4)] + [(v(P(1) + i), ('P', n0 + 1, i)) for i in range(4)]
        rd += [(a(SA + i), 'SA') for i in range(4)] + [(v(vIDX), 'IDX')]
        rd += [(a(d + i), ('L', h, k, j - 1, i)) for i in range(4)]
        wr = [(a(d + i), ('L', h, k, j, i)) for i in range(4)]
        m = Ins('v_smfmac_f32_16x16x64_bf16 %s, %s, %s, %s' % (rng('a', d, 4), rng('a', SA, 4),
                                                            rng('v', P(0), 8), v(vIDX)),
                'mfma', rd, wr, srcc=regs('a', d, 4))
        m.meta['cls'] = 'smf'
        return m

    def build_backbone(self):
        bb = self.bb
        for p in range(-1, NS + 1):
            qk = p + 1 if p + 1 < NS else None
            pv = p - 1 if 0 <= p - 1 < NS else None
            z = p >= 2 and p % 2 == 0
            self.pstart[p] = len(bb)
            seq = []
            for i in range(8):
                if qk is not None:
                    seq.append(('q', i >> 2, i & 3))
                if pv is not None:
                    seq.append(('p', i))
            zdone = not z
            npos = 0
            for it in seq:
                if it[0] == 'q':
                    m = self.mk_qk(qk, it[1], it[2])
                    self.iQK[(qk, it[1], it[2])] = len(bb)
                else:
                    m = self.mk_pv(pv, it[1])
                    self.iPV[(pv, it[1])] = len(bb)
                self.pos[(p, npos)] = len(bb)
                npos += 1
                bb.append(m)
                if it[0] == 'p' and not zdone:
                    self.iZ[p] = len(bb)
                    bb.append(self.mk_z(p))
                    zdone = True
            self.pend_[p] = len(bb) - 1
        for J in range(1, NT):
            k = self.pstart[6 * J]
            bb[k].meta['tile_start'] = J
            bb[k].meta['reserve_scal'] = True
            bb[k - 1].meta['reserve_scal'] = True

    def reserve_wait_slots(self):
        for J in range(1, NT):
            for u in range(2):
                for st in range(4):
                    self.bb[self.iQK[(6 * J, u, st)] - 1].meta['reserve_scal'] = True
        for J in range(0, NT):
            for t in range(8):
                self.bb[self.iPV[(6 * J, t)] - 1].meta['reserve_scal'] = True

    def add(self, ins, lo=None, hi=None, deps=(), prio=0):
        ins.lo, ins.hi, ins.prio = lo, hi, prio
        ins.deps = [d if isinstance(d, tuple) else (d, 0) for d in deps if d is not None]
        self.flex.append(ins)
        return ins

    def softmax(self):
        lastcvt = {}
        for n in range(NS):
            j, b, h = (n % 192) // 6, n % 6, n // 192
            buf = n & 1
            sr = [S(buf, u) + i for u in range(2) for i in range(4)]
            firstpv = self.iPV[(n, 0)]
            normal = j != 0 and (n, 15) in self.pos
            stag = [('S', n, r >> 2, r & 3) for r in range(8)]
            pre = None
            if j == 0:
                t0, t1 = T(0), T(1)
                lo0 = self.iQK[(n, 0, 3)] + 4
                lo1 = self.iQK[(n, 1, 3)] + 4
                prevuse = self.t0_last if hasattr(self, 't0_last') else None
                c = self.add(V_('v_max3_f32 %s, %s, %s, %s' % (v(t0), v(sr[0]), v(sr[1]), v(sr[2])),
                                [(v(sr[i]), stag[i]) for i in range(3)], [(v(t0), ('m0', n))]), lo=lo0,
                             deps=[prevuse])
                c = self.add(V_('v_max_f32 %s, %s, %s' % (v(t0), v(t0), v(sr[3])),
                                [(v(t0), ('m0', n)), (v(sr[3]), stag[3])], [(v(t0), ('m1', n))]), lo=lo0, deps=[c])
                c = self.add(V_('v_max3_f32 %s, %s, %s, %s' % (v(t0), v(t0), v(sr[4]), v(sr[5])),
                                [(v(t0), ('m1', n)), (v(sr[4]), stag[4]), (v(sr[5]), stag[5])],
                                [(v(t0), ('m2', n))]), lo=lo1, deps=[c])
                c = self.add(V_('v_max3_f32 %s, %s, %s, %s' % (v(t0), v(t0), v(sr[6]), v(sr[7])),
                                [(v(t0), ('m2', n)), (v(sr[6]), stag[6]), (v(sr[7]), stag[7])],
                                [(v(t0), ('m3', n))]), lo=lo1, deps=[c])
                c = self.add(V_('v_mov_b32 %s, %s' % (v(t1), v(t0)), [(v(t0), ('m3', n))], [(v(t1), ('m3c', n))]),
                             deps=[c], lo=lo1)
                c = self.add(V_('v_permlane16_swap_b32 %s, %s' % (v(t0), v(t1)),
                                [(v(t0), ('m3', n)), (v(t1), ('m3c', n))],
                                [(v(t0), ('m4a', n)), (v(t1), ('m4b', n))], kind='perm'), deps=[(c, 1)], lo=lo1)
                c = self.add(V_('v_max_f32 %s, %s, %s' % (v(t0), v(t0), v(t1)),
                                [(v(t0), ('m4a', n)), (v(t1), ('m4b', n))], [(v(t0), ('m5', n))]), deps=[c], lo=lo1)
                c = self.add(V_('v_mov_b32 %s, %s' % (v(t1), v(t0)), [(v(t0), ('m5', n))], [(v(t1), ('m5c', n))]),
                             deps=[c], lo=lo1)
                c = self.add(V_('v_permlane32_swap_b32 %s, %s' % (v(t0), v(t1)),
                                [(v(t0), ('m5', n)), (v(t1), ('m5c', n))],
                                [(v(t0), ('m6a', n)), (v(t1), ('m6b', n))], kind='perm'), deps=[(c, 1)], lo=lo1)
                cis = []
                for i in range(4):
                    c = self.add(V_('v_min_f32 %s, -%s, -%s' % (v(CI(b) + i), v(t0), v(t1)),
                                    [(v(t0), ('m6a', n)), (v(t1), ('m6b', n))], [(v(CI(b) + i), ('CI', h, b))]),
                                 deps=[c], lo=lo1)
                    cis.append(c)
                self.t0_last = cis[-1]
                for cc in cis:
                    cc.hi = self.iQK[(n + 6, 0, 0)] - 2
                pre = []
                for r in range(8):
                    c = self.add(V_('v_add_f32 %s, %s, %s' % (v(sr[r]), v(CI(b)), v(sr[r])),
                                    [(v(CI(b)), ('CI', h, b)), (v(sr[r]), stag[r])], [(v(sr[r]), ('Ss', n, r))]),
                                 deps=[cis[0]], lo=lo1)
                    pre.append(c)
                stag = [('Ss', n, r) for r in range(8)]
            exps = []
            for r in range(8):
                e = V_('v_exp_f32 %s, %s' % (v(sr[r]), v(sr[r])), [(v(sr[r]), stag[r])],
                       [(v(sr[r]), ('E', n, r))], kind='trans')
                if normal:
                    g = self.pos[(n, 2 * r)]
                    self.add(e, lo=g, hi=g, prio=5)
                else:
                    lo = self.iQK[(n, r >> 2, 3)] + 4
                    self.add(e, lo=lo, deps=[pre[r]] if pre else [])
                exps.append(e)
            for i in range(4):
                c = V_('v_cvt_pk_bf16_f32 %s, %s, %s' % (v(P(buf) + i), v(sr[2 * i]), v(sr[2 * i + 1])),
                       [(v(sr[2 * i]), ('E', n, 2 * i)), (v(sr[2 * i + 1]), ('E', n, 2 * i + 1))],
                       [(v(P(buf) + i), ('P', n, i))])
                lo = 0
                if n >= 2:
                    lo = self.iPV[(n - 2, 7)]
                    zp = n if n % 2 == 0 else n - 1
                    zp = (n - 2) - ((n - 2) % 2) + 2
                    lo = max(lo, self.iZ[zp])
                if normal:
                    g = self.pos[(n, (8 * (i >> 1) + 7) if self.cfg.pair_cvt else 4 * i + 3)]
                    assert g >= lo
                    self.add(c, lo=g, hi=g, deps=[(exps[2 * i], 1), (exps[2 * i + 1], 1)], prio=5)
                else:
                    self.add(c, lo=lo, hi=firstpv - 2, deps=[(exps[2 * i], 1), (exps[2 * i + 1], 1)])

    def inloop(self, J):
        return any(a_ <= J < b_ for a_, b_ in (self.cfg.loopA, self.cfg.loopB))

    def dma_group(self, JJ, lo, hi, deps, which=(0, 1, 2, 3)):
        cfg = self.cfg
        prev = self.m0chain
        base = (JJ % cfg.R) * SLOT
        for i in which:
            off = (0, 32, VOFF, VOFF + 32)[i]
            m = S_('s_add_u32 m0, %s, %d' % (s(sWPART), base + off), [s(sWPART)], ['m0'])
            self.add(m, lo=lo, hi=hi, deps=list(deps) + ([(prev, 1)] if prev else []))
            srd = sK if i < 2 else sV
            dma = Ins('buffer_load_dwordx4 %s, %s, %s offen%s%s lds' % (
                v(vDMA), rng('s', srd, 4), s(sDOFF), ' offset:1024' if i & 1 else '', cfg.nt), 'dma',
                [v(vDMA), 'm0', s(sDOFF)] + regs('s', srd, 4), [])
            dma.meta['tile'] = JJ
            self.add(dma, lo=lo, hi=hi, deps=[(m, 1)] + list(deps))
            prev = dma
        self.m0chain = prev
        self.lastdma[JJ] = prev
        return prev

    def kv_stream(self):
        cfg = self.cfg
        R, D = cfg.R, cfg.D
        self.bar = {}
        self.barwait = {}
        kreads = {}
        chain = None
        for J in range(0, NT):
            p3 = 6 * J + 3
            last = J == NT - 1
            if cfg.loopA[0] - 1 <= J < cfg.loopA[1] and not cfg.no_qb:
                self.q_stage_tile(J, dma_only=J < cfg.loopA[0])
            if cfg.loopB[0] <= J < cfg.loopB[1] and not cfg.no_drain:
                self.o_drain_tile(J)
            vr = []
            for t in range(8):
                for pp in range(2):
                    d = VF(t) + 2 * pp
                    ins = Ins('ds_read_b64_tr_b16 %s, %s offset:%d' % (
                        rng('a', d, 2), v(vV), (J % R) * SLOT + 512 * pp + 32 * t),
                        'ds', [v(vV)], [(a(d + i), ('V', J, t, 2 * pp + i)) for i in range(2)])
                    lo_ = self.iPV[(6 * J - 1, t)] if J > 0 else 0
                    hi_ = self.iPV[(6 * J, t)] - cfg.LAT
                    if J > 0:
                        deps = [(self.bar[J - 1], 0)]
                    else:
                        deps = [(self.bar_v0, 0)]
                        lo_ = max(lo_, self.bar_v0.lo)
                    self.add(ins, lo=lo_, hi=max(hi_, lo_), deps=deps)
                    vr.append(ins)
            e = self.pend_[p3]
            w = Ins('s_waitcnt vmcnt(0)', 'wait')
            w.meta['tile_wait'] = J + 1 if not last else 'all'
            self.add(w, lo=e - 2, hi=e - 1)
            bar = Ins('s_barrier', 'bar')
            bar.meta['assert_lg_done'] = set(vr) | set(kreads.get(J, []))
            self.add(bar, lo=e - 1, hi=e, deps=[(w, 1)])
            self.bar[J] = bar
            self.barwait[J] = w
            if last:
                break
            kr = []
            for u in range(2):
                for st in range(4):
                    d = KF(u, st)
                    ins = Ins('ds_read_b128 %s, %s offset:%d' % (
                        rng('a', d, 4), v(vK), ((J + 1) % R) * SLOT + 512 * u + 64 * st), 'ds',
                        [v(vK)], [(a(d + i), ('K', J + 1, u, st, i)) for i in range(4)])
                    lo_ = self.iQK[(6 * J + 5, u, st)]
                    hi_ = self.iQK[(6 * J + 6, u, st)] - cfg.LAT
                    self.add(ins, lo=lo_, hi=max(hi_, lo_), deps=[(bar, 0)])
                    kr.append(ins)
            kreads[J + 1] = kr
            JJ = J + D
            if JJ < NT and not (cfg.no_dma and self.inloop(J)):
                lo_ = self.pstart[6 * J + 5] - 2
                hi_ = self.pend_[6 * J + 5] - 1
                if cfg.dma_early:
                    lo_ = self.pend_[6 * J + 3]
                    hi_ = self.pstart[6 * J + 5] + 2
                if J == 0:
                    inc = self.doff_final
                else:
                    inc = self.add(S_('s_add_u32 %s, %s, 8192' % (s(sDOFF), s(sDOFF)), [s(sDOFF)], [s(sDOFF)]),
                                   lo=self.pstart[6 * J + 2] + 1, hi=self.pend_[6 * J + 3] - 3, deps=[(chain, 1)])
                chain = self.dma_group(JJ, lo_, hi_, [(bar, 1), (inc, 1)])

    def q_stage_tile(self, J, dma_only=False):
        cfg = self.cfg
        lo, hi = self.pstart[6 * J + 1] + 2, self.pend_[6 * J + 3] - 3
        prev = self.qs_chain

        def sc(ins, h=hi):
            nonlocal prev
            prev = self.add(ins, lo=lo, hi=h, deps=[(prev, 1)] if prev else [])
            return prev
        sc(S_('s_add_u32 %s, %s, 1' % (s(sQI), s(sQI)), [s(sQI)], [s(sQI)]))
        sc(S_('s_add_u32 %s, %s, %d' % (s(sQREL), s(sQREL), CH), [s(sQREL)], [s(sQREL)]))
        sc(S_('s_add_u32 %s, %s, 1024' % (s(sQSO), s(sQSO)), [s(sQSO)], [s(sQSO)]))
        sc(S_('s_sub_u32 %s, %s, 24' % (s(sQM), s(sQI)), [s(sQI)], [s(sQM)]))
        sc(S_('s_ashr_i32 %s, %s, 31' % (s(sQM), s(sQM)), [s(sQM)], [s(sQM)]))
        sc(S_('s_and_b32 %s, %s, %s' % (s(sQT), s(sQREL), s(sQM)), [s(sQREL), s(sQM)], [s(sQT)]))
        sc(S_('s_andn2_b32 %s, 0x40000000, %s' % (s(sQT2), s(sQM)), [s(sQM)], [s(sQT2)]))
        so = sc(S_('s_or_b32 %s, %s, %s' % (s(sQT2), s(sQT2), s(sQSO)), [s(sQT2), s(sQSO)], [s(sQT2)]))
        wlo, whi = self.pstart[6 * J + 5] - 3, self.pstart[6 * J + 5] + 3
        if cfg.dma_early:
            wlo, whi = self.pend_[6 * J + 3] - 4, self.pend_[6 * J + 3] + 2
        m = S_('s_add_u32 m0, %s, %d' % (s(sQT), DUMMY), [s(sQT)], ['m0'])
        self.add(m, lo=wlo, hi=whi, deps=[(so, 1)] + ([(self.m0chain, 1)] if self.m0chain else []))
        dma = Ins('buffer_load_dwordx4 %s, %s, %s offen%s lds' % (v(vDMA), rng('s', sQ, 4), s(sQT2), cfg.nt), 'dma',
                  [v(vDMA), 'm0', s(sQT2)] + regs('s', sQ, 4), [])
        self.add(dma, lo=wlo, hi=whi, deps=[(m, 1)])
        self.m0chain = dma
        self.qs_chain = dma
        if dma_only:
            return
        t0, tb, ad = T(0), T(4), T(5)
        key = ('qc', J)
        lo = self.pstart[6 * J + 1] + 8
        hi = self.pend_[6 * J + 3] - 3
        rd = Ins('ds_read_b128 %s, %s' % (rng('v', t0, 4), v(ad)), 'ds', [v(ad)],
                 [(v(t0 + i), (key, 'raw', i)) for i in range(4)])
        self.add(rd, lo=lo, hi=self.pstart[6 * J + 2] - 2, deps=[(self.qc_chain, 1)] if self.qc_chain else [])
        c = None
        lo2 = self.pstart[6 * J + 2] + 1
        for i in range(4):
            r = t0 + i
            c = self.add(V_('v_lshlrev_b32 %s, 16, %s' % (v(tb), v(r)), [(v(r), (key, 'raw', i))], [(v(tb), (key, 'b', i))]),
                         lo=lo2, deps=[(rd, cfg.qrd_lat), c] if c else [(rd, cfg.qrd_lat)])
            c = self.add(V_('v_and_b32 %s, %s, %s' % (v(r), s(sMASK), v(r)), [(v(r), (key, 'raw', i)), s(sMASK)],
                            [(v(r), (key, 'c', i))]), lo=lo2, deps=[c])
            c = self.add(V_('v_mul_f32 %s, %s, %s' % (v(tb), s(sC), v(tb)), [(v(tb), (key, 'b', i)), s(sC)],
                            [(v(tb), (key, 'd', i))]), lo=lo2, deps=[c])
            c = self.add(V_('v_mul_f32 %s, %s, %s' % (v(r), s(sC), v(r)), [(v(r), (key, 'c', i)), s(sC)],
                            [(v(r), (key, 'e', i))]), lo=lo2, deps=[c])
            c = self.add(V_('v_cvt_pk_bf16_f32 %s, %s, %s' % (v(r), v(tb), v(r)),
                            [(v(r), (key, 'e', i)), (v(tb), (key, 'd', i))], [(v(r), (key, 'f', i))]), lo=lo2, deps=[c])
        wr = Ins('ds_write_b128 %s, %s' % (v(ad), rng('v', t0, 4)), 'dsw',
                 [v(ad)] + [(v(t0 + i), (key, 'f', i)) for i in range(4)], [])
        self.add(wr, lo=lo2, hi=hi + 20, deps=[(c, 1)])
        up = self.add(V_('v_add_u32 %s, %d, %s' % (v(ad), CH, v(ad)), [v(ad)], [v(ad)]), lo=lo2, hi=hi + 24,
                      deps=[(wr, 0)])
        self.qc_chain = up
        self.qc_lastwrite = wr

    def o_drain_tile(self, J):
        cfg = self.cfg
        ph = (J - cfg.loopB[0]) % cfg.U
        if ph == 0:
            lo, hi = self.pstart[6 * J] + 2, self.pend_[6 * J + 1]
            prev = self.od_chain

            def sc(ins):
                nonlocal prev
                prev = self.add(ins, lo=lo, hi=hi, deps=[(prev, 1)] if prev else [])
                return prev
            sc(S_('s_lshr_b32 %s, %s, 1' % (s(sOT), s(sOI)), [s(sOI)], [s(sOT)]))
            sc(S_('s_lshl_b32 %s, %s, 13' % (s(sOT), s(sOT)), [s(sOT)], [s(sOT)]))
            sc(S_('s_and_b32 %s, %s, 1' % (s(sOT2), s(sOI)), [s(sOI)], [s(sOT2)]))
            sc(S_('s_lshl_b32 %s, %s, 9' % (s(sOT2), s(sOT2)), [s(sOT2)], [s(sOT2)]))
            sc(S_('s_add_u32 %s, %s, %s' % (s(sOSO), s(sOT), s(sOT2)), [s(sOT), s(sOT2)], [s(sOSO)]))
            sc(S_('s_sub_u32 %s, %s, 6' % (s(sOT), s(sOI)), [s(sOI)], [s(sOT)]))
            sc(S_('s_ashr_i32 %s, %s, 31' % (s(sOT), s(sOT)), [s(sOT)], [s(sOT)]))
            sc(S_('s_andn2_b32 %s, 0x40000000, %s' % (s(sOT2), s(sOT)), [s(sOT)], [s(sOT2)]))
            sc(S_('s_or_b32 %s, %s, %s' % (s(sOSO), s(sOSO), s(sOT2)), [s(sOSO), s(sOT2)], [s(sOSO)]))
            sc(S_('s_and_b32 %s, %d, %s' % (s(sOINC), 2 * CH, s(sOT)), [s(sOT)], [s(sOINC)]))
            sc(S_('s_add_u32 %s, %s, 1' % (s(sOI), s(sOI)), [s(sOI)], [s(sOI)]))
            self.od_scal = prev
            self.od_chain = prev
        if ph > 1:
            return
        ad = T(8)
        key = ('od', J)
        lo = self.pstart[6 * J + 2] + 1
        rds = []
        for q in range(2):
            t0 = T(4 * q)
            rd = Ins('ds_read_b128 %s, %s offset:%d' % (rng('v', t0, 4), v(ad), CH * q), 'ds', [v(ad)],
                     [(v(t0 + i), (key, q, i)) for i in range(4)])
            self.add(rd, lo=lo, hi=lo + 6, deps=[(self.od_st, 1)] if self.od_st else [])
            rds.append(rd)
        up = self.add(V_('v_add_u32 %s, %s, %s' % (v(ad), s(sOINC), v(ad)), [v(ad), s(sOINC)], [v(ad)]),
                      lo=lo, hi=self.pend_[6 * J + 3], deps=[(rds[0], 0), (rds[1], 0), (self.od_scal, 1)])
        for q in range(2):
            t0 = T(4 * q)
            st = Ins('buffer_store_dwordx4 %s, %s, %s, %s offen offset:%d%s' % (
                rng('v', t0, 4), v(vO), rng('s', sO, 4), s(sOSO), 128 * ph + 64 * q, cfg.st_mod), 'vstore',
                [(v(t0 + i), (key, q, i)) for i in range(4)] + [v(vO), s(sOSO)] + regs('s', sO, 4), [])
            self.add(st, lo=lo + 10, hi=self.pend_[6 * J + 3] - 3, deps=[(rds[q], cfg.qrd_lat + 1), (self.od_scal, 1)])
            self.od_st = st
        self.od_chain = self.od_st if ph == 1 else self.od_chain

    def epilogue(self, h):
        cfg = self.cfg
        self.st_last = None
        prevchain = getattr(self, 'sq_chain', None)
        lread = {}
        for b in range(6):
            n = 192 * h + 186 + b
            k, e = b >> 1, b & 1
            zi = self.iZ[192 * h + 188 + 2 * k]
            x = T(2 + (b & 1))
            y = T(4)
            nxt = n + 6 if h == 0 else None
            jl = 31
            prevx = getattr(self, 'xlast', {}).get(b & 1)
            r0 = self.add(V_('v_accvgpr_read_b32 %s, %s' % (v(x), a(L(k) + 2 * e)),
                             [(a(L(k) + 2 * e), ('L', h, k, jl, 2 * e))], [(v(x), ('l0', h, b))]),
                          lo=zi + 5, deps=[prevx])
            r1 = self.add(V_('v_accvgpr_read_b32 %s, %s' % (v(y), a(L(k) + 2 * e + 1)),
                             [(a(L(k) + 2 * e + 1), ('L', h, k, jl, 2 * e + 1))], [(v(y), ('l1', h, b))]),
                          lo=zi + 5, deps=[getattr(self, 'ylast', None)])
            lread[b] = (r0, r1)
            ad = self.add(V_('v_add_f32 %s, %s, %s' % (v(x), v(x), v(y)),
                             [(v(x), ('l0', h, b)), (v(y), ('l1', h, b))], [(v(x), ('l', h, b))]), deps=[r0, r1],
                          lo=zi + 5)
            self.ylast = ad
            cmp_ = self.add(V_('v_cmp_nge_f32 vcc, %s, %s' % (s(sTHR), v(x)), [s(sTHR), (v(x), ('l', h, b))],
                               [('vcc', ('chk', h, b))]), deps=[ad, getattr(self, 'vcc_last', None)], lo=zi + 5)
            fl = self.add(S_('s_or_b64 %s, %s, vcc' % (rng('s', sFLAG[h], 2), rng('s', sFLAG[h], 2)),
                             [('vcc', ('chk', h, b))] + regs('s', sFLAG[h], 2), regs('s', sFLAG[h], 2)),
                          deps=[(cmp_, 1)], lo=zi + 5)
            self.vcc_last = (fl, 1)
            rc = self.add(V_('v_rcp_f32 %s, %s' % (v(x), v(x)), [(v(x), ('l', h, b))], [(v(x), ('r', h, b))],
                             kind='trans'), deps=[cmp_], lo=zi + 5)
            fl.hi = None
            so = None
            if h == 1:
                so = self.add(Ins('s_mov_b32 %s, %d' % (s(sOOFF), h * 98304 + qoff(b)), 'salu', [], [s(sOOFF)]),
                              deps=[(self.st_last, 1)] if self.st_last is not None and b > 0 else [], lo=zi)
            last_in_block = None
            for tau in range(4):
                t0, t1 = 2 * tau, 2 * tau + 1
                muls = {}
                lo = self.iPV[(n, t1)] + 5
                for t in (t0, t1):
                    for i in range(4):
                        r = O(b, t) + i
                        muls[(t, i)] = self.add(V_('v_mul_f32 %s, %s, %s' % (v(r), v(x), v(r)),
                                                   [(v(x), ('r', h, b)), (v(r), ('O', h, b, t, jl, i))],
                                                   [(v(r), ('On', h, b, t, i))]), lo=lo, deps=[(rc, 1)])
                base = O(b, t0)
                cv = []
                src = [(t0, 0), (t0, 2), (t1, 0), (t1, 2)]
                for q, (t, i) in enumerate(src):
                    d = base + q
                    deps = [muls[(t, i)], muls[(t, i + 1)]]
                    if q == 1:
                        deps.append(cv[0])
                    if q == 2:
                        deps += [cv[1]]
                    if q == 3:
                        deps += [cv[1], cv[2]]
                    c = self.add(V_('v_cvt_pk_bf16_f32 %s, %s, %s' % (v(d), v(O(b, t) + i), v(O(b, t) + i + 1)),
                                    [(v(O(b, t) + i), ('On', h, b, t, i)), (v(O(b, t) + i + 1), ('On', h, b, t, i + 1))],
                                    [(v(d), ('Oc', h, b, tau, q))]), lo=lo, deps=deps)
                    cv.append(c)
                s0 = self.add(V_('v_permlane16_swap_b32 %s, %s' % (v(base), v(base + 2)),
                                 [(v(base), ('Oc', h, b, tau, 0)), (v(base + 2), ('Oc', h, b, tau, 2))],
                                 [(v(base), ('Os', h, b, tau, 0)), (v(base + 2), ('Os', h, b, tau, 2))], kind='perm'),
                              deps=[(cv[0], 1), (cv[2], 1)], lo=lo)
                s1 = self.add(V_('v_permlane16_swap_b32 %s, %s' % (v(base + 1), v(base + 3)),
                                 [(v(base + 1), ('Oc', h, b, tau, 1)), (v(base + 3), ('Oc', h, b, tau, 3))],
                                 [(v(base + 1), ('Os', h, b, tau, 1)), (v(base + 3), ('Os', h, b, tau, 3))],
                                 kind='perm'), deps=[(cv[1], 1), (cv[3], 1)], lo=lo)
                hi = None
                if h == 0:
                    st = Ins('ds_write_b128 %s, %s offset:%d' % (v(T(8)), rng('v', base, 4), CH * (4 * b + tau)), 'dsw',
                             [(v(base + q), ('Os', h, b, tau, q)) for q in range(4)] + [(v(T(8)), 'ostage')], [])
                    st.meta['cost'] = 8
                    hi = self.iPV[(nxt, t0)] - 2
                    deps = [(s0, 1), (s1, 1), (self.ostage_addr, 1)]
                    deps += [(x, 0) for x in self.qb_reads[2 * (b >> 1)] + self.qb_reads[2 * (b >> 1) + 1]]
                    self.add(st, lo=lo, hi=hi, deps=deps)
                else:
                    st = Ins('buffer_store_dwordx4 %s, %s, %s, %s offen offset:%d%s' % (
                        rng('v', base, 4), v(vO), rng('s', sO, 4), s(sOOFF), 64 * tau, cfg.st_mod2), 'vstore',
                        [(v(base + q), ('Os', h, b, tau, q)) for q in range(4)] + [v(vO), s(sOOFF)] + regs('s', sO, 4), [])
                    self.add(st, lo=lo, hi=hi, deps=[(s0, 1), (s1, 1), (so, 1)])
                if nxt is not None:
                    for q in (2, 3):
                        cv[q].hi = min(self.iPV[(nxt, t1)] - 2, cv[q].hi if cv[q].hi is not None else 10 ** 9)
                self.st_last = st
                last_in_block = muls[(t1, 3)]
            self.xlast = getattr(self, 'xlast', {})
            self.xlast[b & 1] = last_in_block
        if h == 0:
            for k in range(3):
                zi_next = self.iZ[192 + 2 + 2 * k]
                for i in range(4):
                    bb_ = 2 * k + (i >> 1)
                    self.add(V_('v_accvgpr_write_b32 %s, 0' % a(L(k) + i), [],
                                [(a(L(k) + i), ('L', 1, k, -1, i))]),
                             deps=[lread[bb_][i & 1]], hi=zi_next - 2, lo=0)

    def qb(self):
        cfg = self.cfg
        lo = self.pstart[6 * cfg.loopA[1]] + 2
        ad = self.add(V_('v_add_u32 %s, %s, %s' % (v(T(5)), s(sSTG), v(vK)), [s(sSTG), v(vK)], [(v(T(5)), 'qsaddr')]),
                      lo=lo, hi=self.pstart[184], deps=[(self.qc_chain, 1)] if self.qc_chain else [])
        self.qb_reads = {}
        for b in range(6):
            nlast, nfirst = 186 + b, 192 + b
            lst = []
            for st in range(4):
                d = Q(b, st)
                ins = Ins('ds_read_b128 %s, %s offset:%d' % (
                    rng('a', d, 4), v(T(5)), (b >> 1) * 8 * CH + 512 * (b & 1) + 64 * st), 'ds',
                    [(v(T(5)), 'qsaddr')], [(a(d + i), ('Q', 1, b, st, i)) for i in range(4)])
                lo_ = max(self.iQK[(nlast, 0, st)], self.iQK[(nlast, 1, st)])
                self.add(ins, lo=lo_, hi=self.iQK[(nfirst, 0, st)] - cfg.LAT, deps=[(ad, 1)])
                lst.append(ins)
            self.qb_reads[b] = lst
        self.ostage_addr = self.add(V_('v_add_u32 %s, %s, %s' % (v(T(8)), s(43), v(vDMA)), [s(43), v(vDMA)],
                                       [(v(T(8)), 'ostage')]), lo=lo, hi=self.pstart[184])

    RAW = 96

    def q_load(self, b, add):
        cfg = self.cfg
        out = []
        so = add(Ins('s_mov_b32 %s, %d' % (s(sQOFF), qoff(b)), 'salu', [], [s(sQOFF)]), None)
        for st in range(4):
            d = self.RAW + 16 * b + 4 * st
            out.append(add(Ins('buffer_load_dwordx4 %s, %s, %s, %s offen offset:%d%s' % (
                rng('v', d, 4), v(vQ), rng('s', sQ, 4), s(sQOFF), 64 * st, cfg.nt), 'vload',
                [v(vQ), s(sQOFF)] + regs('s', sQ, 4), [(v(d + i), ('QA', b, st, i)) for i in range(4)]), so))
        return out

    def prologue(self):
        cfg = self.cfg
        R = cfg.R
        o = []

        def e(text, kind='valu', rd=(), wr=()):
            i = Ins(text, kind, rd, wr)
            o.append(i)
            return i

        def srd_setup(srd, ptr, per):
            e('s_mul_i32 s3, s2, %d' % per, 'salu')
            e('s_add_u32 %s, %s, s3' % (s(srd), s(ptr)), 'salu')
            e('s_addc_u32 %s, %s, 0' % (s(srd + 1), s(ptr + 1)), 'salu')
            e('s_and_b32 %s, %s, 0xffff' % (s(srd + 1), s(srd + 1)), 'salu')
            e('s_mov_b32 %s, %d' % (s(srd + 2), per), 'salu')
            e('s_mov_b32 %s, 0x20000' % s(srd + 3), 'salu')

        def dma(J, which):
            last = None
            for i in which:
                off = (0, 32, VOFF, VOFF + 32)[i]
                e('s_add_u32 m0, %s, %d' % (s(sWPART), (J % R) * SLOT + off), 'salu', wr=['m0'])
                srd = sK if i < 2 else sV
                e('s_nop 0', 'nop')
                last = e('buffer_load_dwordx4 %s, %s, %s offen%s%s lds' % (
                    v(vDMA), rng('s', srd, 4), s(sDOFF), ' offset:1024' if i & 1 else '', cfg.nt), 'dma', rd=['m0'])
                last.meta['tile'] = J
            return last

        def addq(ins, dep):
            o.append(ins)
            return ins
        e('s_cmp_ge_u32 s2, 256', 'salu')
        e('s_cbranch_scc1 L_done', 'branch')
        e('s_load_dwordx4 s[44:47], s[0:1], 0', 'salu')
        e('s_load_dwordx4 s[48:51], s[0:1], 16', 'salu')
        t = [T(i) for i in range(10)]
        e('v_lshrrev_b32 %s, 6, v0' % v(t[0]), wr=[v(t[0])])
        e('v_and_b32 %s, 63, v0' % v(t[1]), wr=[v(t[1])])
        e('v_readfirstlane_b32 %s, %s' % (s(sW), v(t[0])), rd=[v(t[0])], wr=[s(sW)])
        e('v_and_b32 %s, 15, %s' % (v(t[2]), v(t[1])))
        e('v_lshrrev_b32 %s, 4, %s' % (v(t[3]), v(t[1])))
        e('v_lshlrev_b32 %s, 4, %s' % (v(vDMA), v(t[1])))
        e('v_lshl_add_u32 %s, %s, 11, %s' % (v(vDMA), v(t[0]), v(vDMA)), wr=[v(vDMA)])
        e('v_mul_u32_u24 %s, %d, %s' % (v(t[4]), 24576, v(t[0])))
        e('v_and_b32 %s, 7, %s' % (v(t[5]), v(t[2])))
        e('v_lshl_add_u32 %s, %s, 10, %s' % (v(t[4]), v(t[5]), v(t[4])))
        e('v_lshrrev_b32 %s, 3, %s' % (v(t[5]), v(t[2])))
        e('v_lshl_add_u32 %s, %s, 8, %s' % (v(t[4]), v(t[5]), v(t[4])))
        e('v_lshl_add_u32 %s, %s, 4, %s' % (v(vQ), v(t[3]), v(t[4])), wr=[v(vQ)])
        e('s_mul_i32 %s, %s, %d' % (s(sWPART), s(sW), 2 * CH), 'salu', rd=[s(sW)], wr=[s(sWPART)])
        e('s_mov_b32 %s, 0' % s(sDOFF), 'salu')
        e('s_waitcnt lgkmcnt(0)', 'wait')
        srd_setup(sK, 46, 524288)
        srd_setup(sQ, 44, 196608)
        k0 = dma(0, (0, 1))
        q0 = self.q_load(0, addq)
        q1 = self.q_load(1, addq)
        srd_setup(sV, 48, 524288)
        v0 = dma(0, (2, 3))
        self.lastdma[0] = v0
        srd_setup(sO, 50, 196608)
        e('v_and_b32 %s, 1, %s' % (v(t[5]), v(t[3])))
        e('v_lshl_add_u32 %s, %s, 5, %s' % (v(t[4]), v(t[5]), v(t[4])))
        e('v_lshrrev_b32 %s, 1, %s' % (v(t[5]), v(t[3])))
        e('v_lshl_add_u32 %s, %s, 4, %s' % (v(vO), v(t[5]), v(t[4])), wr=[v(vO)])
        e('v_and_b32 %s, 7, %s' % (v(t[4]), v(t[2])))
        e('v_mul_u32_u24 %s, %d, %s' % (v(vK), CH, v(t[4])))
        e('v_lshrrev_b32 %s, 3, %s' % (v(t[4]), v(t[2])))
        e('v_lshl_add_u32 %s, %s, 8, %s' % (v(vK), v(t[4]), v(vK)))
        e('v_lshl_add_u32 %s, %s, 4, %s' % (v(vK), v(t[3]), v(vK)), wr=[v(vK)])
        e('v_bfe_u32 %s, %s, 2, 3' % (v(t[4]), v(t[1])))
        e('v_mul_u32_u24 %s, %d, %s' % (v(vV), CH, v(t[4])))
        e('v_lshrrev_b32 %s, 5, %s' % (v(t[4]), v(t[1])))
        e('v_lshl_add_u32 %s, %s, 8, %s' % (v(vV), v(t[4]), v(vV)))
        e('v_and_b32 %s, 3, %s' % (v(t[4]), v(t[1])))
        e('v_lshl_add_u32 %s, %s, 3, %s' % (v(vV), v(t[4]), v(vV)))
        e('v_add_u32 %s, %d, %s' % (v(vV), VOFF, v(vV)), wr=[v(vV)])
        e('s_mov_b32 %s, 0x%08x' % (s(sC), f32bits(C_SCALE)), 'salu')
        e('s_mov_b32 %s, 0x%08x' % (s(sC + 1), f32bits(C_SCALE)), 'salu')
        e('s_mov_b32 %s, 0x%08x' % (s(sTHR), cfg.thr), 'salu')
        e('s_mov_b32 %s, 0xffff0000' % s(sMASK), 'salu')
        e('s_mov_b64 %s, 0' % rng('s', sFLAG[0], 2), 'salu')
        e('s_mov_b64 %s, 0' % rng('s', sFLAG[1], 2), 'salu')
        e('s_mul_i32 %s, %s, %d' % (s(sSTG), s(sW), STAGEW), 'salu')
        e('s_add_u32 %s, %s, %d' % (s(sQREL), s(sSTG), STAGE0 - DUMMY), 'salu')
        e('s_add_u32 %s, %s, %d' % (s(sSTG), s(sSTG), STAGE0), 'salu')
        e('s_lshl_b32 s3, %s, 11' % s(sW), 'salu')
        e('s_sub_u32 s43, %s, s3' % s(sSTG), 'salu')
        e('s_sub_u32 s63, s43, %d' % (3 * CH), 'salu')
        e('s_mov_b32 %s, -2' % s(sQI), 'salu')
        e('s_sub_u32 %s, %s, %d' % (s(sQREL), s(sQREL), 2 * CH), 'salu')
        e('s_mul_i32 %s, %s, %d' % (s(sQSO), s(sW), 24576 - 2048), 'salu')
        e('s_add_u32 %s, %s, %d' % (s(sQSO), s(sQSO), 98304 - 2048), 'salu')
        e('s_mov_b32 %s, 0' % s(sOI), 'salu')
        e('v_and_b32 %s, 1, %s' % (v(t[4]), v(t[2])))
        e('v_mov_b32 %s, 0x4444' % v(t[5]))
        e('v_mov_b32 %s, 0xeeee' % v(t[6]))
        e('v_cmp_eq_u32 vcc, 0, %s' % v(t[4]), wr=['vcc'])
        e('v_cndmask_b32 %s, %s, %s, vcc' % (v(vIDX), v(t[6]), v(t[5])), rd=['vcc'], wr=[(v(vIDX), 'IDX')])
        e('v_bfe_u32 %s, %s, 1, 1' % (v(t[4]), v(t[2])))
        e('v_lshrrev_b32 %s, 1, %s' % (v(t[5]), v(t[3])))
        e('v_cmp_eq_u32 vcc, %s, %s' % (v(t[4]), v(t[5])), wr=['vcc'])
        e('v_mov_b32 %s, 0x3f803f80' % v(t[6]))
        e('v_cndmask_b32 %s, 0, %s, vcc' % (v(t[4]), v(t[6])), rd=['vcc'], wr=[v(t[4])])
        for i in range(4):
            e('v_accvgpr_write_b32 %s, %s' % (a(SA + i), v(t[4])), rd=[v(t[4])], wr=[(a(SA + i), 'SA')])
        for k in range(3):
            for i in range(4):
                e('v_accvgpr_write_b32 %s, 0' % a(L(k) + i), wr=[(a(L(k) + i), ('L', 0, k, -1, i))])
        w = e('s_waitcnt vmcnt(0)', 'wait')
        w.meta['vm_for'] = q0[-1]
        w.meta['stamp'] = True
        self.q_load(2, addq)
        b = 0
        for st in range(4):
            d = self.RAW + 16 * b + 4 * st
            tb = 8 * (st & 1)
            for i in range(4):
                e('v_lshlrev_b32 %s, 16, %s' % (v(tb + 2 * i), v(d + i)), rd=[(v(d + i), ('QA', b, st, i))],
                  wr=[v(tb + 2 * i)])
                e('v_and_b32 %s, %s, %s' % (v(tb + 2 * i + 1), s(sMASK), v(d + i)), rd=[v(d + i)],
                  wr=[v(tb + 2 * i + 1)])
            for i in range(4):
                e('v_pk_mul_f32 %s, %s, %s' % (rng('v', tb + 2 * i, 2), rng('v', tb + 2 * i, 2), rng('s', sC, 2)),
                  rd=regs('v', tb + 2 * i, 2), wr=regs('v', tb + 2 * i, 2))
            for i in range(4):
                e('v_cvt_pk_bf16_f32 %s, %s, %s' % (v(d + i), v(tb + 2 * i), v(tb + 2 * i + 1)),
                  rd=regs('v', tb + 2 * i, 2), wr=[v(d + i)])
            for i in range(4):
                e('v_accvgpr_write_b32 %s, %s' % (a(Q(b, st) + i), v(d + i)), rd=[v(d + i)],
                  wr=[(a(Q(b, st) + i), ('Q', 0, b, st, i))])
        e('s_barrier', 'bar')
        for u in range(2):
            for st in range(4):
                d = KF(u, st)
                e('ds_read_b128 %s, %s offset:%d' % (rng('a', d, 4), v(vK), 512 * u + 64 * st), 'ds',
                  rd=[v(vK)], wr=[(a(d + i), ('K', 0, u, st, i)) for i in range(4)])
        return o

    def early(self):
        cfg = self.cfg
        R, D = cfg.R, cfg.D
        firstop = {}
        chain = None
        qprev = None
        tiles = list(range(1, D))
        plan = {1: tiles[0:1], 2: [], 3: tiles[1:2], 4: tiles[2:3], 5: tiles[3:]}
        if D == 3:
            plan = {1: tiles[0:1], 2: [], 3: [], 4: tiles[1:2], 5: []}
        doff = None
        self.m0chain = None
        for b in range(1, 6):
            first = None
            for st in range(4):
                dl = self.iQK[(b, 0, st)] - 2
                for i in range(4):
                    r = self.RAW + 16 * b + 4 * st + i
                    tb = T(5 + (i & 1))
                    key = (b, st, i)
                    c = self.add(V_('v_lshlrev_b32 %s, 16, %s' % (v(tb), v(r)), [(v(r), ('QA', b, st, i))],
                                    [(v(tb), ('qb', key))]), lo=0, deps=[chain])
                    if first is None:
                        first = c
                    c = self.add(V_('v_and_b32 %s, %s, %s' % (v(r), s(sMASK), v(r)), [(v(r), ('QA', b, st, i)), s(sMASK)],
                                    [(v(r), ('qc', key))]), lo=0, deps=[c])
                    c = self.add(V_('v_mul_f32 %s, %s, %s' % (v(tb), s(sC), v(tb)), [(v(tb), ('qb', key)), s(sC)],
                                    [(v(tb), ('qd', key))]), lo=0, deps=[c])
                    c = self.add(V_('v_mul_f32 %s, %s, %s' % (v(r), s(sC), v(r)), [(v(r), ('qc', key)), s(sC)],
                                    [(v(r), ('qe', key))]), lo=0, deps=[c])
                    c = self.add(V_('v_cvt_pk_bf16_f32 %s, %s, %s' % (v(r), v(tb), v(r)),
                                    [(v(r), ('qe', key)), (v(tb), ('qd', key))], [(v(r), ('qf', key))]), lo=0, deps=[c])
                    c = self.add(V_('v_accvgpr_write_b32 %s, %s' % (a(Q(b, st) + i), v(r)), [(v(r), ('qf', key))],
                                    [(a(Q(b, st) + i), ('Q', 0, b, st, i))]), lo=0, hi=dl, deps=[c])
                    chain = c
            firstop[b] = first
            mark = len(self.flex)
            if b + 2 <= 5:
                def addq(ins, dep, first=first):
                    nonlocal qprev
                    deps = [(first, 1)]
                    if dep is not None:
                        deps.append((dep, 1))
                    elif qprev is not None:
                        deps.append((qprev, 1))
                    self.add(ins, lo=0, hi=None, deps=deps, prio=3)
                    ins.hi = None
                    return ins
                ql = self.q_load(b + 2, addq)
                qprev = ql[-1]
            for J in plan[b]:
                doff = self.add(Ins('s_mov_b32 %s, %d' % (s(sDOFF), J * 8192), 'salu', [], [s(sDOFF)]), lo=0,
                                deps=[(first, 1)] + ([(self.m0chain, 1)] if self.m0chain else []))
                self.dma_group(J, 0, None, [(doff, 1)])
            for x in self.flex[mark:]:
                x.meta['asap'] = True
        self.qoff_last = qprev
        self.qc_chain = self.add(V_('v_add_u32 %s, s63, %s' % (v(T(5)), v(vDMA)), [v(vDMA)], [v(T(5))]), lo=0,
                                 hi=self.pstart[6 * cfg.loopA[0]] - 4, deps=[chain])
        self.doff_final = self.add(Ins('s_mov_b32 %s, %d' % (s(sDOFF), D * 8192), 'salu', [], [s(sDOFF)]), lo=0,
                                   hi=self.pstart[5] - 4, deps=[(self.m0chain, 1)])
        k = self.pstart[0] + 1
        w = Ins('s_waitcnt vmcnt(0)', 'wait')
        w.meta['vm_for_tile0'] = True
        self.add(w, lo=k, hi=k)
        self.bar_v0 = Ins('s_barrier', 'bar')
        self.add(self.bar_v0, lo=k + 1, hi=k + 1, deps=[(w, 1)])
        self.v0wait = w

    def slowpath(self):
        o = []
        e = o.append
        e('L_slow:')
        e('s_waitcnt vmcnt(0) lgkmcnt(0)')
        e('s_mul_i32 s52, %s, %d' % (s(sW), SLOT))
        e('v_and_b32 v1, 63, %s' % v(vDMA))
        e('v_lshrrev_b32 v162, 4, %s' % v(vDMA))
        e('v_and_b32 v162, 63, v162')
        e('v_and_b32 v2, 15, v162')
        e('v_lshrrev_b32 v3, 4, v162')
        e('v_and_b32 v4, 7, v2')
        e('v_mul_u32_u24 v160, %d, v4' % CH)
        e('v_lshrrev_b32 v4, 3, v2')
        e('v_lshl_add_u32 v160, v4, 8, v160')
        e('v_lshl_add_u32 v160, v3, 4, v160')
        e('v_add_u32 v160, s52, v160')
        e('v_bfe_u32 v4, v162, 2, 3')
        e('v_mul_u32_u24 v161, %d, v4' % CH)
        e('v_lshrrev_b32 v4, 5, v162')
        e('v_lshl_add_u32 v161, v4, 8, v161')
        e('v_and_b32 v4, 3, v162')
        e('v_lshl_add_u32 v161, v4, 3, v161')
        e('v_add_u32 v161, %d, v161' % VOFF)
        e('v_add_u32 v161, s52, v161')
        e('v_lshlrev_b32 v162, 4, v162')
        e('s_mov_b32 s53, 0')
        e('L_slow_head:')
        e('s_cmp_eq_u32 s53, 0')
        e('s_cselect_b64 s[54:55], %s, %s' % (rng('s', sFLAG[0], 2), rng('s', sFLAG[1], 2)))
        e('s_cmp_eq_u64 s[54:55], 0')
        e('s_cbranch_scc1 L_slow_next')
        e('s_mov_b32 s56, 0')
        e('L_slow_blk:')
        e('s_mul_i32 s57, s53, 98304')
        e('s_lshr_b32 s58, s56, 1')
        e('s_lshl_b32 s58, s58, 13')
        e('s_add_u32 s57, s57, s58')
        e('s_and_b32 s58, s56, 1')
        e('s_lshl_b32 s58, s58, 9')
        e('s_add_u32 s57, s57, s58')
        for st in range(4):
            e('buffer_load_dwordx4 v[%d:%d], %s, %s, s57 offen offset:%d' % (
                4 * st, 4 * st + 3, v(vQ), rng('s', sQ, 4), 64 * st))
        e('s_waitcnt vmcnt(0)')
        for i in range(16):
            e('v_lshlrev_b32 v42, 16, v%d' % i)
            e('v_and_b32 v43, %s, v%d' % (s(sMASK), i))
            e('v_mul_f32 v42, %s, v42' % s(sC))
            e('v_mul_f32 v43, %s, v43' % s(sC))
            e('v_cvt_pk_bf16_f32 v%d, v42, v43' % (16 + i))
        e('v_mov_b32 v32, 0xff800000')
        e('v_mov_b32 v33, 0')
        for i in range(32):
            e('v_mov_b32 v%d, 0' % (64 + i))
        e('s_mul_i32 s59, s53, 262144')
        e('s_mov_b32 s60, 0')
        e('L_slow_tile:')
        for c in range(8):
            for which, srd in ((0, sK), (VOFF, sV)):
                e('s_add_u32 m0, s52, %d' % (which + c * CH))
                e('s_add_u32 s61, s59, %d' % (c * 1024))
                e('buffer_load_dwordx4 v162, %s, s61 offen lds' % rng('s', srd, 4))
        e('s_waitcnt vmcnt(0)')
        for u in range(2):
            for st in range(4):
                d = 96 + 16 * u + 4 * st
                e('ds_read_b128 v[%d:%d], v160 offset:%d' % (d, d + 3, 512 * u + 64 * st))
        e('s_waitcnt lgkmcnt(0)')
        for t in range(8):
            for pp in range(2):
                d = 128 + 4 * t + 2 * pp
                e('ds_read_b64_tr_b16 v[%d:%d], v161 offset:%d' % (d, d + 1, 512 * pp + 32 * t))
            if t == 3:
                e('s_waitcnt lgkmcnt(0)')
        e('s_waitcnt lgkmcnt(0)')
        for u in range(2):
            for st in range(4):
                d = 34 + 4 * u
                k = 96 + 16 * u + 4 * st
                e('v_mfma_f32_16x16x32_bf16 v[%d:%d], v[%d:%d], v[%d:%d], %s' % (
                    d, d + 3, k, k + 3, 16 + 4 * st, 19 + 4 * st, '0' if st == 0 else 'v[%d:%d]' % (d, d + 3)))
        e('s_nop 15')
        e('v_max3_f32 v42, v34, v35, v36')
        e('v_max3_f32 v42, v42, v37, v38')
        e('v_max3_f32 v42, v42, v39, v40')
        e('v_max3_f32 v42, v42, v41, v32')
        e('v_mov_b32 v43, v42')
        e('s_nop 2')
        e('v_permlane16_swap_b32 v42, v43')
        e('s_nop 2')
        e('v_max_f32 v42, v42, v43')
        e('v_mov_b32 v43, v42')
        e('s_nop 2')
        e('v_permlane32_swap_b32 v42, v43')
        e('s_nop 2')
        e('v_max_f32 v42, v42, v43')
        e('v_sub_f32 v44, v32, v42')
        e('v_exp_f32 v44, v44')
        e('v_mov_b32 v32, v42')
        for r in range(8):
            e('v_sub_f32 v%d, v%d, v42' % (34 + r, 34 + r))
        for r in range(8):
            e('v_exp_f32 v%d, v%d' % (34 + r, 34 + r))
        e('s_nop 1')
        e('v_mul_f32 v33, v33, v44')
        for i in range(4):
            e('v_cvt_pk_bf16_f32 v%d, v%d, v%d' % (48 + i, 34 + 2 * i, 35 + 2 * i))
        for i in range(4):
            e('v_lshlrev_b32 v45, 16, v%d' % (48 + i))
            e('v_and_b32 v46, %s, v%d' % (s(sMASK), 48 + i))
            e('v_add_f32 v33, v33, v45')
            e('v_add_f32 v33, v33, v46')
        for i in range(32):
            e('v_mul_f32 v%d, v%d, v44' % (64 + i, 64 + i))
        e('s_nop 2')
        for t in range(8):
            d = 64 + 4 * t
            e('v_mfma_f32_16x16x32_bf16 v[%d:%d], v[%d:%d], v[48:51], v[%d:%d]' % (
                d, d + 3, 128 + 4 * t, 131 + 4 * t, d, d + 3))
        e('s_nop 15')
        e('s_add_u32 s59, s59, 8192')
        e('s_add_u32 s60, s60, 1')
        e('s_cmp_lt_u32 s60, 32')
        e('s_cbranch_scc1 L_slow_tile')
        e('v_mov_b32 v43, v33')
        e('s_nop 2')
        e('v_permlane16_swap_b32 v33, v43')
        e('s_nop 2')
        e('v_add_f32 v33, v33, v43')
        e('v_mov_b32 v43, v33')
        e('s_nop 2')
        e('v_permlane32_swap_b32 v33, v43')
        e('s_nop 2')
        e('v_add_f32 v33, v33, v43')
        e('v_rcp_f32 v33, v33')
        e('s_nop 1')
        for i in range(32):
            e('v_mul_f32 v%d, v%d, v33' % (64 + i, 64 + i))
        for tau in range(4):
            b0 = 64 + 8 * tau
            e('v_cvt_pk_bf16_f32 v%d, v%d, v%d' % (b0, b0, b0 + 1))
            e('v_cvt_pk_bf16_f32 v%d, v%d, v%d' % (b0 + 1, b0 + 2, b0 + 3))
            e('v_cvt_pk_bf16_f32 v%d, v%d, v%d' % (b0 + 2, b0 + 4, b0 + 5))
            e('v_cvt_pk_bf16_f32 v%d, v%d, v%d' % (b0 + 3, b0 + 6, b0 + 7))
            e('s_nop 2')
            e('v_permlane16_swap_b32 v%d, v%d' % (b0, b0 + 2))
            e('v_permlane16_swap_b32 v%d, v%d' % (b0 + 1, b0 + 3))
            e('s_nop 2')
            e('buffer_store_dwordx4 v[%d:%d], %s, %s, s57 offen offset:%d' % (
                b0, b0 + 3, v(vO), rng('s', sO, 4), 64 * tau))
        e('s_waitcnt vmcnt(0)')
        e('s_add_u32 s56, s56, 1')
        e('s_cmp_lt_u32 s56, 6')
        e('s_cbranch_scc1 L_slow_blk')
        e('L_slow_next:')
        e('s_add_u32 s53, s53, 1')
        e('s_cmp_lt_u32 s53, 2')
        e('s_cbranch_scc1 L_slow_head')
        e('s_endpgm')
        return o

    def build(self):
        cfg = self.cfg
        self.lastdma = {}
        self.qs_chain = self.od_chain = self.od_st = None
        self.build_backbone()
        self.reserve_wait_slots()
        pro = self.prologue()
        self.early()
        self.v0wait.meta['vm_for'] = self.lastdma[0]
        self.softmax()
        self.kv_stream()
        self.qb()
        self.epilogue(0)
        self.epilogue(1)
        for J, w in self.barwait.items():
            tw = w.meta['tile_wait']
            if cfg.no_dma and self.inloop(J):
                w.text = 's_nop 0'
                w.kind = 'nop'
            elif tw == 'all':
                w.meta['vm_for_last_dma'] = True
            elif tw in self.lastdma:
                w.meta['vm_for'] = self.lastdma[tw]
            else:
                assert cfg.no_dma
                w.text = 's_nop 0'
                w.kind = 'nop'
        gaps = schedule(self.bb, self.flex)
        body = linearize(self.bb, gaps)
        prog0 = pro + body
        lastd = None
        for ins in prog0:
            if ins.kind == 'dma':
                lastd = ins
            if ins.meta.get('vm_for_last_dma'):
                ins.meta['vm_for'] = lastd
        insert_waits(prog0)
        for l0, l1 in (cfg.loopA, cfg.loopB):
            for ph in range(cfg.U):
                ws = [self.barwait[J] for J in range(l0 + ph, l1, cfg.U) if self.barwait[J].kind == 'wait']
                if ws:
                    cap = min(w.meta['vm'] for w in ws)
                    for w in ws:
                        w.meta['vm_cap'] = cap
        if cfg.xp:
            def drop(i):
                t = i.text
                if 'd' in cfg.xp and i.kind == 'dma' and rng('s', sQ, 4) in t and s(sQT2) in t: return True
                if 'w' in cfg.xp and t.startswith('ds_write_b128 %s' % v(T(5))): return True
                if 'v' in cfg.xp and i.kind == 'valu' and any(r in (v(T(k)) for k in range(5)) for r in i.wrregs()) and i.gap is not None and i.gap > self.pstart[12] and i.gap < self.pstart[174]: return True
                if 's' in cfg.xp and i.kind == 'vstore' and s(sOSO) in t: return True
                if 'r' in cfg.xp and t.startswith('ds_read_b128 v') and v(T(8)) in t: return True
                return False
            prog0 = [i for i in prog0 if not drop(i)]
            insert_waits(prog0)
            for l0, l1 in (cfg.loopA, cfg.loopB):
                for ph in range(cfg.U):
                    ws = [self.barwait[J] for J in range(l0 + ph, l1, cfg.U) if self.barwait[J].kind == 'wait']
                    for w in ws:
                        w.meta.pop('vm_cap', None)
            insert_waits(prog0)
            for l0, l1 in (cfg.loopA, cfg.loopB):
                for ph in range(cfg.U):
                    ws = [self.barwait[J] for J in range(l0 + ph, l1, cfg.U) if self.barwait[J].kind == 'wait']
                    cap = min(w.meta['vm'] for w in ws)
                    for w in ws:
                        w.meta['vm_cap'] = cap
        prog = insert_waits(prog0)
        prog, nn = fix_hazards(prog, verbose=cfg.debug)
        errs = check_tags(prog) if not cfg.xp else 0
        assert errs == 0, errs
        self.check_m0(prog)
        self.gaps = gaps
        self.prog = prog
        self.nnops = nn
        return prog

    def check_m0(self, prog):
        lastm0 = None
        used = set()
        for ins in prog:
            if 'm0' in ins.wrregs():
                lastm0 = ins
            if ins.kind == 'dma':
                assert lastm0 is not None and lastm0.uid not in used, ('M0 reuse', ins.text)
                for d, _ in ins.deps:
                    if 'm0' in d.wrregs():
                        assert d is lastm0, ('M0 clobbered', ins.text)
                used.add(lastm0.uid)

    def roll(self):
        cfg = self.cfg
        prog = self.prog
        segs = []
        cur = []
        names = ['pre']
        for ins in prog:
            cur.append(ins)
            if ins.kind == 'mfma' and 'tile_start' in ins.meta:
                segs.append(cur)
                cur = []
                names.append(ins.meta['tile_start'])
        segs.append(cur)
        seg = dict(zip(names, segs))
        txt = lambda J: [i.text for i in seg[J]]
        U = cfg.U
        loops = [cfg.loopA, cfg.loopB]
        for l0, l1 in loops:
            assert (l1 - l0) % U == 0, (l0, l1)
            for J in range(l0, l1):
                ref = txt(l0 + (J - l0) % U)
                if txt(J) != ref:
                    x, y = txt(J), ref
                    for i in range(min(len(x), len(y))):
                        if x[i] != y[i]:
                            print('tile', J, 'differs at', i, x[i], '|', y[i])
                            break
                    raise Exception('tile %d not periodic' % J)
        out = []
        nst = [0]

        def stamp(real=False):
            if not cfg.stamps:
                return
            k = 64 + 2 * nst[0]
            nst[0] += 1
            out.append('    s_waitcnt lgkmcnt(0)')
            out.append('    %s s[%d:%d]' % ('s_memrealtime' if real else 's_memtime', k, k + 1))
            out.append('    s_waitcnt lgkmcnt(0)')

        def fmt(i):
            if cfg.bar_stamps and i.meta.get('tile_wait') is not None and i.kind == 'wait':
                return ['    s_waitcnt lgkmcnt(0)', '    s_memtime s[96:97]', '    s_waitcnt lgkmcnt(0)', '    ' + i.text,
                        '    s_memtime s[98:99]', '    s_waitcnt lgkmcnt(0)',
                        '    s_sub_u32 s98, s98, s96', '    s_add_u32 s100, s100, s98']
            if cfg.bar_stamps and i.kind == 'bar' and 'assert_lg_done' in i.meta:
                return ['    s_memtime s[96:97]', '    s_waitcnt lgkmcnt(0)', '    s_barrier',
                        '    s_memtime s[98:99]', '    s_waitcnt lgkmcnt(0)',
                        '    s_sub_u32 s98, s98, s96', '    s_add_u32 s101, s101, s98']
            return ['    ' + i.text]

        def emit(J):
            for i in seg[J]:
                if cfg.stamps and i.meta.get('stamp'):
                    stamp()
                out.extend(fmt(i))
        stamp(True)
        stamp()
        if cfg.bar_stamps:
            out.append('    s_mov_b32 s100, 0')
            out.append('    s_mov_b32 s101, 0')
        emit('pre')
        J = 1
        for li, (l0, l1) in enumerate(loops):
            while J < l0:
                emit(J)
                J += 1
            stamp()
            out.append('    s_mov_b32 %s, %d' % (s(sCNT), (l1 - l0) // U - 1))
            out.append('L_loop%d:' % li)
            for r in range(U):
                sg = seg[l0 + r]
                lines = [fmt(i) for i in sg]
                if r == U - 1:
                    idx = [k for k, i in enumerate(sg) if i.kind == 'mfma']
                    k = idx[-2]
                    for i in sg[k + 1:]:
                        assert 'scc' not in i.wrregs(), i.text
                    lines.insert(k + 1, ['    s_sub_u32 %s, %s, 1' % (s(sCNT), s(sCNT))])
                    lines.append(['    s_cbranch_scc0 L_loop%d' % li])
                for x in lines:
                    out.extend(x)
            stamp()
            J = l1
        while J < NT:
            emit(J)
            J += 1
        stamp()
        if cfg.stamps:
            out.append('    s_waitcnt vmcnt(0)')
            stamp()
            stamp(True)
            out.append('    s_load_dwordx2 s[44:45], s[0:1], 40')
            out.append('    s_waitcnt lgkmcnt(0)')
            out.append('    s_and_b32 s45, s45, 0xffff')
            out.append('    s_mov_b32 s46, 0x100000')
            out.append('    s_mov_b32 s47, 0x20000')
            out.append('    s_lshl_b32 s3, s2, 2')
            out.append('    s_add_u32 s3, s3, %s' % s(sW))
            out.append('    s_lshl_b32 s3, s3, 7')
            extra = [100, 101] if cfg.bar_stamps else []
            for k, sr in enumerate([64 + 2 * k for k in range(nst[0])] + extra):
                out.append('    v_mov_b32 v0, s%d' % sr)
                out.append('    v_mov_b32 v1, s3')
                out.append('    s_mov_b64 s[32:33], exec')
                out.append('    s_mov_b64 exec, 1')
                out.append('    buffer_store_dword v0, v1, s[44:47], 0 offen offset:%d' % (4 * k))
                out.append('    s_waitcnt vmcnt(0)')
                out.append('    s_mov_b64 exec, s[32:33]')
        out.append('    s_or_b64 s[54:55], %s, %s' % (rng('s', sFLAG[0], 2), rng('s', sFLAG[1], 2)))
        out.append('    s_cbranch_scc1 L_slow')
        out.append('L_done:')
        out.append('    s_endpgm')
        for l in self.slowpath():
            out.append(l if l.endswith(':') else '    ' + l)
        return out, seg


HEADER = """; Kernarg layout for this problem (48 bytes, ptrs only, base s[0:1]):
; @launch grid=(256,1,1) block=(256,1,1) lds=%d
.amdgcn_target "amdgcn-amd-amdhsa--gfx950"
.text
.globl NAME_kernel
.p2align 8
.type NAME_kernel,@function
NAME_kernel:
"""
FOOTER = """
.section .rodata,"a"
.p2align 6
.amdhsa_kernel NAME_kernel
  .amdhsa_next_free_vgpr 512
  .amdhsa_next_free_sgpr 102
  .amdhsa_accum_offset 256
  .amdhsa_group_segment_fixed_size 0
  .amdhsa_kernarg_size 48
  .amdhsa_user_sgpr_count 2
  .amdhsa_user_sgpr_kernarg_segment_ptr 1
  .amdhsa_system_sgpr_workgroup_id_x 1
.end_amdhsa_kernel
"""


def generate(cfg):
    g = Gen(cfg)
    g.build()
    lines, seg = g.roll()
    lds = LDS_BYTES
    src = (HEADER % lds).replace('NAME', NAME) + '\n'.join(lines) + '\n' + FOOTER.replace('NAME', NAME)
    return src, g, seg


if __name__ == '__main__':
    cfg = Cfg()
    out = sys.argv[1] if len(sys.argv) > 1 else 'cdna_kernels/%s.s' % NAME
    for kv in sys.argv[2:]:
        k, val = kv.split('=')
        setattr(cfg, k, eval(val))
    src, g, seg = generate(cfg)
    open(out, 'w').write(src)
    print('nops inserted', g.nnops, 'total est cycles', est_cycles(g.prog), 'lines', src.count('\n'))
    print(' '.join('%s:%d' % (J, est_cycles(seg[J])) for J in seg))
```

```python
import sys, os, struct
from sched import *

NAME = 'standalone__gqa_softmax__near_ridge'


class Cfg:
    R = 3
    D = 3
    U = 3
    LAT = 7
    loopA = (2, 29)
    loopB = (34, 61)
    thr = 0x4b800000
    debug = False
    stamps = False
    nt = ' nt'
    st_mod = ' nt sc1'
    st_mod2 = ' nt sc1'
    no_dma = False
    no_qb = False
    no_drain = False
    pair_cvt = True
    dbg_wg = None
    xp = ''
    bar_stamps = False
    dma_early = True
    qrd_lat = 8


SLOT = 16896
KOFF, VOFF = 0, 8448
CH = 1056
NT = 64
NS = NT * 6
DUMMY = 3 * SLOT
STAGE0 = DUMMY + 3 * CH
STAGEW = 24 * CH
LDS_BYTES = STAGE0 + 4 * STAGEW
C_SCALE = 1.4426950408889634 * (128 ** -0.5)


def f32bits(x):
    return struct.unpack('<I', struct.pack('<f', x))[0]


def O(b, t): return 32 * b + 4 * t
def S(buf, u): return 192 + 8 * buf + 4 * u
def P(buf): return 208 + 4 * buf
def CI(b): return 216 + 4 * b
vIDX, vK, vV, vDMA = 240, 241, 242, 243
def T(i): return 244 + i
vQ, vO = T(10), T(11)
def Q(b, s): return 16 * b + 4 * s
def KF(u, s): return 96 + 16 * u + 4 * s
def VF(t): return 128 + 4 * t
def L(k): return 160 + 4 * k
SA = 172
def QR(b, s): return 176 + 16 * b + 4 * s
def qoff(b): return 8192 * (b >> 1) + 512 * (b & 1)

sK, sV, sQ, sO = 4, 8, 12, 16
sDOFF, sDLDS, sSLOT, sDELTA, sWPART, sTMP, sW, sIDX = 20, 21, 22, 23, 24, 25, 26, 27
sC, sTHR, sMASK = 28, 30, 31
sFLAG = [34, 36]
sCNT, sPHASE, sQOFF, sOOFF = 38, 39, 40, 41
sSTG, sQI, sQREL, sQM, sQSO, sQT, sQT2 = 42, 44, 45, 46, 47, 48, 49
sOI, sOSO, sOT, sOT2, sOINC = 50, 51, 32, 33, 62


def v(n): return 'v%d' % n
def a(n): return 'a%d' % n
def s(n): return 's%d' % n


def V_(text, rd=(), wr=(), kind='valu'):
    return Ins(text, kind, rd, wr)


def S_(text, rd=(), wr=()):
    return Ins(text, 'salu', rd, list(wr) + ['scc'])


class Gen:
    def __init__(self, cfg):
        self.cfg = cfg
        self.bb = []
        self.flex = []
        self.iQK = {}
        self.iPV = {}
        self.iZ = {}
        self.pos = {}
        self.pstart = {}
        self.pend_ = {}

    def mk_qk(self, n, u, st):
        j, b = (n % 192) // 6, n % 6
        J = n // 6
        d = S(n & 1, u)
        h = n // 192
        rd = [(a(KF(u, st) + i), ('K', J, u, st, i)) for i in range(4)]
        rd += [(a(Q(b, st) + i), ('Q', h, b, st, i)) for i in range(4)]
        if st == 0:
            if j == 0:
                c = '0'
                srcc = []
            else:
                c = rng('v', CI(b), 4)
                srcc = regs('v', CI(b), 4)
                rd += [(r, ('CI', h, b)) for r in srcc]
        else:
            c = rng('v', d, 4)
            srcc = regs('v', d, 4)
            rd += [(v(d + i), ('Sp', n, u, st - 1, i)) for i in range(4)]
        tag = 'Sp' if st < 3 else 'S'
        wr = [(v(d + i), (tag, n, u, st, i) if st < 3 else ('S', n, u, i)) for i in range(4)]
        m = Ins('v_mfma_f32_16x16x32_bf16 %s, %s, %s, %s' % (rng('v', d, 4), rng('a', KF(u, st), 4),
                                                          rng('a', Q(b, st), 4), c),
                'mfma', rd, wr, srcc=srcc)
        m.meta['cls'] = 'xdl'
        return m

    def mk_pv(self, n, t):
        j, b = (n % 192) // 6, n % 6
        J = n // 6
        h = n // 192
        d = O(b, t)
        rd = [(a(VF(t) + i), ('V', J, t, i)) for i in range(4)]
        rd += [(v(P(n & 1) + i), ('P', n, i)) for i in range(4)]
        if j == 0:
            c = '0'
            srcc = []
        else:
            c = rng('v', d, 4)
            srcc = regs('v', d, 4)
            rd += [(v(d + i), ('O', h, b, t, j - 1, i)) for i in range(4)]
        wr = [(v(d + i), ('O', h, b, t, j, i)) for i in range(4)]
        m = Ins('v_mfma_f32_16x16x32_bf16 %s, %s, %s, %s' % (rng('v', d, 4), rng('a', VF(t), 4),
                                                          rng('v', P(n & 1), 4), c),
                'mfma', rd, wr, srcc=srcc)
        m.meta['cls'] = 'xdl'
        return m

    def mk_z(self, p):
        n0 = p - 2
        h, j, k = n0 // 192, (n0 % 192) // 6, (n0 % 6) // 2
        d = L(k)
        rd = [(v(P(0) + i), ('P', n0, i)) for i in range(4)] + [(v(P(1) + i), ('P', n0 + 1, i)) for i in range(4)]
        rd += [(a(SA + i), 'SA') for i in range(4)] + [(v(vIDX), 'IDX')]
        rd += [(a(d + i), ('L', h, k, j - 1, i)) for i in range(4)]
        wr = [(a(d + i), ('L', h, k, j, i)) for i in range(4)]
        m = Ins('v_smfmac_f32_16x16x64_bf16 %s, %s, %s, %s' % (rng('a', d, 4), rng('a', SA, 4),
                                                            rng('v', P(0), 8), v(vIDX)),
                'mfma', rd, wr, srcc=regs('a', d, 4))
        m.meta['cls'] = 'smf'
        return m

    def build_backbone(self):
        bb = self.bb
        for p in range(-1, NS + 1):
            qk = p + 1 if p + 1 < NS else None
            pv = p - 1 if 0 <= p - 1 < NS else None
            z = p >= 2 and p % 2 == 0
            self.pstart[p] = len(bb)
            seq = []
            for i in range(8):
                if qk is not None:
                    seq.append(('q', i >> 2, i & 3))
                if pv is not None:
                    seq.append(('p', i))
            zdone = not z
            npos = 0
            for it in seq:
                if it[0] == 'q':
                    m = self.mk_qk(qk, it[1], it[2])
                    self.iQK[(qk, it[1], it[2])] = len(bb)
                else:
                    m = self.mk_pv(pv, it[1])
                    self.iPV[(pv, it[1])] = len(bb)
                self.pos[(p, npos)] = len(bb)
                npos += 1
                bb.append(m)
                if it[0] == 'p' and not zdone:
                    self.iZ[p] = len(bb)
                    bb.append(self.mk_z(p))
                    zdone = True
            self.pend_[p] = len(bb) - 1
        for J in range(1, NT):
            k = self.pstart[6 * J]
            bb[k].meta['tile_start'] = J
            bb[k].meta['reserve_scal'] = True
            bb[k - 1].meta['reserve_scal'] = True

    def reserve_wait_slots(self):
        for J in range(1, NT):
            for u in range(2):
                for st in range(4):
                    self.bb[self.iQK[(6 * J, u, st)] - 1].meta['reserve_scal'] = True
        for J in range(0, NT):
            for t in range(8):
                self.bb[self.iPV[(6 * J, t)] - 1].meta['reserve_scal'] = True

    def add(self, ins, lo=None, hi=None, deps=(), prio=0):
        ins.lo, ins.hi, ins.prio = lo, hi, prio
        ins.deps = [d if isinstance(d, tuple) else (d, 0) for d in deps if d is not None]
        self.flex.append(ins)
        return ins

    def softmax(self):
        lastcvt = {}
        for n in range(NS):
            j, b, h = (n % 192) // 6, n % 6, n // 192
            buf = n & 1
            sr = [S(buf, u) + i for u in range(2) for i in range(4)]
            firstpv = self.iPV[(n, 0)]
            normal = j != 0 and (n, 15) in self.pos
            stag = [('S', n, r >> 2, r & 3) for r in range(8)]
            pre = None
            if j == 0:
                t0, t1 = T(0), T(1)
                lo0 = self.iQK[(n, 0, 3)] + 4
                lo1 = self.iQK[(n, 1, 3)] + 4
                prevuse = self.t0_last if hasattr(self, 't0_last') else None
                c = self.add(V_('v_max3_f32 %s, %s, %s, %s' % (v(t0), v(sr[0]), v(sr[1]), v(sr[2])),
                                [(v(sr[i]), stag[i]) for i in range(3)], [(v(t0), ('m0', n))]), lo=lo0,
                             deps=[prevuse])
                c = self.add(V_('v_max_f32 %s, %s, %s' % (v(t0), v(t0), v(sr[3])),
                                [(v(t0), ('m0', n)), (v(sr[3]), stag[3])], [(v(t0), ('m1', n))]), lo=lo0, deps=[c])
                c = self.add(V_('v_max3_f32 %s, %s, %s, %s' % (v(t0), v(t0), v(sr[4]), v(sr[5])),
                                [(v(t0), ('m1', n)), (v(sr[4]), stag[4]), (v(sr[5]), stag[5])],
                                [(v(t0), ('m2', n))]), lo=lo1, deps=[c])
                c = self.add(V_('v_max3_f32 %s, %s, %s, %s' % (v(t0), v(t0), v(sr[6]), v(sr[7])),
                                [(v(t0), ('m2', n)), (v(sr[6]), stag[6]), (v(sr[7]), stag[7])],
                                [(v(t0), ('m3', n))]), lo=lo1, deps=[c])
                c = self.add(V_('v_mov_b32 %s, %s' % (v(t1), v(t0)), [(v(t0), ('m3', n))], [(v(t1), ('m3c', n))]),
                             deps=[c], lo=lo1)
                c = self.add(V_('v_permlane16_swap_b32 %s, %s' % (v(t0), v(t1)),
                                [(v(t0), ('m3', n)), (v(t1), ('m3c', n))],
                                [(v(t0), ('m4a', n)), (v(t1), ('m4b', n))], kind='perm'), deps=[(c, 1)], lo=lo1)
                c = self.add(V_('v_max_f32 %s, %s, %s' % (v(t0), v(t0), v(t1)),
                                [(v(t0), ('m4a', n)), (v(t1), ('m4b', n))], [(v(t0), ('m5', n))]), deps=[c], lo=lo1)
                c = self.add(V_('v_mov_b32 %s, %s' % (v(t1), v(t0)), [(v(t0), ('m5', n))], [(v(t1), ('m5c', n))]),
                             deps=[c], lo=lo1)
                c = self.add(V_('v_permlane32_swap_b32 %s, %s' % (v(t0), v(t1)),
                                [(v(t0), ('m5', n)), (v(t1), ('m5c', n))],
                                [(v(t0), ('m6a', n)), (v(t1), ('m6b', n))], kind='perm'), deps=[(c, 1)], lo=lo1)
                cis = []
                for i in range(4):
                    c = self.add(V_('v_min_f32 %s, -%s, -%s' % (v(CI(b) + i), v(t0), v(t1)),
                                    [(v(t0), ('m6a', n)), (v(t1), ('m6b', n))], [(v(CI(b) + i), ('CI', h, b))]),
                                 deps=[c], lo=lo1)
                    cis.append(c)
                self.t0_last = cis[-1]
                for cc in cis:
                    cc.hi = self.iQK[(n + 6, 0, 0)] - 2
                pre = []
                for r in range(8):
                    c = self.add(V_('v_add_f32 %s, %s, %s' % (v(sr[r]), v(CI(b)), v(sr[r])),
                                    [(v(CI(b)), ('CI', h, b)), (v(sr[r]), stag[r])], [(v(sr[r]), ('Ss', n, r))]),
                                 deps=[cis[0]], lo=lo1)
                    pre.append(c)
                stag = [('Ss', n, r) for r in range(8)]
            exps = []
            for r in range(8):
                e = V_('v_exp_f32 %s, %s' % (v(sr[r]), v(sr[r])), [(v(sr[r]), stag[r])],
                       [(v(sr[r]), ('E', n, r))], kind='trans')
                if normal:
                    g = self.pos[(n, 2 * r)]
                    self.add(e, lo=g, hi=g, prio=5)
                else:
                    lo = self.iQK[(n, r >> 2, 3)] + 4
                    self.add(e, lo=lo, deps=[pre[r]] if pre else [])
                exps.append(e)
            for i in range(4):
                c = V_('v_cvt_pk_bf16_f32 %s, %s, %s' % (v(P(buf) + i), v(sr[2 * i]), v(sr[2 * i + 1])),
                       [(v(sr[2 * i]), ('E', n, 2 * i)), (v(sr[2 * i + 1]), ('E', n, 2 * i + 1))],
                       [(v(P(buf) + i), ('P', n, i))])
                lo = 0
                if n >= 2:
                    lo = self.iPV[(n - 2, 7)]
                    zp = n if n % 2 == 0 else n - 1
                    zp = (n - 2) - ((n - 2) % 2) + 2
                    lo = max(lo, self.iZ[zp])
                if normal:
                    g = self.pos[(n, (8 * (i >> 1) + 7) if self.cfg.pair_cvt else 4 * i + 3)]
                    assert g >= lo
                    self.add(c, lo=g, hi=g, deps=[(exps[2 * i], 1), (exps[2 * i + 1], 1)], prio=5)
                else:
                    self.add(c, lo=lo, hi=firstpv - 2, deps=[(exps[2 * i], 1), (exps[2 * i + 1], 1)])

    def inloop(self, J):
        return any(a_ <= J < b_ for a_, b_ in (self.cfg.loopA, self.cfg.loopB))

    def dma_group(self, JJ, lo, hi, deps, which=(0, 1, 2, 3)):
        cfg = self.cfg
        prev = self.m0chain
        base = (JJ % cfg.R) * SLOT
        for i in which:
            off = (0, 32, VOFF, VOFF + 32)[i]
            m = S_('s_add_u32 m0, %s, %d' % (s(sWPART), base + off), [s(sWPART)], ['m0'])
            self.add(m, lo=lo, hi=hi, deps=list(deps) + ([(prev, 1)] if prev else []))
            srd = sK if i < 2 else sV
            dma = Ins('buffer_load_dwordx4 %s, %s, %s offen%s%s lds' % (
                v(vDMA), rng('s', srd, 4), s(sDOFF), ' offset:1024' if i & 1 else '', cfg.nt), 'dma',
                [v(vDMA), 'm0', s(sDOFF)] + regs('s', srd, 4), [])
            dma.meta['tile'] = JJ
            self.add(dma, lo=lo, hi=hi, deps=[(m, 1)] + list(deps))
            prev = dma
        self.m0chain = prev
        self.lastdma[JJ] = prev
        return prev

    def kv_stream(self):
        cfg = self.cfg
        R, D = cfg.R, cfg.D
        self.bar = {}
        self.barwait = {}
        kreads = {}
        chain = None
        for J in range(0, NT):
            p3 = 6 * J + 3
            last = J == NT - 1
            if cfg.loopA[0] - 1 <= J < cfg.loopA[1] and not cfg.no_qb:
                self.q_stage_tile(J, dma_only=J < cfg.loopA[0])
            if cfg.loopB[0] <= J < cfg.loopB[1] and not cfg.no_drain:
                self.o_drain_tile(J)
            vr = []
            for t in range(8):
                for pp in range(2):
                    d = VF(t) + 2 * pp
                    ins = Ins('ds_read_b64_tr_b16 %s, %s offset:%d' % (
                        rng('a', d, 2), v(vV), (J % R) * SLOT + 512 * pp + 32 * t),
                        'ds', [v(vV)], [(a(d + i), ('V', J, t, 2 * pp + i)) for i in range(2)])
                    lo_ = self.iPV[(6 * J - 1, t)] if J > 0 else 0
                    hi_ = self.iPV[(6 * J, t)] - cfg.LAT
                    if J > 0:
                        deps = [(self.bar[J - 1], 0)]
                    else:
                        deps = [(self.bar_v0, 0)]
                        lo_ = max(lo_, self.bar_v0.lo)
                    self.add(ins, lo=lo_, hi=max(hi_, lo_), deps=deps)
                    vr.append(ins)
            e = self.pend_[p3]
            w = Ins('s_waitcnt vmcnt(0)', 'wait')
            w.meta['tile_wait'] = J + 1 if not last else 'all'
            self.add(w, lo=e - 2, hi=e - 1)
            bar = Ins('s_barrier', 'bar')
            bar.meta['assert_lg_done'] = set(vr) | set(kreads.get(J, []))
            self.add(bar, lo=e - 1, hi=e, deps=[(w, 1)])
            self.bar[J] = bar
            self.barwait[J] = w
            if last:
                break
            kr = []
            for u in range(2):
                for st in range(4):
                    d = KF(u, st)
                    ins = Ins('ds_read_b128 %s, %s offset:%d' % (
                        rng('a', d, 4), v(vK), ((J + 1) % R) * SLOT + 512 * u + 64 * st), 'ds',
                        [v(vK)], [(a(d + i), ('K', J + 1, u, st, i)) for i in range(4)])
                    lo_ = self.iQK[(6 * J + 5, u, st)]
                    hi_ = self.iQK[(6 * J + 6, u, st)] - cfg.LAT
                    self.add(ins, lo=lo_, hi=max(hi_, lo_), deps=[(bar, 0)])
                    kr.append(ins)
            kreads[J + 1] = kr
            JJ = J + D
            if JJ < NT and not (cfg.no_dma and self.inloop(J)):
                lo_ = self.pstart[6 * J + 5] - 2
                hi_ = self.pend_[6 * J + 5] - 1
                if cfg.dma_early:
                    lo_ = self.pend_[6 * J + 3]
                    hi_ = self.pstart[6 * J + 5] + 2
                if J == 0:
                    inc = self.doff_final
                else:
                    inc = self.add(S_('s_add_u32 %s, %s, 8192' % (s(sDOFF), s(sDOFF)), [s(sDOFF)], [s(sDOFF)]),
                                   lo=self.pstart[6 * J + 2] + 1, hi=self.pend_[6 * J + 3] - 3, deps=[(chain, 1)])
                chain = self.dma_group(JJ, lo_, hi_, [(bar, 1), (inc, 1)])

    def q_stage_tile(self, J, dma_only=False):
        cfg = self.cfg
        lo, hi = self.pstart[6 * J + 1] + 2, self.pend_[6 * J + 3] - 3
        prev = self.qs_chain

        def sc(ins, h=hi):
            nonlocal prev
            prev = self.add(ins, lo=lo, hi=h, deps=[(prev, 1)] if prev else [])
            return prev
        sc(S_('s_add_u32 %s, %s, 1' % (s(sQI), s(sQI)), [s(sQI)], [s(sQI)]))
        sc(S_('s_add_u32 %s, %s, %d' % (s(sQREL), s(sQREL), CH), [s(sQREL)], [s(sQREL)]))
        sc(S_('s_add_u32 %s, %s, 1024' % (s(sQSO), s(sQSO)), [s(sQSO)], [s(sQSO)]))
        sc(S_('s_sub_u32 %s, %s, 24' % (s(sQM), s(sQI)), [s(sQI)], [s(sQM)]))
        sc(S_('s_ashr_i32 %s, %s, 31' % (s(sQM), s(sQM)), [s(sQM)], [s(sQM)]))
        sc(S_('s_and_b32 %s, %s, %s' % (s(sQT), s(sQREL), s(sQM)), [s(sQREL), s(sQM)], [s(sQT)]))
        sc(S_('s_andn2_b32 %s, 0x40000000, %s' % (s(sQT2), s(sQM)), [s(sQM)], [s(sQT2)]))
        so = sc(S_('s_or_b32 %s, %s, %s' % (s(sQT2), s(sQT2), s(sQSO)), [s(sQT2), s(sQSO)], [s(sQT2)]))
        wlo, whi = self.pstart[6 * J + 5] - 3, self.pstart[6 * J + 5] + 3
        if cfg.dma_early:
            wlo, whi = self.pend_[6 * J + 3] - 4, self.pend_[6 * J + 3] + 2
        m = S_('s_add_u32 m0, %s, %d' % (s(sQT), DUMMY), [s(sQT)], ['m0'])
        self.add(m, lo=wlo, hi=whi, deps=[(so, 1)] + ([(self.m0chain, 1)] if self.m0chain else []))
        dma = Ins('buffer_load_dwordx4 %s, %s, %s offen%s lds' % (v(vDMA), rng('s', sQ, 4), s(sQT2), cfg.nt), 'dma',
                  [v(vDMA), 'm0', s(sQT2)] + regs('s', sQ, 4), [])
        self.add(dma, lo=wlo, hi=whi, deps=[(m, 1)])
        self.m0chain = dma
        self.qs_chain = dma
        if dma_only:
            return
        t0, tb, ad = T(0), T(4), T(5)
        key = ('qc', J)
        lo = self.pstart[6 * J + 1] + 8
        hi = self.pend_[6 * J + 3] - 3
        rd = Ins('ds_read_b128 %s, %s' % (rng('v', t0, 4), v(ad)), 'ds', [v(ad)],
                 [(v(t0 + i), (key, 'raw', i)) for i in range(4)])
        self.add(rd, lo=lo, hi=self.pstart[6 * J + 2] - 2, deps=[(self.qc_chain, 1)] if self.qc_chain else [])
        c = None
        lo2 = self.pstart[6 * J + 2] + 1
        for i in range(4):
            r = t0 + i
            c = self.add(V_('v_lshlrev_b32 %s, 16, %s' % (v(tb), v(r)), [(v(r), (key, 'raw', i))], [(v(tb), (key, 'b', i))]),
                         lo=lo2, deps=[(rd, cfg.qrd_lat), c] if c else [(rd, cfg.qrd_lat)])
            c = self.add(V_('v_and_b32 %s, %s, %s' % (v(r), s(sMASK), v(r)), [(v(r), (key, 'raw', i)), s(sMASK)],
                            [(v(r), (key, 'c', i))]), lo=lo2, deps=[c])
            c = self.add(V_('v_mul_f32 %s, %s, %s' % (v(tb), s(sC), v(tb)), [(v(tb), (key, 'b', i)), s(sC)],
                            [(v(tb), (key, 'd', i))]), lo=lo2, deps=[c])
            c = self.add(V_('v_mul_f32 %s, %s, %s' % (v(r), s(sC), v(r)), [(v(r), (key, 'c', i)), s(sC)],
                            [(v(r), (key, 'e', i))]), lo=lo2, deps=[c])
            c = self.add(V_('v_cvt_pk_bf16_f32 %s, %s, %s' % (v(r), v(tb), v(r)),
                            [(v(r), (key, 'e', i)), (v(tb), (key, 'd', i))], [(v(r), (key, 'f', i))]), lo=lo2, deps=[c])
        wr = Ins('ds_write_b128 %s, %s' % (v(ad), rng('v', t0, 4)), 'dsw',
                 [v(ad)] + [(v(t0 + i), (key, 'f', i)) for i in range(4)], [])
        self.add(wr, lo=lo2, hi=hi + 20, deps=[(c, 1)])
        up = self.add(V_('v_add_u32 %s, %d, %s' % (v(ad), CH, v(ad)), [v(ad)], [v(ad)]), lo=lo2, hi=hi + 24,
                      deps=[(wr, 0)])
        self.qc_chain = up
        self.qc_lastwrite = wr

    def o_drain_tile(self, J):
        cfg = self.cfg
        ph = (J - cfg.loopB[0]) % cfg.U
        if ph == 0:
            lo, hi = self.pstart[6 * J] + 2, self.pend_[6 * J + 1]
            prev = self.od_chain

            def sc(ins):
                nonlocal prev
                prev = self.add(ins, lo=lo, hi=hi, deps=[(prev, 1)] if prev else [])
                return prev
            sc(S_('s_lshr_b32 %s, %s, 1' % (s(sOT), s(sOI)), [s(sOI)], [s(sOT)]))
            sc(S_('s_lshl_b32 %s, %s, 13' % (s(sOT), s(sOT)), [s(sOT)], [s(sOT)]))
            sc(S_('s_and_b32 %s, %s, 1' % (s(sOT2), s(sOI)), [s(sOI)], [s(sOT2)]))
            sc(S_('s_lshl_b32 %s, %s, 9' % (s(sOT2), s(sOT2)), [s(sOT2)], [s(sOT2)]))
            sc(S_('s_add_u32 %s, %s, %s' % (s(sOSO), s(sOT), s(sOT2)), [s(sOT), s(sOT2)], [s(sOSO)]))
            sc(S_('s_sub_u32 %s, %s, 6' % (s(sOT), s(sOI)), [s(sOI)], [s(sOT)]))
            sc(S_('s_ashr_i32 %s, %s, 31' % (s(sOT), s(sOT)), [s(sOT)], [s(sOT)]))
            sc(S_('s_andn2_b32 %s, 0x40000000, %s' % (s(sOT2), s(sOT)), [s(sOT)], [s(sOT2)]))
            sc(S_('s_or_b32 %s, %s, %s' % (s(sOSO), s(sOSO), s(sOT2)), [s(sOSO), s(sOT2)], [s(sOSO)]))
            sc(S_('s_and_b32 %s, %d, %s' % (s(sOINC), 2 * CH, s(sOT)), [s(sOT)], [s(sOINC)]))
            sc(S_('s_add_u32 %s, %s, 1' % (s(sOI), s(sOI)), [s(sOI)], [s(sOI)]))
            self.od_scal = prev
            self.od_chain = prev
        if ph > 1:
            return
        ad = T(8)
        key = ('od', J)
        lo = self.pstart[6 * J + 2] + 1
        rds = []
        for q in range(2):
            t0 = T(4 * q)
            rd = Ins('ds_read_b128 %s, %s offset:%d' % (rng('v', t0, 4), v(ad), CH * q), 'ds', [v(ad)],
                     [(v(t0 + i), (key, q, i)) for i in range(4)])
            self.add(rd, lo=lo, hi=lo + 6, deps=[(self.od_st, 1)] if self.od_st else [])
            rds.append(rd)
        up = self.add(V_('v_add_u32 %s, %s, %s' % (v(ad), s(sOINC), v(ad)), [v(ad), s(sOINC)], [v(ad)]),
                      lo=lo, hi=self.pend_[6 * J + 3], deps=[(rds[0], 0), (rds[1], 0), (self.od_scal, 1)])
        for q in range(2):
            t0 = T(4 * q)
            st = Ins('buffer_store_dwordx4 %s, %s, %s, %s offen offset:%d%s' % (
                rng('v', t0, 4), v(vO), rng('s', sO, 4), s(sOSO), 128 * ph + 64 * q, cfg.st_mod), 'vstore',
                [(v(t0 + i), (key, q, i)) for i in range(4)] + [v(vO), s(sOSO)] + regs('s', sO, 4), [])
            self.add(st, lo=lo + 10, hi=self.pend_[6 * J + 3] - 3, deps=[(rds[q], cfg.qrd_lat + 1), (self.od_scal, 1)])
            self.od_st = st
        self.od_chain = self.od_st if ph == 1 else self.od_chain

    def epilogue(self, h):
        cfg = self.cfg
        self.st_last = None
        prevchain = getattr(self, 'sq_chain', None)
        lread = {}
        for b in range(6):
            n = 192 * h + 186 + b
            k, e = b >> 1, b & 1
            zi = self.iZ[192 * h + 188 + 2 * k]
            x = T(2 + (b & 1))
            y = T(4)
            nxt = n + 6 if h == 0 else None
            jl = 31
            prevx = getattr(self, 'xlast', {}).get(b & 1)
            r0 = self.add(V_('v_accvgpr_read_b32 %s, %s' % (v(x), a(L(k) + 2 * e)),
                             [(a(L(k) + 2 * e), ('L', h, k, jl, 2 * e))], [(v(x), ('l0', h, b))]),
                          lo=zi + 5, deps=[prevx])
            r1 = self.add(V_('v_accvgpr_read_b32 %s, %s' % (v(y), a(L(k) + 2 * e + 1)),
                             [(a(L(k) + 2 * e + 1), ('L', h, k, jl, 2 * e + 1))], [(v(y), ('l1', h, b))]),
                          lo=zi + 5, deps=[getattr(self, 'ylast', None)])
            lread[b] = (r0, r1)
            ad = self.add(V_('v_add_f32 %s, %s, %s' % (v(x), v(x), v(y)),
                             [(v(x), ('l0', h, b)), (v(y), ('l1', h, b))], [(v(x), ('l', h, b))]), deps=[r0, r1],
                          lo=zi + 5)
            self.ylast = ad
            cmp_ = self.add(V_('v_cmp_nge_f32 vcc, %s, %s' % (s(sTHR), v(x)), [s(sTHR), (v(x), ('l', h, b))],
                               [('vcc', ('chk', h, b))]), deps=[ad, getattr(self, 'vcc_last', None)], lo=zi + 5)
            fl = self.add(S_('s_or_b64 %s, %s, vcc' % (rng('s', sFLAG[h], 2), rng('s', sFLAG[h], 2)),
                             [('vcc', ('chk', h, b))] + regs('s', sFLAG[h], 2), regs('s', sFLAG[h], 2)),
                          deps=[(cmp_, 1)], lo=zi + 5)
            self.vcc_last = (fl, 1)
            rc = self.add(V_('v_rcp_f32 %s, %s' % (v(x), v(x)), [(v(x), ('l', h, b))], [(v(x), ('r', h, b))],
                             kind='trans'), deps=[cmp_], lo=zi + 5)
            fl.hi = None
            so = None
            if h == 1:
                so = self.add(Ins('s_mov_b32 %s, %d' % (s(sOOFF), h * 98304 + qoff(b)), 'salu', [], [s(sOOFF)]),
                              deps=[(self.st_last, 1)] if self.st_last is not None and b > 0 else [], lo=zi)
            last_in_block = None
            for tau in range(4):
                t0, t1 = 2 * tau, 2 * tau + 1
                muls = {}
                lo = self.iPV[(n, t1)] + 5
                for t in (t0, t1):
                    for i in range(4):
                        r = O(b, t) + i
                        muls[(t, i)] = self.add(V_('v_mul_f32 %s, %s, %s' % (v(r), v(x), v(r)),
                                                   [(v(x), ('r', h, b)), (v(r), ('O', h, b, t, jl, i))],
                                                   [(v(r), ('On', h, b, t, i))]), lo=lo, deps=[(rc, 1)])
                base = O(b, t0)
                cv = []
                src = [(t0, 0), (t0, 2), (t1, 0), (t1, 2)]
                for q, (t, i) in enumerate(src):
                    d = base + q
                    deps = [muls[(t, i)], muls[(t, i + 1)]]
                    if q == 1:
                        deps.append(cv[0])
                    if q == 2:
                        deps += [cv[1]]
                    if q == 3:
                        deps += [cv[1], cv[2]]
                    c = self.add(V_('v_cvt_pk_bf16_f32 %s, %s, %s' % (v(d), v(O(b, t) + i), v(O(b, t) + i + 1)),
                                    [(v(O(b, t) + i), ('On', h, b, t, i)), (v(O(b, t) + i + 1), ('On', h, b, t, i + 1))],
                                    [(v(d), ('Oc', h, b, tau, q))]), lo=lo, deps=deps)
                    cv.append(c)
                s0 = self.add(V_('v_permlane16_swap_b32 %s, %s' % (v(base), v(base + 2)),
                                 [(v(base), ('Oc', h, b, tau, 0)), (v(base + 2), ('Oc', h, b, tau, 2))],
                                 [(v(base), ('Os', h, b, tau, 0)), (v(base + 2), ('Os', h, b, tau, 2))], kind='perm'),
                              deps=[(cv[0], 1), (cv[2], 1)], lo=lo)
                s1 = self.add(V_('v_permlane16_swap_b32 %s, %s' % (v(base + 1), v(base + 3)),
                                 [(v(base + 1), ('Oc', h, b, tau, 1)), (v(base + 3), ('Oc', h, b, tau, 3))],
                                 [(v(base + 1), ('Os', h, b, tau, 1)), (v(base + 3), ('Os', h, b, tau, 3))],
                                 kind='perm'), deps=[(cv[1], 1), (cv[3], 1)], lo=lo)
                hi = None
                if h == 0:
                    st = Ins('ds_write_b128 %s, %s offset:%d' % (v(T(8)), rng('v', base, 4), CH * (4 * b + tau)), 'dsw',
                             [(v(base + q), ('Os', h, b, tau, q)) for q in range(4)] + [(v(T(8)), 'ostage')], [])
                    st.meta['cost'] = 8
                    hi = self.iPV[(nxt, t0)] - 2
                    deps = [(s0, 1), (s1, 1), (self.ostage_addr, 1)]
                    deps += [(x, 0) for x in self.qb_reads[2 * (b >> 1)] + self.qb_reads[2 * (b >> 1) + 1]]
                    self.add(st, lo=lo, hi=hi, deps=deps)
                else:
                    st = Ins('buffer_store_dwordx4 %s, %s, %s, %s offen offset:%d%s' % (
                        rng('v', base, 4), v(vO), rng('s', sO, 4), s(sOOFF), 64 * tau, cfg.st_mod2), 'vstore',
                        [(v(base + q), ('Os', h, b, tau, q)) for q in range(4)] + [v(vO), s(sOOFF)] + regs('s', sO, 4), [])
                    self.add(st, lo=lo, hi=hi, deps=[(s0, 1), (s1, 1), (so, 1)])
                if nxt is not None:
                    for q in (2, 3):
                        cv[q].hi = min(self.iPV[(nxt, t1)] - 2, cv[q].hi if cv[q].hi is not None else 10 ** 9)
                self.st_last = st
                last_in_block = muls[(t1, 3)]
            self.xlast = getattr(self, 'xlast', {})
            self.xlast[b & 1] = last_in_block
        if h == 0:
            for k in range(3):
                zi_next = self.iZ[192 + 2 + 2 * k]
                for i in range(4):
                    bb_ = 2 * k + (i >> 1)
                    self.add(V_('v_accvgpr_write_b32 %s, 0' % a(L(k) + i), [],
                                [(a(L(k) + i), ('L', 1, k, -1, i))]),
                             deps=[lread[bb_][i & 1]], hi=zi_next - 2, lo=0)

    def qb(self):
        cfg = self.cfg
        lo = self.pstart[6 * cfg.loopA[1]] + 2
        ad = self.add(V_('v_add_u32 %s, %s, %s' % (v(T(5)), s(sSTG), v(vK)), [s(sSTG), v(vK)], [(v(T(5)), 'qsaddr')]),
                      lo=lo, hi=self.pstart[184], deps=[(self.qc_chain, 1)] if self.qc_chain else [])
        self.qb_reads = {}
        for b in range(6):
            nlast, nfirst = 186 + b, 192 + b
            lst = []
            for st in range(4):
                d = Q(b, st)
                ins = Ins('ds_read_b128 %s, %s offset:%d' % (
                    rng('a', d, 4), v(T(5)), (b >> 1) * 8 * CH + 512 * (b & 1) + 64 * st), 'ds',
                    [(v(T(5)), 'qsaddr')], [(a(d + i), ('Q', 1, b, st, i)) for i in range(4)])
                lo_ = max(self.iQK[(nlast, 0, st)], self.iQK[(nlast, 1, st)])
                self.add(ins, lo=lo_, hi=self.iQK[(nfirst, 0, st)] - cfg.LAT, deps=[(ad, 1)])
                lst.append(ins)
            self.qb_reads[b] = lst
        self.ostage_addr = self.add(V_('v_add_u32 %s, %s, %s' % (v(T(8)), s(43), v(vDMA)), [s(43), v(vDMA)],
                                       [(v(T(8)), 'ostage')]), lo=lo, hi=self.pstart[184])

    RAW = 96

    def q_load(self, b, add):
        cfg = self.cfg
        out = []
        so = add(Ins('s_mov_b32 %s, %d' % (s(sQOFF), qoff(b)), 'salu', [], [s(sQOFF)]), None)
        for st in range(4):
            d = self.RAW + 16 * b + 4 * st
            out.append(add(Ins('buffer_load_dwordx4 %s, %s, %s, %s offen offset:%d%s' % (
                rng('v', d, 4), v(vQ), rng('s', sQ, 4), s(sQOFF), 64 * st, cfg.nt), 'vload',
                [v(vQ), s(sQOFF)] + regs('s', sQ, 4), [(v(d + i), ('QA', b, st, i)) for i in range(4)]), so))
        return out

    def prologue(self):
        cfg = self.cfg
        R = cfg.R
        o = []

        def e(text, kind='valu', rd=(), wr=()):
            i = Ins(text, kind, rd, wr)
            o.append(i)
            return i

        def srd_setup(srd, ptr, per):
            e('s_mul_i32 s3, s2, %d' % per, 'salu')
            e('s_add_u32 %s, %s, s3' % (s(srd), s(ptr)), 'salu')
            e('s_addc_u32 %s, %s, 0' % (s(srd + 1), s(ptr + 1)), 'salu')
            e('s_and_b32 %s, %s, 0xffff' % (s(srd + 1), s(srd + 1)), 'salu')
            e('s_mov_b32 %s, %d' % (s(srd + 2), per), 'salu')
            e('s_mov_b32 %s, 0x20000' % s(srd + 3), 'salu')

        def dma(J, which):
            last = None
            for i in which:
                off = (0, 32, VOFF, VOFF + 32)[i]
                e('s_add_u32 m0, %s, %d' % (s(sWPART), (J % R) * SLOT + off), 'salu', wr=['m0'])
                srd = sK if i < 2 else sV
                e('s_nop 0', 'nop')
                last = e('buffer_load_dwordx4 %s, %s, %s offen%s%s lds' % (
                    v(vDMA), rng('s', srd, 4), s(sDOFF), ' offset:1024' if i & 1 else '', cfg.nt), 'dma', rd=['m0'])
                last.meta['tile'] = J
            return last

        def addq(ins, dep):
            o.append(ins)
            return ins
        e('s_cmp_ge_u32 s2, 256', 'salu')
        e('s_cbranch_scc1 L_done', 'branch')
        e('s_load_dwordx4 s[44:47], s[0:1], 0', 'salu')
        e('s_load_dwordx4 s[48:51], s[0:1], 16', 'salu')
        t = [T(i) for i in range(10)]
        e('v_lshrrev_b32 %s, 6, v0' % v(t[0]), wr=[v(t[0])])
        e('v_and_b32 %s, 63, v0' % v(t[1]), wr=[v(t[1])])
        e('v_readfirstlane_b32 %s, %s' % (s(sW), v(t[0])), rd=[v(t[0])], wr=[s(sW)])
        e('v_and_b32 %s, 15, %s' % (v(t[2]), v(t[1])))
        e('v_lshrrev_b32 %s, 4, %s' % (v(t[3]), v(t[1])))
        e('v_lshlrev_b32 %s, 4, %s' % (v(vDMA), v(t[1])))
        e('v_lshl_add_u32 %s, %s, 11, %s' % (v(vDMA), v(t[0]), v(vDMA)), wr=[v(vDMA)])
        e('v_mul_u32_u24 %s, %d, %s' % (v(t[4]), 24576, v(t[0])))
        e('v_and_b32 %s, 7, %s' % (v(t[5]), v(t[2])))
        e('v_lshl_add_u32 %s, %s, 10, %s' % (v(t[4]), v(t[5]), v(t[4])))
        e('v_lshrrev_b32 %s, 3, %s' % (v(t[5]), v(t[2])))
        e('v_lshl_add_u32 %s, %s, 8, %s' % (v(t[4]), v(t[5]), v(t[4])))
        e('v_lshl_add_u32 %s, %s, 4, %s' % (v(vQ), v(t[3]), v(t[4])), wr=[v(vQ)])
        e('s_mul_i32 %s, %s, %d' % (s(sWPART), s(sW), 2 * CH), 'salu', rd=[s(sW)], wr=[s(sWPART)])
        e('s_mov_b32 %s, 0' % s(sDOFF), 'salu')
        e('s_waitcnt lgkmcnt(0)', 'wait')
        srd_setup(sK, 46, 524288)
        srd_setup(sQ, 44, 196608)
        k0 = dma(0, (0, 1))
        q0 = self.q_load(0, addq)
        q1 = self.q_load(1, addq)
        srd_setup(sV, 48, 524288)
        v0 = dma(0, (2, 3))
        self.lastdma[0] = v0
        srd_setup(sO, 50, 196608)
        e('v_and_b32 %s, 1, %s' % (v(t[5]), v(t[3])))
        e('v_lshl_add_u32 %s, %s, 5, %s' % (v(t[4]), v(t[5]), v(t[4])))
        e('v_lshrrev_b32 %s, 1, %s' % (v(t[5]), v(t[3])))
        e('v_lshl_add_u32 %s, %s, 4, %s' % (v(vO), v(t[5]), v(t[4])), wr=[v(vO)])
        e('v_and_b32 %s, 7, %s' % (v(t[4]), v(t[2])))
        e('v_mul_u32_u24 %s, %d, %s' % (v(vK), CH, v(t[4])))
        e('v_lshrrev_b32 %s, 3, %s' % (v(t[4]), v(t[2])))
        e('v_lshl_add_u32 %s, %s, 8, %s' % (v(vK), v(t[4]), v(vK)))
        e('v_lshl_add_u32 %s, %s, 4, %s' % (v(vK), v(t[3]), v(vK)), wr=[v(vK)])
        e('v_bfe_u32 %s, %s, 2, 3' % (v(t[4]), v(t[1])))
        e('v_mul_u32_u24 %s, %d, %s' % (v(vV), CH, v(t[4])))
        e('v_lshrrev_b32 %s, 5, %s' % (v(t[4]), v(t[1])))
        e('v_lshl_add_u32 %s, %s, 8, %s' % (v(vV), v(t[4]), v(vV)))
        e('v_and_b32 %s, 3, %s' % (v(t[4]), v(t[1])))
        e('v_lshl_add_u32 %s, %s, 3, %s' % (v(vV), v(t[4]), v(vV)))
        e('v_add_u32 %s, %d, %s' % (v(vV), VOFF, v(vV)), wr=[v(vV)])
        e('s_mov_b32 %s, 0x%08x' % (s(sC), f32bits(C_SCALE)), 'salu')
        e('s_mov_b32 %s, 0x%08x' % (s(sC + 1), f32bits(C_SCALE)), 'salu')
        e('s_mov_b32 %s, 0x%08x' % (s(sTHR), cfg.thr), 'salu')
        e('s_mov_b32 %s, 0xffff0000' % s(sMASK), 'salu')
        e('s_mov_b64 %s, 0' % rng('s', sFLAG[0], 2), 'salu')
        e('s_mov_b64 %s, 0' % rng('s', sFLAG[1], 2), 'salu')
        e('s_mul_i32 %s, %s, %d' % (s(sSTG), s(sW), STAGEW), 'salu')
        e('s_add_u32 %s, %s, %d' % (s(sQREL), s(sSTG), STAGE0 - DUMMY), 'salu')
        e('s_add_u32 %s, %s, %d' % (s(sSTG), s(sSTG), STAGE0), 'salu')
        e('s_lshl_b32 s3, %s, 11' % s(sW), 'salu')
        e('s_sub_u32 s43, %s, s3' % s(sSTG), 'salu')
        e('s_sub_u32 s63, s43, %d' % (3 * CH), 'salu')
        e('s_mov_b32 %s, -2' % s(sQI), 'salu')
        e('s_sub_u32 %s, %s, %d' % (s(sQREL), s(sQREL), 2 * CH), 'salu')
        e('s_mul_i32 %s, %s, %d' % (s(sQSO), s(sW), 24576 - 2048), 'salu')
        e('s_add_u32 %s, %s, %d' % (s(sQSO), s(sQSO), 98304 - 2048), 'salu')
        e('s_mov_b32 %s, 0' % s(sOI), 'salu')
        e('v_and_b32 %s, 1, %s' % (v(t[4]), v(t[2])))
        e('v_mov_b32 %s, 0x4444' % v(t[5]))
        e('v_mov_b32 %s, 0xeeee' % v(t[6]))
        e('v_cmp_eq_u32 vcc, 0, %s' % v(t[4]), wr=['vcc'])
        e('v_cndmask_b32 %s, %s, %s, vcc' % (v(vIDX), v(t[6]), v(t[5])), rd=['vcc'], wr=[(v(vIDX), 'IDX')])
        e('v_bfe_u32 %s, %s, 1, 1' % (v(t[4]), v(t[2])))
        e('v_lshrrev_b32 %s, 1, %s' % (v(t[5]), v(t[3])))
        e('v_cmp_eq_u32 vcc, %s, %s' % (v(t[4]), v(t[5])), wr=['vcc'])
        e('v_mov_b32 %s, 0x3f803f80' % v(t[6]))
        e('v_cndmask_b32 %s, 0, %s, vcc' % (v(t[4]), v(t[6])), rd=['vcc'], wr=[v(t[4])])
        for i in range(4):
            e('v_accvgpr_write_b32 %s, %s' % (a(SA + i), v(t[4])), rd=[v(t[4])], wr=[(a(SA + i), 'SA')])
        for k in range(3):
            for i in range(4):
                e('v_accvgpr_write_b32 %s, 0' % a(L(k) + i), wr=[(a(L(k) + i), ('L', 0, k, -1, i))])
        w = e('s_waitcnt vmcnt(0)', 'wait')
        w.meta['vm_for'] = q0[-1]
        w.meta['stamp'] = True
        self.q_load(2, addq)
        b = 0
        for st in range(4):
            d = self.RAW + 16 * b + 4 * st
            tb = 8 * (st & 1)
            for i in range(4):
                e('v_lshlrev_b32 %s, 16, %s' % (v(tb + 2 * i), v(d + i)), rd=[(v(d + i), ('QA', b, st, i))],
                  wr=[v(tb + 2 * i)])
                e('v_and_b32 %s, %s, %s' % (v(tb + 2 * i + 1), s(sMASK), v(d + i)), rd=[v(d + i)],
                  wr=[v(tb + 2 * i + 1)])
            for i in range(4):
                e('v_pk_mul_f32 %s, %s, %s' % (rng('v', tb + 2 * i, 2), rng('v', tb + 2 * i, 2), rng('s', sC, 2)),
                  rd=regs('v', tb + 2 * i, 2), wr=regs('v', tb + 2 * i, 2))
            for i in range(4):
                e('v_cvt_pk_bf16_f32 %s, %s, %s' % (v(d + i), v(tb + 2 * i), v(tb + 2 * i + 1)),
                  rd=regs('v', tb + 2 * i, 2), wr=[v(d + i)])
            for i in range(4):
                e('v_accvgpr_write_b32 %s, %s' % (a(Q(b, st) + i), v(d + i)), rd=[v(d + i)],
                  wr=[(a(Q(b, st) + i), ('Q', 0, b, st, i))])
        e('s_barrier', 'bar')
        for u in range(2):
            for st in range(4):
                d = KF(u, st)
                e('ds_read_b128 %s, %s offset:%d' % (rng('a', d, 4), v(vK), 512 * u + 64 * st), 'ds',
                  rd=[v(vK)], wr=[(a(d + i), ('K', 0, u, st, i)) for i in range(4)])
        return o

    def early(self):
        cfg = self.cfg
        R, D = cfg.R, cfg.D
        firstop = {}
        chain = None
        qprev = None
        tiles = list(range(1, D))
        plan = {1: tiles[0:1], 2: [], 3: tiles[1:2], 4: tiles[2:3], 5: tiles[3:]}
        if D == 3:
            plan = {1: tiles[0:1], 2: [], 3: [], 4: tiles[1:2], 5: []}
        doff = None
        self.m0chain = None
        for b in range(1, 6):
            first = None
            for st in range(4):
                dl = self.iQK[(b, 0, st)] - 2
                for i in range(4):
                    r = self.RAW + 16 * b + 4 * st + i
                    tb = T(5 + (i & 1))
                    key = (b, st, i)
                    c = self.add(V_('v_lshlrev_b32 %s, 16, %s' % (v(tb), v(r)), [(v(r), ('QA', b, st, i))],
                                    [(v(tb), ('qb', key))]), lo=0, deps=[chain])
                    if first is None:
                        first = c
                    c = self.add(V_('v_and_b32 %s, %s, %s' % (v(r), s(sMASK), v(r)), [(v(r), ('QA', b, st, i)), s(sMASK)],
                                    [(v(r), ('qc', key))]), lo=0, deps=[c])
                    c = self.add(V_('v_mul_f32 %s, %s, %s' % (v(tb), s(sC), v(tb)), [(v(tb), ('qb', key)), s(sC)],
                                    [(v(tb), ('qd', key))]), lo=0, deps=[c])
                    c = self.add(V_('v_mul_f32 %s, %s, %s' % (v(r), s(sC), v(r)), [(v(r), ('qc', key)), s(sC)],
                                    [(v(r), ('qe', key))]), lo=0, deps=[c])
                    c = self.add(V_('v_cvt_pk_bf16_f32 %s, %s, %s' % (v(r), v(tb), v(r)),
                                    [(v(r), ('qe', key)), (v(tb), ('qd', key))], [(v(r), ('qf', key))]), lo=0, deps=[c])
                    c = self.add(V_('v_accvgpr_write_b32 %s, %s' % (a(Q(b, st) + i), v(r)), [(v(r), ('qf', key))],
                                    [(a(Q(b, st) + i), ('Q', 0, b, st, i))]), lo=0, hi=dl, deps=[c])
                    chain = c
            firstop[b] = first
            mark = len(self.flex)
            if b + 2 <= 5:
                def addq(ins, dep, first=first):
                    nonlocal qprev
                    deps = [(first, 1)]
                    if dep is not None:
                        deps.append((dep, 1))
                    elif qprev is not None:
                        deps.append((qprev, 1))
                    self.add(ins, lo=0, hi=None, deps=deps, prio=3)
                    ins.hi = None
                    return ins
                ql = self.q_load(b + 2, addq)
                qprev = ql[-1]
            for J in plan[b]:
                doff = self.add(Ins('s_mov_b32 %s, %d' % (s(sDOFF), J * 8192), 'salu', [], [s(sDOFF)]), lo=0,
                                deps=[(first, 1)] + ([(self.m0chain, 1)] if self.m0chain else []))
                self.dma_group(J, 0, None, [(doff, 1)])
            for x in self.flex[mark:]:
                x.meta['asap'] = True
        self.qoff_last = qprev
        self.qc_chain = self.add(V_('v_add_u32 %s, s63, %s' % (v(T(5)), v(vDMA)), [v(vDMA)], [v(T(5))]), lo=0,
                                 hi=self.pstart[6 * cfg.loopA[0]] - 4, deps=[chain])
        self.doff_final = self.add(Ins('s_mov_b32 %s, %d' % (s(sDOFF), D * 8192), 'salu', [], [s(sDOFF)]), lo=0,
                                   hi=self.pstart[5] - 4, deps=[(self.m0chain, 1)])
        k = self.pstart[0] + 1
        w = Ins('s_waitcnt vmcnt(0)', 'wait')
        w.meta['vm_for_tile0'] = True
        self.add(w, lo=k, hi=k)
        self.bar_v0 = Ins('s_barrier', 'bar')
        self.add(self.bar_v0, lo=k + 1, hi=k + 1, deps=[(w, 1)])
        self.v0wait = w

    def slowpath(self):
        o = []
        e = o.append
        e('L_slow:')
        e('s_waitcnt vmcnt(0) lgkmcnt(0)')
        e('s_mul_i32 s52, %s, %d' % (s(sW), SLOT))
        e('v_and_b32 v1, 63, %s' % v(vDMA))
        e('v_lshrrev_b32 v162, 4, %s' % v(vDMA))
        e('v_and_b32 v162, 63, v162')
        e('v_and_b32 v2, 15, v162')
        e('v_lshrrev_b32 v3, 4, v162')
        e('v_and_b32 v4, 7, v2')
        e('v_mul_u32_u24 v160, %d, v4' % CH)
        e('v_lshrrev_b32 v4, 3, v2')
        e('v_lshl_add_u32 v160, v4, 8, v160')
        e('v_lshl_add_u32 v160, v3, 4, v160')
        e('v_add_u32 v160, s52, v160')
        e('v_bfe_u32 v4, v162, 2, 3')
        e('v_mul_u32_u24 v161, %d, v4' % CH)
        e('v_lshrrev_b32 v4, 5, v162')
        e('v_lshl_add_u32 v161, v4, 8, v161')
        e('v_and_b32 v4, 3, v162')
        e('v_lshl_add_u32 v161, v4, 3, v161')
        e('v_add_u32 v161, %d, v161' % VOFF)
        e('v_add_u32 v161, s52, v161')
        e('v_lshlrev_b32 v162, 4, v162')
        e('s_mov_b32 s53, 0')
        e('L_slow_head:')
        e('s_cmp_eq_u32 s53, 0')
        e('s_cselect_b64 s[54:55], %s, %s' % (rng('s', sFLAG[0], 2), rng('s', sFLAG[1], 2)))
        e('s_cmp_eq_u64 s[54:55], 0')
        e('s_cbranch_scc1 L_slow_next')
        e('s_mov_b32 s56, 0')
        e('L_slow_blk:')
        e('s_mul_i32 s57, s53, 98304')
        e('s_lshr_b32 s58, s56, 1')
        e('s_lshl_b32 s58, s58, 13')
        e('s_add_u32 s57, s57, s58')
        e('s_and_b32 s58, s56, 1')
        e('s_lshl_b32 s58, s58, 9')
        e('s_add_u32 s57, s57, s58')
        for st in range(4):
            e('buffer_load_dwordx4 v[%d:%d], %s, %s, s57 offen offset:%d' % (
                4 * st, 4 * st + 3, v(vQ), rng('s', sQ, 4), 64 * st))
        e('s_waitcnt vmcnt(0)')
        for i in range(16):
            e('v_lshlrev_b32 v42, 16, v%d' % i)
            e('v_and_b32 v43, %s, v%d' % (s(sMASK), i))
            e('v_mul_f32 v42, %s, v42' % s(sC))
            e('v_mul_f32 v43, %s, v43' % s(sC))
            e('v_cvt_pk_bf16_f32 v%d, v42, v43' % (16 + i))
        e('v_mov_b32 v32, 0xff800000')
        e('v_mov_b32 v33, 0')
        for i in range(32):
            e('v_mov_b32 v%d, 0' % (64 + i))
        e('s_mul_i32 s59, s53, 262144')
        e('s_mov_b32 s60, 0')
        e('L_slow_tile:')
        for c in range(8):
            for which, srd in ((0, sK), (VOFF, sV)):
                e('s_add_u32 m0, s52, %d' % (which + c * CH))
                e('s_add_u32 s61, s59, %d' % (c * 1024))
                e('buffer_load_dwordx4 v162, %s, s61 offen lds' % rng('s', srd, 4))
        e('s_waitcnt vmcnt(0)')
        for u in range(2):
            for st in range(4):
                d = 96 + 16 * u + 4 * st
                e('ds_read_b128 v[%d:%d], v160 offset:%d' % (d, d + 3, 512 * u + 64 * st))
        e('s_waitcnt lgkmcnt(0)')
        for t in range(8):
            for pp in range(2):
                d = 128 + 4 * t + 2 * pp
                e('ds_read_b64_tr_b16 v[%d:%d], v161 offset:%d' % (d, d + 1, 512 * pp + 32 * t))
            if t == 3:
                e('s_waitcnt lgkmcnt(0)')
        e('s_waitcnt lgkmcnt(0)')
        for u in range(2):
            for st in range(4):
                d = 34 + 4 * u
                k = 96 + 16 * u + 4 * st
                e('v_mfma_f32_16x16x32_bf16 v[%d:%d], v[%d:%d], v[%d:%d], %s' % (
                    d, d + 3, k, k + 3, 16 + 4 * st, 19 + 4 * st, '0' if st == 0 else 'v[%d:%d]' % (d, d + 3)))
        e('s_nop 15')
        e('v_max3_f32 v42, v34, v35, v36')
        e('v_max3_f32 v42, v42, v37, v38')
        e('v_max3_f32 v42, v42, v39, v40')
        e('v_max3_f32 v42, v42, v41, v32')
        e('v_mov_b32 v43, v42')
        e('s_nop 2')
        e('v_permlane16_swap_b32 v42, v43')
        e('s_nop 2')
        e('v_max_f32 v42, v42, v43')
        e('v_mov_b32 v43, v42')
        e('s_nop 2')
        e('v_permlane32_swap_b32 v42, v43')
        e('s_nop 2')
        e('v_max_f32 v42, v42, v43')
        e('v_sub_f32 v44, v32, v42')
        e('v_exp_f32 v44, v44')
        e('v_mov_b32 v32, v42')
        for r in range(8):
            e('v_sub_f32 v%d, v%d, v42' % (34 + r, 34 + r))
        for r in range(8):
            e('v_exp_f32 v%d, v%d' % (34 + r, 34 + r))
        e('s_nop 1')
        e('v_mul_f32 v33, v33, v44')
        for i in range(4):
            e('v_cvt_pk_bf16_f32 v%d, v%d, v%d' % (48 + i, 34 + 2 * i, 35 + 2 * i))
        for i in range(4):
            e('v_lshlrev_b32 v45, 16, v%d' % (48 + i))
            e('v_and_b32 v46, %s, v%d' % (s(sMASK), 48 + i))
            e('v_add_f32 v33, v33, v45')
            e('v_add_f32 v33, v33, v46')
        for i in range(32):
            e('v_mul_f32 v%d, v%d, v44' % (64 + i, 64 + i))
        e('s_nop 2')
        for t in range(8):
            d = 64 + 4 * t
            e('v_mfma_f32_16x16x32_bf16 v[%d:%d], v[%d:%d], v[48:51], v[%d:%d]' % (
                d, d + 3, 128 + 4 * t, 131 + 4 * t, d, d + 3))
        e('s_nop 15')
        e('s_add_u32 s59, s59, 8192')
        e('s_add_u32 s60, s60, 1')
        e('s_cmp_lt_u32 s60, 32')
        e('s_cbranch_scc1 L_slow_tile')
        e('v_mov_b32 v43, v33')
        e('s_nop 2')
        e('v_permlane16_swap_b32 v33, v43')
        e('s_nop 2')
        e('v_add_f32 v33, v33, v43')
        e('v_mov_b32 v43, v33')
        e('s_nop 2')
        e('v_permlane32_swap_b32 v33, v43')
        e('s_nop 2')
        e('v_add_f32 v33, v33, v43')
        e('v_rcp_f32 v33, v33')
        e('s_nop 1')
        for i in range(32):
            e('v_mul_f32 v%d, v%d, v33' % (64 + i, 64 + i))
        for tau in range(4):
            b0 = 64 + 8 * tau
            e('v_cvt_pk_bf16_f32 v%d, v%d, v%d' % (b0, b0, b0 + 1))
            e('v_cvt_pk_bf16_f32 v%d, v%d, v%d' % (b0 + 1, b0 + 2, b0 + 3))
            e('v_cvt_pk_bf16_f32 v%d, v%d, v%d' % (b0 + 2, b0 + 4, b0 + 5))
            e('v_cvt_pk_bf16_f32 v%d, v%d, v%d' % (b0 + 3, b0 + 6, b0 + 7))
            e('s_nop 2')
            e('v_permlane16_swap_b32 v%d, v%d' % (b0, b0 + 2))
            e('v_permlane16_swap_b32 v%d, v%d' % (b0 + 1, b0 + 3))
            e('s_nop 2')
            e('buffer_store_dwordx4 v[%d:%d], %s, %s, s57 offen offset:%d' % (
                b0, b0 + 3, v(vO), rng('s', sO, 4), 64 * tau))
        e('s_waitcnt vmcnt(0)')
        e('s_add_u32 s56, s56, 1')
        e('s_cmp_lt_u32 s56, 6')
        e('s_cbranch_scc1 L_slow_blk')
        e('L_slow_next:')
        e('s_add_u32 s53, s53, 1')
        e('s_cmp_lt_u32 s53, 2')
        e('s_cbranch_scc1 L_slow_head')
        e('s_endpgm')
        return o

    def build(self):
        cfg = self.cfg
        self.lastdma = {}
        self.qs_chain = self.od_chain = self.od_st = None
        self.build_backbone()
        self.reserve_wait_slots()
        pro = self.prologue()
        self.early()
        self.v0wait.meta['vm_for'] = self.lastdma[0]
        self.softmax()
        self.kv_stream()
        self.qb()
        self.epilogue(0)
        self.epilogue(1)
        for J, w in self.barwait.items():
            tw = w.meta['tile_wait']
            if cfg.no_dma and self.inloop(J):
                w.text = 's_nop 0'
                w.kind = 'nop'
            elif tw == 'all':
                w.meta['vm_for_last_dma'] = True
            elif tw in self.lastdma:
                w.meta['vm_for'] = self.lastdma[tw]
            else:
                assert cfg.no_dma
                w.text = 's_nop 0'
                w.kind = 'nop'
        gaps = schedule(self.bb, self.flex)
        body = linearize(self.bb, gaps)
        prog0 = pro + body
        lastd = None
        for ins in prog0:
            if ins.kind == 'dma':
                lastd = ins
            if ins.meta.get('vm_for_last_dma'):
                ins.meta['vm_for'] = lastd
        insert_waits(prog0)
        for l0, l1 in (cfg.loopA, cfg.loopB):
            for ph in range(cfg.U):
                ws = [self.barwait[J] for J in range(l0 + ph, l1, cfg.U) if self.barwait[J].kind == 'wait']
                if ws:
                    cap = min(w.meta['vm'] for w in ws)
                    for w in ws:
                        w.meta['vm_cap'] = cap
        if cfg.xp:
            def drop(i):
                t = i.text
                if 'd' in cfg.xp and i.kind == 'dma' and rng('s', sQ, 4) in t and s(sQT2) in t: return True
                if 'w' in cfg.xp and t.startswith('ds_write_b128 %s' % v(T(5))): return True
                if 'v' in cfg.xp and i.kind == 'valu' and any(r in (v(T(k)) for k in range(5)) for r in i.wrregs()) and i.gap is not None and i.gap > self.pstart[12] and i.gap < self.pstart[174]: return True
                if 's' in cfg.xp and i.kind == 'vstore' and s(sOSO) in t: return True
                if 'r' in cfg.xp and t.startswith('ds_read_b128 v') and v(T(8)) in t: return True
                return False
            prog0 = [i for i in prog0 if not drop(i)]
            insert_waits(prog0)
            for l0, l1 in (cfg.loopA, cfg.loopB):
                for ph in range(cfg.U):
                    ws = [self.barwait[J] for J in range(l0 + ph, l1, cfg.U) if self.barwait[J].kind == 'wait']
                    for w in ws:
                        w.meta.pop('vm_cap', None)
            insert_waits(prog0)
            for l0, l1 in (cfg.loopA, cfg.loopB):
                for ph in range(cfg.U):
                    ws = [self.barwait[J] for J in range(l0 + ph, l1, cfg.U) if self.barwait[J].kind == 'wait']
                    cap = min(w.meta['vm'] for w in ws)
                    for w in ws:
                        w.meta['vm_cap'] = cap
        prog = insert_waits(prog0)
        prog, nn = fix_hazards(prog, verbose=cfg.debug)
        errs = check_tags(prog) if not cfg.xp else 0
        assert errs == 0, errs
        self.check_m0(prog)
        self.gaps = gaps
        self.prog = prog
        self.nnops = nn
        return prog

    def check_m0(self, prog):
        lastm0 = None
        used = set()
        for ins in prog:
            if 'm0' in ins.wrregs():
                lastm0 = ins
            if ins.kind == 'dma':
                assert lastm0 is not None and lastm0.uid not in used, ('M0 reuse', ins.text)
                for d, _ in ins.deps:
                    if 'm0' in d.wrregs():
                        assert d is lastm0, ('M0 clobbered', ins.text)
                used.add(lastm0.uid)

    def roll(self):
        cfg = self.cfg
        prog = self.prog
        segs = []
        cur = []
        names = ['pre']
        for ins in prog:
            cur.append(ins)
            if ins.kind == 'mfma' and 'tile_start' in ins.meta:
                segs.append(cur)
                cur = []
                names.append(ins.meta['tile_start'])
        segs.append(cur)
        seg = dict(zip(names, segs))
        txt = lambda J: [i.text for i in seg[J]]
        U = cfg.U
        loops = [cfg.loopA, cfg.loopB]
        for l0, l1 in loops:
            assert (l1 - l0) % U == 0, (l0, l1)
            for J in range(l0, l1):
                ref = txt(l0 + (J - l0) % U)
                if txt(J) != ref:
                    x, y = txt(J), ref
                    for i in range(min(len(x), len(y))):
                        if x[i] != y[i]:
                            print('tile', J, 'differs at', i, x[i], '|', y[i])
                            break
                    raise Exception('tile %d not periodic' % J)
        out = []
        nst = [0]

        def stamp(real=False):
            if not cfg.stamps:
                return
            k = 64 + 2 * nst[0]
            nst[0] += 1
            out.append('    s_waitcnt lgkmcnt(0)')
            out.append('    %s s[%d:%d]' % ('s_memrealtime' if real else 's_memtime', k, k + 1))
            out.append('    s_waitcnt lgkmcnt(0)')

        def fmt(i):
            if cfg.bar_stamps and i.meta.get('tile_wait') is not None and i.kind == 'wait':
                return ['    s_waitcnt lgkmcnt(0)', '    s_memtime s[96:97]', '    s_waitcnt lgkmcnt(0)', '    ' + i.text,
                        '    s_memtime s[98:99]', '    s_waitcnt lgkmcnt(0)',
                        '    s_sub_u32 s98, s98, s96', '    s_add_u32 s100, s100, s98']
            if cfg.bar_stamps and i.kind == 'bar' and 'assert_lg_done' in i.meta:
                return ['    s_memtime s[96:97]', '    s_waitcnt lgkmcnt(0)', '    s_barrier',
                        '    s_memtime s[98:99]', '    s_waitcnt lgkmcnt(0)',
                        '    s_sub_u32 s98, s98, s96', '    s_add_u32 s101, s101, s98']
            return ['    ' + i.text]

        def emit(J):
            for i in seg[J]:
                if cfg.stamps and i.meta.get('stamp'):
                    stamp()
                out.extend(fmt(i))
        stamp(True)
        stamp()
        if cfg.bar_stamps:
            out.append('    s_mov_b32 s100, 0')
            out.append('    s_mov_b32 s101, 0')
        emit('pre')
        J = 1
        for li, (l0, l1) in enumerate(loops):
            while J < l0:
                emit(J)
                J += 1
            stamp()
            out.append('    s_mov_b32 %s, %d' % (s(sCNT), (l1 - l0) // U - 1))
            out.append('L_loop%d:' % li)
            for r in range(U):
                sg = seg[l0 + r]
                lines = [fmt(i) for i in sg]
                if r == U - 1:
                    idx = [k for k, i in enumerate(sg) if i.kind == 'mfma']
                    k = idx[-2]
                    for i in sg[k + 1:]:
                        assert 'scc' not in i.wrregs(), i.text
                    lines.insert(k + 1, ['    s_sub_u32 %s, %s, 1' % (s(sCNT), s(sCNT))])
                    lines.append(['    s_cbranch_scc0 L_loop%d' % li])
                for x in lines:
                    out.extend(x)
            stamp()
            J = l1
        while J < NT:
            emit(J)
            J += 1
        stamp()
        if cfg.stamps:
            out.append('    s_waitcnt vmcnt(0)')
            stamp()
            stamp(True)
            if cfg.dbg_wg is not None:
                n_ = nst[0]
                out.append('    s_cmp_lg_u32 s2, %d' % cfg.dbg_wg)
                out.append('    s_cbranch_scc1 L_nodbg')
                out.append('    s_cmp_lg_u32 %s, 0' % s(sW))
                out.append('    s_cbranch_scc1 L_nodbg')
                out.append('    s_load_dwordx2 s[44:45], s[0:1], 32')
                out.append('    s_waitcnt lgkmcnt(0)')
                out.append('    s_and_b32 s45, s45, 0xffff')
                out.append('    s_mov_b32 s46, 256')
                out.append('    s_mov_b32 s47, 0x20000')
                out.append('    s_mov_b64 s[32:33], exec')
                out.append('    s_mov_b64 exec, 1')
                out.append('    v_mov_b32 v1, 0')
                vals = [('s%d' % (64 + 2 * (n_ - 1)), 's64')] + [('s%d' % (64 + 2 * (n_ - 2)), 's66')]
                vals += [('s%d' % (64 + 2 * (k + 1)), 's%d' % (64 + 2 * k)) for k in range(1, n_ - 2)]
                for k, (x, y) in enumerate(vals):
                    out.append('    s_sub_u32 s3, %s, %s' % (x, y))
                    out.append('    v_mov_b32 v0, s3')
                    out.append('    buffer_store_dword v0, v1, s[44:47], 0 offen offset:%d' % (4 * k))
                    out.append('    s_waitcnt vmcnt(0)')
                out.append('    s_mov_b64 exec, s[32:33]')
                out.append('L_nodbg:')
            out.append('    s_load_dwordx2 s[44:45], s[0:1], 40')
            out.append('    s_waitcnt lgkmcnt(0)')
            out.append('    s_and_b32 s45, s45, 0xffff')
            out.append('    s_mov_b32 s46, 0x100000')
            out.append('    s_mov_b32 s47, 0x20000')
            out.append('    s_lshl_b32 s3, s2, 2')
            out.append('    s_add_u32 s3, s3, %s' % s(sW))
            out.append('    s_lshl_b32 s3, s3, 7')
            extra = [100, 101] if cfg.bar_stamps else []
            for k, sr in enumerate([64 + 2 * k for k in range(nst[0])] + extra):
                out.append('    v_mov_b32 v0, s%d' % sr)
                out.append('    v_mov_b32 v1, s3')
                out.append('    s_mov_b64 s[32:33], exec')
                out.append('    s_mov_b64 exec, 1')
                out.append('    buffer_store_dword v0, v1, s[44:47], 0 offen offset:%d' % (4 * k))
                out.append('    s_waitcnt vmcnt(0)')
                out.append('    s_mov_b64 exec, s[32:33]')
        out.append('    s_or_b64 s[54:55], %s, %s' % (rng('s', sFLAG[0], 2), rng('s', sFLAG[1], 2)))
        out.append('    s_cbranch_scc1 L_slow')
        out.append('L_done:')
        out.append('    s_endpgm')
        for l in self.slowpath():
            out.append(l if l.endswith(':') else '    ' + l)
        return out, seg


HEADER = """; Kernarg layout for this problem (48 bytes, ptrs only, base s[0:1]):
; @launch grid=(256,1,1) block=(256,1,1) lds=%d
.amdgcn_target "amdgcn-amd-amdhsa--gfx950"
.text
.globl NAME_kernel
.p2align 8
.type NAME_kernel,@function
NAME_kernel:
"""
FOOTER = """
.section .rodata,"a"
.p2align 6
.amdhsa_kernel NAME_kernel
  .amdhsa_next_free_vgpr 512
  .amdhsa_next_free_sgpr 102
  .amdhsa_accum_offset 256
  .amdhsa_group_segment_fixed_size 0
  .amdhsa_kernarg_size 48
  .amdhsa_user_sgpr_count 2
  .amdhsa_user_sgpr_kernarg_segment_ptr 1
  .amdhsa_system_sgpr_workgroup_id_x 1
.end_amdhsa_kernel
"""


def generate(cfg):
    g = Gen(cfg)
    g.build()
    lines, seg = g.roll()
    lds = LDS_BYTES
    src = (HEADER % lds).replace('NAME', NAME) + '\n'.join(lines) + '\n' + FOOTER.replace('NAME', NAME)
    return src, g, seg


if __name__ == '__main__':
    cfg = Cfg()
    out = sys.argv[1] if len(sys.argv) > 1 else 'cdna_kernels/%s.s' % NAME
    for kv in sys.argv[2:]:
        k, val = kv.split('=')
        setattr(cfg, k, eval(val))
    src, g, seg = generate(cfg)
    open(out, 'w').write(src)
    print('nops inserted', g.nnops, 'total est cycles', est_cycles(g.prog), 'lines', src.count('\n'))
    print(' '.join('%s:%d' % (J, est_cycles(seg[J])) for J in seg))
```

```python
import sys, os, struct
from sched import *

NAME = 'standalone__gqa_softmax__near_ridge'


class Cfg:
    R = 3
    D = 3
    U = 3
    LAT = 7
    loopA = (2, 29)
    loopB = (34, 61)
    thr = 0x4b800000
    debug = False
    stamps = False
    nt = ' nt'
    st_mod = ' nt sc1'
    st_mod2 = ' nt sc1'
    no_dma = False
    no_qb = False
    no_drain = False
    pair_cvt = True
    exp_odd = True
    order = 'g44'
    qdepth = 2
    tplan = {1: [1], 4: [2]}
    v0_late = False
    start_stamps = False
    dbg_wg = None
    xp = ''
    bar_stamps = False
    dma_early = True
    qrd_lat = 8


SLOT = 16896
KOFF, VOFF = 0, 8448
CH = 1056
NT = 64
NS = NT * 6
DUMMY = 3 * SLOT
STAGE0 = DUMMY + 3 * CH
STAGEW = 24 * CH
LDS_BYTES = STAGE0 + 4 * STAGEW
C_SCALE = 1.4426950408889634 * (128 ** -0.5)


def f32bits(x):
    return struct.unpack('<I', struct.pack('<f', x))[0]


def O(b, t): return 32 * b + 4 * t
def S(buf, u): return 192 + 8 * buf + 4 * u
def P(buf): return 208 + 4 * buf
def CI(b): return 216 + 4 * b
vIDX, vK, vV, vDMA = 240, 241, 242, 243
def T(i): return 244 + i
vQ, vO = T(10), T(11)
def Q(b, s): return 16 * b + 4 * s
def KF(u, s): return 96 + 16 * u + 4 * s
def VF(t): return 128 + 4 * t
def L(k): return 160 + 4 * k
SA = 172
def QR(b, s): return 176 + 16 * b + 4 * s
def qoff(b): return 8192 * (b >> 1) + 512 * (b & 1)

sK, sV, sQ, sO = 4, 8, 12, 16
sDOFF, sDLDS, sSLOT, sDELTA, sWPART, sTMP, sW, sIDX = 20, 21, 22, 23, 24, 25, 26, 27
sC, sTHR, sMASK = 28, 30, 31
sFLAG = [34, 36]
sCNT, sPHASE, sQOFF, sOOFF = 38, 39, 40, 41
sSTG, sQI, sQREL, sQM, sQSO, sQT, sQT2 = 42, 44, 45, 46, 47, 48, 49
sOI, sOSO, sOT, sOT2, sOINC = 50, 51, 32, 33, 62


def v(n): return 'v%d' % n
def a(n): return 'a%d' % n
def s(n): return 's%d' % n


def V_(text, rd=(), wr=(), kind='valu'):
    return Ins(text, kind, rd, wr)


def S_(text, rd=(), wr=()):
    return Ins(text, 'salu', rd, list(wr) + ['scc'])


class Gen:
    def __init__(self, cfg):
        self.cfg = cfg
        self.bb = []
        self.flex = []
        self.iQK = {}
        self.iPV = {}
        self.iZ = {}
        self.pos = {}
        self.pstart = {}
        self.pend_ = {}

    def mk_qk(self, n, u, st):
        j, b = (n % 192) // 6, n % 6
        J = n // 6
        d = S(n & 1, u)
        h = n // 192
        rd = [(a(KF(u, st) + i), ('K', J, u, st, i)) for i in range(4)]
        rd += [(a(Q(b, st) + i), ('Q', h, b, st, i)) for i in range(4)]
        if st == 0:
            if j == 0:
                c = '0'
                srcc = []
            else:
                c = rng('v', CI(b), 4)
                srcc = regs('v', CI(b), 4)
                rd += [(r, ('CI', h, b)) for r in srcc]
        else:
            c = rng('v', d, 4)
            srcc = regs('v', d, 4)
            rd += [(v(d + i), ('Sp', n, u, st - 1, i)) for i in range(4)]
        tag = 'Sp' if st < 3 else 'S'
        wr = [(v(d + i), (tag, n, u, st, i) if st < 3 else ('S', n, u, i)) for i in range(4)]
        m = Ins('v_mfma_f32_16x16x32_bf16 %s, %s, %s, %s' % (rng('v', d, 4), rng('a', KF(u, st), 4),
                                                          rng('a', Q(b, st), 4), c),
                'mfma', rd, wr, srcc=srcc)
        m.meta['cls'] = 'xdl'
        return m

    def mk_pv(self, n, t):
        j, b = (n % 192) // 6, n % 6
        J = n // 6
        h = n // 192
        d = O(b, t)
        rd = [(a(VF(t) + i), ('V', J, t, i)) for i in range(4)]
        rd += [(v(P(n & 1) + i), ('P', n, i)) for i in range(4)]
        if j == 0:
            c = '0'
            srcc = []
        else:
            c = rng('v', d, 4)
            srcc = regs('v', d, 4)
            rd += [(v(d + i), ('O', h, b, t, j - 1, i)) for i in range(4)]
        wr = [(v(d + i), ('O', h, b, t, j, i)) for i in range(4)]
        m = Ins('v_mfma_f32_16x16x32_bf16 %s, %s, %s, %s' % (rng('v', d, 4), rng('a', VF(t), 4),
                                                          rng('v', P(n & 1), 4), c),
                'mfma', rd, wr, srcc=srcc)
        m.meta['cls'] = 'xdl'
        return m

    def mk_z(self, p):
        n0 = p - 2
        h, j, k = n0 // 192, (n0 % 192) // 6, (n0 % 6) // 2
        d = L(k)
        rd = [(v(P(0) + i), ('P', n0, i)) for i in range(4)] + [(v(P(1) + i), ('P', n0 + 1, i)) for i in range(4)]
        rd += [(a(SA + i), 'SA') for i in range(4)] + [(v(vIDX), 'IDX')]
        rd += [(a(d + i), ('L', h, k, j - 1, i)) for i in range(4)]
        wr = [(a(d + i), ('L', h, k, j, i)) for i in range(4)]
        m = Ins('v_smfmac_f32_16x16x64_bf16 %s, %s, %s, %s' % (rng('a', d, 4), rng('a', SA, 4),
                                                            rng('v', P(0), 8), v(vIDX)),
                'mfma', rd, wr, srcc=regs('a', d, 4))
        m.meta['cls'] = 'smf'
        return m

    def build_backbone(self):
        bb = self.bb
        for p in range(-1, NS + 1):
            qk = p + 1 if p + 1 < NS else None
            pv = p - 1 if 0 <= p - 1 < NS else None
            z = p >= 2 and p % 2 == 0
            self.pstart[p] = len(bb)
            seq = []
            qs = [('q', i >> 2, i & 3) for i in range(8)] if qk is not None else []
            ps = [('p', i) for i in range(8)] if pv is not None else []
            if self.cfg.order == 'alt' or not qs or not ps:
                for i in range(8):
                    seq += qs[i:i + 1] + ps[i:i + 1]
            elif self.cfg.order == 'g44':
                seq = qs[:4] + ps[:4] + qs[4:] + ps[4:]
            elif self.cfg.order == 'g88':
                seq = qs + ps
            zfirst = self.cfg.order != 'alt'
            zdone = not z
            npos = 0
            for it in seq:
                if it[0] == 'p' and not zdone and zfirst and qs:
                    self.iZ[p] = len(bb)
                    bb.append(self.mk_z(p))
                    zdone = True
                if it[0] == 'q':
                    m = self.mk_qk(qk, it[1], it[2])
                    self.iQK[(qk, it[1], it[2])] = len(bb)
                else:
                    m = self.mk_pv(pv, it[1])
                    self.iPV[(pv, it[1])] = len(bb)
                self.pos[(p, npos)] = len(bb)
                npos += 1
                bb.append(m)
                if it[0] == 'p' and not zdone:
                    self.iZ[p] = len(bb)
                    bb.append(self.mk_z(p))
                    zdone = True
            self.pend_[p] = len(bb) - 1
        for J in range(1, NT):
            k = self.pstart[6 * J]
            bb[k].meta['tile_start'] = J
            bb[k].meta['reserve_scal'] = True
            bb[k - 1].meta['reserve_scal'] = True

    def reserve_wait_slots(self):
        for J in range(1, NT):
            for u in range(2):
                for st in range(4):
                    self.bb[self.iQK[(6 * J, u, st)] - 1].meta['reserve_scal'] = True
        for J in range(0, NT):
            for t in range(8):
                self.bb[self.iPV[(6 * J, t)] - 1].meta['reserve_scal'] = True

    def add(self, ins, lo=None, hi=None, deps=(), prio=0):
        ins.lo, ins.hi, ins.prio = lo, hi, prio
        ins.deps = [d if isinstance(d, tuple) else (d, 0) for d in deps if d is not None]
        self.flex.append(ins)
        return ins

    def softmax(self):
        lastcvt = {}
        for n in range(NS):
            j, b, h = (n % 192) // 6, n % 6, n // 192
            buf = n & 1
            sr = [S(buf, u) + i for u in range(2) for i in range(4)]
            firstpv = self.iPV[(n, 0)]
            normal = j != 0 and (n, 15) in self.pos and n + 2 < NS
            stag = [('S', n, r >> 2, r & 3) for r in range(8)]
            pre = None
            if j == 0:
                t0, t1 = T(0), T(1)
                lo0 = self.iQK[(n, 0, 3)] + 4
                lo1 = self.iQK[(n, 1, 3)] + 4
                prevuse = self.t0_last if hasattr(self, 't0_last') else None
                c = self.add(V_('v_max3_f32 %s, %s, %s, %s' % (v(t0), v(sr[0]), v(sr[1]), v(sr[2])),
                                [(v(sr[i]), stag[i]) for i in range(3)], [(v(t0), ('m0', n))]), lo=lo0,
                             deps=[prevuse])
                c = self.add(V_('v_max_f32 %s, %s, %s' % (v(t0), v(t0), v(sr[3])),
                                [(v(t0), ('m0', n)), (v(sr[3]), stag[3])], [(v(t0), ('m1', n))]), lo=lo0, deps=[c])
                c = self.add(V_('v_max3_f32 %s, %s, %s, %s' % (v(t0), v(t0), v(sr[4]), v(sr[5])),
                                [(v(t0), ('m1', n)), (v(sr[4]), stag[4]), (v(sr[5]), stag[5])],
                                [(v(t0), ('m2', n))]), lo=lo1, deps=[c])
                c = self.add(V_('v_max3_f32 %s, %s, %s, %s' % (v(t0), v(t0), v(sr[6]), v(sr[7])),
                                [(v(t0), ('m2', n)), (v(sr[6]), stag[6]), (v(sr[7]), stag[7])],
                                [(v(t0), ('m3', n))]), lo=lo1, deps=[c])
                c = self.add(V_('v_mov_b32 %s, %s' % (v(t1), v(t0)), [(v(t0), ('m3', n))], [(v(t1), ('m3c', n))]),
                             deps=[c], lo=lo1)
                c = self.add(V_('v_permlane16_swap_b32 %s, %s' % (v(t0), v(t1)),
                                [(v(t0), ('m3', n)), (v(t1), ('m3c', n))],
                                [(v(t0), ('m4a', n)), (v(t1), ('m4b', n))], kind='perm'), deps=[(c, 1)], lo=lo1)
                c = self.add(V_('v_max_f32 %s, %s, %s' % (v(t0), v(t0), v(t1)),
                                [(v(t0), ('m4a', n)), (v(t1), ('m4b', n))], [(v(t0), ('m5', n))]), deps=[c], lo=lo1)
                c = self.add(V_('v_mov_b32 %s, %s' % (v(t1), v(t0)), [(v(t0), ('m5', n))], [(v(t1), ('m5c', n))]),
                             deps=[c], lo=lo1)
                c = self.add(V_('v_permlane32_swap_b32 %s, %s' % (v(t0), v(t1)),
                                [(v(t0), ('m5', n)), (v(t1), ('m5c', n))],
                                [(v(t0), ('m6a', n)), (v(t1), ('m6b', n))], kind='perm'), deps=[(c, 1)], lo=lo1)
                cis = []
                for i in range(4):
                    c = self.add(V_('v_min_f32 %s, -%s, -%s' % (v(CI(b) + i), v(t0), v(t1)),
                                    [(v(t0), ('m6a', n)), (v(t1), ('m6b', n))], [(v(CI(b) + i), ('CI', h, b))]),
                                 deps=[c], lo=lo1)
                    cis.append(c)
                self.t0_last = cis[-1]
                for cc in cis:
                    cc.hi = self.iQK[(n + 6, 0, 0)] - 2
                pre = []
                for r in range(8):
                    c = self.add(V_('v_add_f32 %s, %s, %s' % (v(sr[r]), v(CI(b)), v(sr[r])),
                                    [(v(CI(b)), ('CI', h, b)), (v(sr[r]), stag[r])], [(v(sr[r]), ('Ss', n, r))]),
                                 deps=[cis[0]], lo=lo1)
                    pre.append(c)
                stag = [('Ss', n, r) for r in range(8)]
            exps = []
            for r in range(8):
                e = V_('v_exp_f32 %s, %s' % (v(sr[r]), v(sr[r])), [(v(sr[r]), stag[r])],
                       [(v(sr[r]), ('E', n, r))], kind='trans')
                if normal:
                    g = self.pos[(n, 2 * r + (1 if self.cfg.exp_odd else 0))]
                    self.add(e, lo=g, hi=g, prio=5)
                else:
                    lo = self.iQK[(n, r >> 2, 3)] + 4
                    self.add(e, lo=lo, deps=[pre[r]] if pre else [])
                exps.append(e)
            for i in range(4):
                c = V_('v_cvt_pk_bf16_f32 %s, %s, %s' % (v(P(buf) + i), v(sr[2 * i]), v(sr[2 * i + 1])),
                       [(v(sr[2 * i]), ('E', n, 2 * i)), (v(sr[2 * i + 1]), ('E', n, 2 * i + 1))],
                       [(v(P(buf) + i), ('P', n, i))])
                lo = 0
                if n >= 2:
                    lo = self.iPV[(n - 2, 7)]
                    zp = n if n % 2 == 0 else n - 1
                    zp = (n - 2) - ((n - 2) % 2) + 2
                    lo = max(lo, self.iZ[zp])
                if normal:
                    if self.cfg.exp_odd:
                        g = self.pos[(n, 8)] if i < 2 else self.pstart[n + 1]
                    else:
                        g = self.pos[(n, (8 * (i >> 1) + 7) if self.cfg.pair_cvt else 4 * i + 3)]
                    assert g >= lo
                    self.add(c, lo=g, hi=g, deps=[(exps[2 * i], 1), (exps[2 * i + 1], 1)], prio=5)
                else:
                    hi = firstpv - 2
                    if n + 2 < NS:
                        hi = min(hi, self.iQK[(n + 2, i >> 1, 0)] - 1)
                    self.add(c, lo=lo, hi=hi, deps=[(exps[2 * i], 1), (exps[2 * i + 1], 1)])

    def inloop(self, J):
        return any(a_ <= J < b_ for a_, b_ in (self.cfg.loopA, self.cfg.loopB))

    def dma_group(self, JJ, lo, hi, deps, which=(0, 1, 2, 3)):
        cfg = self.cfg
        prev = self.m0chain
        base = (JJ % cfg.R) * SLOT
        for i in which:
            off = (0, 32, VOFF, VOFF + 32)[i]
            m = S_('s_add_u32 m0, %s, %d' % (s(sWPART), base + off), [s(sWPART)], ['m0'])
            self.add(m, lo=lo, hi=hi, deps=list(deps) + ([(prev, 1)] if prev else []))
            srd = sK if i < 2 else sV
            dma = Ins('buffer_load_dwordx4 %s, %s, %s offen%s%s lds' % (
                v(vDMA), rng('s', srd, 4), s(sDOFF), ' offset:1024' if i & 1 else '', cfg.nt), 'dma',
                [v(vDMA), 'm0', s(sDOFF)] + regs('s', srd, 4), [])
            dma.meta['tile'] = JJ
            self.add(dma, lo=lo, hi=hi, deps=[(m, 1)] + list(deps))
            prev = dma
        self.m0chain = prev
        self.lastdma[JJ] = prev
        return prev

    def kv_stream(self):
        cfg = self.cfg
        R, D = cfg.R, cfg.D
        self.bar = {}
        self.barwait = {}
        kreads = {}
        chain = None
        for J in range(0, NT):
            p3 = 6 * J + 3
            last = J == NT - 1
            if cfg.loopA[0] - 1 <= J < cfg.loopA[1] and not cfg.no_qb:
                self.q_stage_tile(J, dma_only=J < cfg.loopA[0])
            if cfg.loopB[0] <= J < cfg.loopB[1] and not cfg.no_drain:
                self.o_drain_tile(J)
            vr = []
            for t in range(8):
                for pp in range(2):
                    d = VF(t) + 2 * pp
                    ins = Ins('ds_read_b64_tr_b16 %s, %s offset:%d' % (
                        rng('a', d, 2), v(vV), (J % R) * SLOT + 512 * pp + 32 * t),
                        'ds', [v(vV)], [(a(d + i), ('V', J, t, 2 * pp + i)) for i in range(2)])
                    lo_ = self.iPV[(6 * J - 1, t)] if J > 0 else 0
                    hi_ = self.iPV[(6 * J, t)] - cfg.LAT
                    if J > 0:
                        deps = [(self.bar[J - 1], 0)]
                    else:
                        deps = [(self.bar_v0, 0)]
                        lo_ = max(lo_, self.bar_v0.lo)
                    self.add(ins, lo=lo_, hi=max(hi_, lo_), deps=deps)
                    vr.append(ins)
            e = self.pend_[p3]
            w = Ins('s_waitcnt vmcnt(0)', 'wait')
            w.meta['tile_wait'] = J + 1 if not last else 'all'
            self.add(w, lo=e - 2, hi=e - 1)
            bar = Ins('s_barrier', 'bar')
            bar.meta['assert_lg_done'] = set(vr) | set(kreads.get(J, []))
            self.add(bar, lo=e - 1, hi=e, deps=[(w, 1)])
            self.bar[J] = bar
            self.barwait[J] = w
            if cfg.start_stamps and J < 2:
                bar.meta['stamp'] = True
            if last:
                break
            kr = []
            for u in range(2):
                for st in range(4):
                    d = KF(u, st)
                    ins = Ins('ds_read_b128 %s, %s offset:%d' % (
                        rng('a', d, 4), v(vK), ((J + 1) % R) * SLOT + 512 * u + 64 * st), 'ds',
                        [v(vK)], [(a(d + i), ('K', J + 1, u, st, i)) for i in range(4)])
                    lo_ = self.iQK[(6 * J + 5, u, st)]
                    hi_ = self.iQK[(6 * J + 6, u, st)] - cfg.LAT
                    self.add(ins, lo=lo_, hi=max(hi_, lo_), deps=[(bar, 0)])
                    kr.append(ins)
            kreads[J + 1] = kr
            JJ = J + D
            if JJ < NT and not (cfg.no_dma and self.inloop(J)):
                lo_ = self.pstart[6 * J + 5] - 2
                hi_ = self.pend_[6 * J + 5] - 1
                if cfg.dma_early:
                    lo_ = self.pend_[6 * J + 3]
                    hi_ = self.pstart[6 * J + 5] + 2
                if J == 0:
                    inc = self.doff_final
                else:
                    inc = self.add(S_('s_add_u32 %s, %s, 8192' % (s(sDOFF), s(sDOFF)), [s(sDOFF)], [s(sDOFF)]),
                                   lo=self.pstart[6 * J + 2] + 1, hi=self.pend_[6 * J + 3] - 3, deps=[(chain, 1)])
                chain = self.dma_group(JJ, lo_, hi_, [(bar, 1), (inc, 1)])

    def q_stage_tile(self, J, dma_only=False):
        cfg = self.cfg
        lo, hi = self.pstart[6 * J + 1] + 2, self.pend_[6 * J + 3] - 3
        prev = self.qs_chain

        def sc(ins, h=hi):
            nonlocal prev
            prev = self.add(ins, lo=lo, hi=h, deps=[(prev, 1)] if prev else [])
            return prev
        sc(S_('s_add_u32 %s, %s, 1' % (s(sQI), s(sQI)), [s(sQI)], [s(sQI)]))
        sc(S_('s_add_u32 %s, %s, %d' % (s(sQREL), s(sQREL), CH), [s(sQREL)], [s(sQREL)]))
        sc(S_('s_add_u32 %s, %s, 1024' % (s(sQSO), s(sQSO)), [s(sQSO)], [s(sQSO)]))
        sc(S_('s_sub_u32 %s, %s, 24' % (s(sQM), s(sQI)), [s(sQI)], [s(sQM)]))
        sc(S_('s_ashr_i32 %s, %s, 31' % (s(sQM), s(sQM)), [s(sQM)], [s(sQM)]))
        sc(S_('s_and_b32 %s, %s, %s' % (s(sQT), s(sQREL), s(sQM)), [s(sQREL), s(sQM)], [s(sQT)]))
        sc(S_('s_andn2_b32 %s, 0x40000000, %s' % (s(sQT2), s(sQM)), [s(sQM)], [s(sQT2)]))
        so = sc(S_('s_or_b32 %s, %s, %s' % (s(sQT2), s(sQT2), s(sQSO)), [s(sQT2), s(sQSO)], [s(sQT2)]))
        wlo, whi = self.pstart[6 * J + 5] - 3, self.pstart[6 * J + 5] + 3
        if cfg.dma_early:
            wlo, whi = self.pend_[6 * J + 3] - 4, self.pend_[6 * J + 3] + 2
        m = S_('s_add_u32 m0, %s, %d' % (s(sQT), DUMMY), [s(sQT)], ['m0'])
        self.add(m, lo=wlo, hi=whi, deps=[(so, 1)] + ([(self.m0chain, 1)] if self.m0chain else []))
        dma = Ins('buffer_load_dwordx4 %s, %s, %s offen%s lds' % (v(vDMA), rng('s', sQ, 4), s(sQT2), cfg.nt), 'dma',
                  [v(vDMA), 'm0', s(sQT2)] + regs('s', sQ, 4), [])
        self.add(dma, lo=wlo, hi=whi, deps=[(m, 1)])
        self.m0chain = dma
        self.qs_chain = dma
        if dma_only:
            return
        t0, tb, ad = T(0), T(4), T(5)
        key = ('qc', J)
        lo = self.pstart[6 * J + 1] + 8
        hi = self.pend_[6 * J + 3] - 3
        rd = Ins('ds_read_b128 %s, %s' % (rng('v', t0, 4), v(ad)), 'ds', [v(ad)],
                 [(v(t0 + i), (key, 'raw', i)) for i in range(4)])
        self.add(rd, lo=lo, hi=self.pstart[6 * J + 2] - 2, deps=[(self.qc_chain, 1)] if self.qc_chain else [])
        c = None
        lo2 = self.pstart[6 * J + 2] + 1
        for i in range(4):
            r = t0 + i
            c = self.add(V_('v_lshlrev_b32 %s, 16, %s' % (v(tb), v(r)), [(v(r), (key, 'raw', i))], [(v(tb), (key, 'b', i))]),
                         lo=lo2, deps=[(rd, cfg.qrd_lat), c] if c else [(rd, cfg.qrd_lat)])
            c = self.add(V_('v_and_b32 %s, %s, %s' % (v(r), s(sMASK), v(r)), [(v(r), (key, 'raw', i)), s(sMASK)],
                            [(v(r), (key, 'c', i))]), lo=lo2, deps=[c])
            c = self.add(V_('v_mul_f32 %s, %s, %s' % (v(tb), s(sC), v(tb)), [(v(tb), (key, 'b', i)), s(sC)],
                            [(v(tb), (key, 'd', i))]), lo=lo2, deps=[c])
            c = self.add(V_('v_mul_f32 %s, %s, %s' % (v(r), s(sC), v(r)), [(v(r), (key, 'c', i)), s(sC)],
                            [(v(r), (key, 'e', i))]), lo=lo2, deps=[c])
            c = self.add(V_('v_cvt_pk_bf16_f32 %s, %s, %s' % (v(r), v(tb), v(r)),
                            [(v(r), (key, 'e', i)), (v(tb), (key, 'd', i))], [(v(r), (key, 'f', i))]), lo=lo2, deps=[c])
        wr = Ins('ds_write_b128 %s, %s' % (v(ad), rng('v', t0, 4)), 'dsw',
                 [v(ad)] + [(v(t0 + i), (key, 'f', i)) for i in range(4)], [])
        self.add(wr, lo=lo2, hi=hi + 20, deps=[(c, 1)])
        up = self.add(V_('v_add_u32 %s, %d, %s' % (v(ad), CH, v(ad)), [v(ad)], [v(ad)]), lo=lo2, hi=hi + 24,
                      deps=[(wr, 0)])
        self.qc_chain = up
        self.qc_lastwrite = wr

    def o_drain_tile(self, J):
        cfg = self.cfg
        ph = (J - cfg.loopB[0]) % cfg.U
        if ph == 0:
            lo, hi = self.pstart[6 * J] + 2, self.pend_[6 * J + 1]
            prev = self.od_chain

            def sc(ins):
                nonlocal prev
                prev = self.add(ins, lo=lo, hi=hi, deps=[(prev, 1)] if prev else [])
                return prev
            sc(S_('s_lshr_b32 %s, %s, 1' % (s(sOT), s(sOI)), [s(sOI)], [s(sOT)]))
            sc(S_('s_lshl_b32 %s, %s, 13' % (s(sOT), s(sOT)), [s(sOT)], [s(sOT)]))
            sc(S_('s_and_b32 %s, %s, 1' % (s(sOT2), s(sOI)), [s(sOI)], [s(sOT2)]))
            sc(S_('s_lshl_b32 %s, %s, 9' % (s(sOT2), s(sOT2)), [s(sOT2)], [s(sOT2)]))
            sc(S_('s_add_u32 %s, %s, %s' % (s(sOSO), s(sOT), s(sOT2)), [s(sOT), s(sOT2)], [s(sOSO)]))
            sc(S_('s_sub_u32 %s, %s, 6' % (s(sOT), s(sOI)), [s(sOI)], [s(sOT)]))
            sc(S_('s_ashr_i32 %s, %s, 31' % (s(sOT), s(sOT)), [s(sOT)], [s(sOT)]))
            sc(S_('s_andn2_b32 %s, 0x40000000, %s' % (s(sOT2), s(sOT)), [s(sOT)], [s(sOT2)]))
            sc(S_('s_or_b32 %s, %s, %s' % (s(sOSO), s(sOSO), s(sOT2)), [s(sOSO), s(sOT2)], [s(sOSO)]))
            sc(S_('s_and_b32 %s, %d, %s' % (s(sOINC), 2 * CH, s(sOT)), [s(sOT)], [s(sOINC)]))
            sc(S_('s_add_u32 %s, %s, 1' % (s(sOI), s(sOI)), [s(sOI)], [s(sOI)]))
            self.od_scal = prev
            self.od_chain = prev
        if ph > 1:
            return
        ad = T(8)
        key = ('od', J)
        lo = self.pstart[6 * J + 2] + 1
        rds = []
        for q in range(2):
            t0 = T(4 * q)
            rd = Ins('ds_read_b128 %s, %s offset:%d' % (rng('v', t0, 4), v(ad), CH * q), 'ds', [v(ad)],
                     [(v(t0 + i), (key, q, i)) for i in range(4)])
            self.add(rd, lo=lo, hi=lo + 6, deps=[(self.od_st, 1)] if self.od_st else [])
            rds.append(rd)
        up = self.add(V_('v_add_u32 %s, %s, %s' % (v(ad), s(sOINC), v(ad)), [v(ad), s(sOINC)], [v(ad)]),
                      lo=lo, hi=self.pend_[6 * J + 3], deps=[(rds[0], 0), (rds[1], 0), (self.od_scal, 1)])
        for q in range(2):
            t0 = T(4 * q)
            st = Ins('buffer_store_dwordx4 %s, %s, %s, %s offen offset:%d%s' % (
                rng('v', t0, 4), v(vO), rng('s', sO, 4), s(sOSO), 128 * ph + 64 * q, cfg.st_mod), 'vstore',
                [(v(t0 + i), (key, q, i)) for i in range(4)] + [v(vO), s(sOSO)] + regs('s', sO, 4), [])
            self.add(st, lo=lo + 10, hi=self.pend_[6 * J + 3] - 3, deps=[(rds[q], cfg.qrd_lat + 1), (self.od_scal, 1)])
            self.od_st = st
        self.od_chain = self.od_st if ph == 1 else self.od_chain

    def epilogue(self, h):
        cfg = self.cfg
        self.st_last = None
        prevchain = getattr(self, 'sq_chain', None)
        lread = {}
        for b in range(6):
            n = 192 * h + 186 + b
            k, e = b >> 1, b & 1
            zi = self.iZ[192 * h + 188 + 2 * k]
            x = T(2 + (b & 1))
            y = T(4)
            nxt = n + 6 if h == 0 else None
            jl = 31
            prevx = getattr(self, 'xlast', {}).get(b & 1)
            r0 = self.add(V_('v_accvgpr_read_b32 %s, %s' % (v(x), a(L(k) + 2 * e)),
                             [(a(L(k) + 2 * e), ('L', h, k, jl, 2 * e))], [(v(x), ('l0', h, b))]),
                          lo=zi + 5, deps=[prevx])
            r1 = self.add(V_('v_accvgpr_read_b32 %s, %s' % (v(y), a(L(k) + 2 * e + 1)),
                             [(a(L(k) + 2 * e + 1), ('L', h, k, jl, 2 * e + 1))], [(v(y), ('l1', h, b))]),
                          lo=zi + 5, deps=[getattr(self, 'ylast', None)])
            lread[b] = (r0, r1)
            ad = self.add(V_('v_add_f32 %s, %s, %s' % (v(x), v(x), v(y)),
                             [(v(x), ('l0', h, b)), (v(y), ('l1', h, b))], [(v(x), ('l', h, b))]), deps=[r0, r1],
                          lo=zi + 5)
            self.ylast = ad
            cmp_ = self.add(V_('v_cmp_nge_f32 vcc, %s, %s' % (s(sTHR), v(x)), [s(sTHR), (v(x), ('l', h, b))],
                               [('vcc', ('chk', h, b))]), deps=[ad, getattr(self, 'vcc_last', None)], lo=zi + 5)
            fl = self.add(S_('s_or_b64 %s, %s, vcc' % (rng('s', sFLAG[h], 2), rng('s', sFLAG[h], 2)),
                             [('vcc', ('chk', h, b))] + regs('s', sFLAG[h], 2), regs('s', sFLAG[h], 2)),
                          deps=[(cmp_, 1)], lo=zi + 5)
            self.vcc_last = (fl, 1)
            rc = self.add(V_('v_rcp_f32 %s, %s' % (v(x), v(x)), [(v(x), ('l', h, b))], [(v(x), ('r', h, b))],
                             kind='trans'), deps=[cmp_], lo=zi + 5)
            fl.hi = None
            so = None
            if h == 1:
                so = self.add(Ins('s_mov_b32 %s, %d' % (s(sOOFF), h * 98304 + qoff(b)), 'salu', [], [s(sOOFF)]),
                              deps=[(self.st_last, 1)] if self.st_last is not None and b > 0 else [], lo=zi)
            last_in_block = None
            for tau in range(4):
                t0, t1 = 2 * tau, 2 * tau + 1
                muls = {}
                lo = self.iPV[(n, t1)] + 5
                for t in (t0, t1):
                    for i in range(4):
                        r = O(b, t) + i
                        muls[(t, i)] = self.add(V_('v_mul_f32 %s, %s, %s' % (v(r), v(x), v(r)),
                                                   [(v(x), ('r', h, b)), (v(r), ('O', h, b, t, jl, i))],
                                                   [(v(r), ('On', h, b, t, i))]), lo=lo, deps=[(rc, 1)])
                base = O(b, t0)
                cv = []
                src = [(t0, 0), (t0, 2), (t1, 0), (t1, 2)]
                for q, (t, i) in enumerate(src):
                    d = base + q
                    deps = [muls[(t, i)], muls[(t, i + 1)]]
                    if q == 1:
                        deps.append(cv[0])
                    if q == 2:
                        deps += [cv[1]]
                    if q == 3:
                        deps += [cv[1], cv[2]]
                    c = self.add(V_('v_cvt_pk_bf16_f32 %s, %s, %s' % (v(d), v(O(b, t) + i), v(O(b, t) + i + 1)),
                                    [(v(O(b, t) + i), ('On', h, b, t, i)), (v(O(b, t) + i + 1), ('On', h, b, t, i + 1))],
                                    [(v(d), ('Oc', h, b, tau, q))]), lo=lo, deps=deps)
                    cv.append(c)
                s0 = self.add(V_('v_permlane16_swap_b32 %s, %s' % (v(base), v(base + 2)),
                                 [(v(base), ('Oc', h, b, tau, 0)), (v(base + 2), ('Oc', h, b, tau, 2))],
                                 [(v(base), ('Os', h, b, tau, 0)), (v(base + 2), ('Os', h, b, tau, 2))], kind='perm'),
                              deps=[(cv[0], 1), (cv[2], 1)], lo=lo)
                s1 = self.add(V_('v_permlane16_swap_b32 %s, %s' % (v(base + 1), v(base + 3)),
                                 [(v(base + 1), ('Oc', h, b, tau, 1)), (v(base + 3), ('Oc', h, b, tau, 3))],
                                 [(v(base + 1), ('Os', h, b, tau, 1)), (v(base + 3), ('Os', h, b, tau, 3))],
                                 kind='perm'), deps=[(cv[1], 1), (cv[3], 1)], lo=lo)
                hi = None
                if h == 0:
                    st = Ins('ds_write_b128 %s, %s offset:%d' % (v(T(8)), rng('v', base, 4), CH * (4 * b + tau)), 'dsw',
                             [(v(base + q), ('Os', h, b, tau, q)) for q in range(4)] + [(v(T(8)), 'ostage')], [])
                    st.meta['cost'] = 8
                    hi = self.iPV[(nxt, t0)] - 2
                    deps = [(s0, 1), (s1, 1), (self.ostage_addr, 1)]
                    deps += [(x, 0) for x in self.qb_reads[2 * (b >> 1)] + self.qb_reads[2 * (b >> 1) + 1]]
                    self.add(st, lo=lo, hi=hi, deps=deps)
                else:
                    st = Ins('buffer_store_dwordx4 %s, %s, %s, %s offen offset:%d%s' % (
                        rng('v', base, 4), v(vO), rng('s', sO, 4), s(sOOFF), 64 * tau, cfg.st_mod2), 'vstore',
                        [(v(base + q), ('Os', h, b, tau, q)) for q in range(4)] + [v(vO), s(sOOFF)] + regs('s', sO, 4), [])
                    self.add(st, lo=lo, hi=hi, deps=[(s0, 1), (s1, 1), (so, 1)])
                if nxt is not None:
                    for q in (2, 3):
                        cv[q].hi = min(self.iPV[(nxt, t1)] - 2, cv[q].hi if cv[q].hi is not None else 10 ** 9)
                self.st_last = st
                last_in_block = muls[(t1, 3)]
            self.xlast = getattr(self, 'xlast', {})
            self.xlast[b & 1] = last_in_block
        if h == 0:
            for k in range(3):
                zi_next = self.iZ[192 + 2 + 2 * k]
                for i in range(4):
                    bb_ = 2 * k + (i >> 1)
                    self.add(V_('v_accvgpr_write_b32 %s, 0' % a(L(k) + i), [],
                                [(a(L(k) + i), ('L', 1, k, -1, i))]),
                             deps=[lread[bb_][i & 1]], hi=zi_next - 2, lo=0)

    def qb(self):
        cfg = self.cfg
        lo = self.pstart[6 * cfg.loopA[1]] + 2
        ad = self.add(V_('v_add_u32 %s, %s, %s' % (v(T(5)), s(sSTG), v(vK)), [s(sSTG), v(vK)], [(v(T(5)), 'qsaddr')]),
                      lo=lo, hi=self.pstart[184], deps=[(self.qc_chain, 1)] if self.qc_chain else [])
        self.qb_reads = {}
        for b in range(6):
            nlast, nfirst = 186 + b, 192 + b
            lst = []
            for st in range(4):
                d = Q(b, st)
                ins = Ins('ds_read_b128 %s, %s offset:%d' % (
                    rng('a', d, 4), v(T(5)), (b >> 1) * 8 * CH + 512 * (b & 1) + 64 * st), 'ds',
                    [(v(T(5)), 'qsaddr')], [(a(d + i), ('Q', 1, b, st, i)) for i in range(4)])
                lo_ = max(self.iQK[(nlast, 0, st)], self.iQK[(nlast, 1, st)])
                self.add(ins, lo=lo_, hi=self.iQK[(nfirst, 0, st)] - cfg.LAT, deps=[(ad, 1)])
                lst.append(ins)
            self.qb_reads[b] = lst
        self.ostage_addr = self.add(V_('v_add_u32 %s, %s, %s' % (v(T(8)), s(43), v(vDMA)), [s(43), v(vDMA)],
                                       [(v(T(8)), 'ostage')]), lo=lo, hi=self.pstart[184])

    RAW = 96

    def q_load(self, b, add):
        cfg = self.cfg
        out = []
        so = add(Ins('s_mov_b32 %s, %d' % (s(sQOFF), qoff(b)), 'salu', [], [s(sQOFF)]), None)
        for st in range(4):
            d = self.RAW + 16 * b + 4 * st
            out.append(add(Ins('buffer_load_dwordx4 %s, %s, %s, %s offen offset:%d%s' % (
                rng('v', d, 4), v(vQ), rng('s', sQ, 4), s(sQOFF), 64 * st, cfg.nt), 'vload',
                [v(vQ), s(sQOFF)] + regs('s', sQ, 4), [(v(d + i), ('QA', b, st, i)) for i in range(4)]), so))
        return out

    def prologue(self):
        cfg = self.cfg
        R = cfg.R
        o = []

        def e(text, kind='valu', rd=(), wr=()):
            i = Ins(text, kind, rd, wr)
            o.append(i)
            return i

        def srd_setup(srd, ptr, per):
            e('s_mul_i32 s3, s2, %d' % per, 'salu')
            e('s_add_u32 %s, %s, s3' % (s(srd), s(ptr)), 'salu')
            e('s_addc_u32 %s, %s, 0' % (s(srd + 1), s(ptr + 1)), 'salu')
            e('s_and_b32 %s, %s, 0xffff' % (s(srd + 1), s(srd + 1)), 'salu')
            e('s_mov_b32 %s, %d' % (s(srd + 2), per), 'salu')
            e('s_mov_b32 %s, 0x20000' % s(srd + 3), 'salu')

        def dma(J, which):
            last = None
            for i in which:
                off = (0, 32, VOFF, VOFF + 32)[i]
                e('s_add_u32 m0, %s, %d' % (s(sWPART), (J % R) * SLOT + off), 'salu', wr=['m0'])
                srd = sK if i < 2 else sV
                e('s_nop 0', 'nop')
                last = e('buffer_load_dwordx4 %s, %s, %s offen%s%s lds' % (
                    v(vDMA), rng('s', srd, 4), s(sDOFF), ' offset:1024' if i & 1 else '', cfg.nt), 'dma', rd=['m0'])
                last.meta['tile'] = J
            return last

        def addq(ins, dep):
            o.append(ins)
            return ins
        e('s_cmp_ge_u32 s2, 256', 'salu')
        e('s_cbranch_scc1 L_done', 'branch')
        e('s_load_dwordx4 s[44:47], s[0:1], 0', 'salu')
        e('s_load_dwordx4 s[48:51], s[0:1], 16', 'salu')
        t = [T(i) for i in range(10)]
        e('v_lshrrev_b32 %s, 6, v0' % v(t[0]), wr=[v(t[0])])
        e('v_and_b32 %s, 63, v0' % v(t[1]), wr=[v(t[1])])
        e('v_readfirstlane_b32 %s, %s' % (s(sW), v(t[0])), rd=[v(t[0])], wr=[s(sW)])
        e('v_and_b32 %s, 15, %s' % (v(t[2]), v(t[1])))
        e('v_lshrrev_b32 %s, 4, %s' % (v(t[3]), v(t[1])))
        e('v_lshlrev_b32 %s, 4, %s' % (v(vDMA), v(t[1])))
        e('v_lshl_add_u32 %s, %s, 11, %s' % (v(vDMA), v(t[0]), v(vDMA)), wr=[v(vDMA)])
        e('v_mul_u32_u24 %s, %d, %s' % (v(t[4]), 24576, v(t[0])))
        e('v_and_b32 %s, 7, %s' % (v(t[5]), v(t[2])))
        e('v_lshl_add_u32 %s, %s, 10, %s' % (v(t[4]), v(t[5]), v(t[4])))
        e('v_lshrrev_b32 %s, 3, %s' % (v(t[5]), v(t[2])))
        e('v_lshl_add_u32 %s, %s, 8, %s' % (v(t[4]), v(t[5]), v(t[4])))
        e('v_lshl_add_u32 %s, %s, 4, %s' % (v(vQ), v(t[3]), v(t[4])), wr=[v(vQ)])
        e('s_mul_i32 %s, %s, %d' % (s(sWPART), s(sW), 2 * CH), 'salu', rd=[s(sW)], wr=[s(sWPART)])
        e('s_mov_b32 %s, 0' % s(sDOFF), 'salu')
        e('s_waitcnt lgkmcnt(0)', 'wait')
        if cfg.start_stamps:
            e('s_nop 0', 'nop').meta['stamp'] = True
        srd_setup(sK, 46, 524288)
        srd_setup(sQ, 44, 196608)
        k0 = dma(0, (0, 1))
        q0 = self.q_load(0, addq)
        for b_ in range(1, cfg.qdepth):
            self.q_load(b_, addq)
        srd_setup(sV, 48, 524288)
        v0 = dma(0, (2, 3))
        self.lastdma[0] = v0
        srd_setup(sO, 50, 196608)
        e('v_and_b32 %s, 1, %s' % (v(t[5]), v(t[3])))
        e('v_lshl_add_u32 %s, %s, 5, %s' % (v(t[4]), v(t[5]), v(t[4])))
        e('v_lshrrev_b32 %s, 1, %s' % (v(t[5]), v(t[3])))
        e('v_lshl_add_u32 %s, %s, 4, %s' % (v(vO), v(t[5]), v(t[4])), wr=[v(vO)])
        e('v_and_b32 %s, 7, %s' % (v(t[4]), v(t[2])))
        e('v_mul_u32_u24 %s, %d, %s' % (v(vK), CH, v(t[4])))
        e('v_lshrrev_b32 %s, 3, %s' % (v(t[4]), v(t[2])))
        e('v_lshl_add_u32 %s, %s, 8, %s' % (v(vK), v(t[4]), v(vK)))
        e('v_lshl_add_u32 %s, %s, 4, %s' % (v(vK), v(t[3]), v(vK)), wr=[v(vK)])
        e('v_bfe_u32 %s, %s, 2, 3' % (v(t[4]), v(t[1])))
        e('v_mul_u32_u24 %s, %d, %s' % (v(vV), CH, v(t[4])))
        e('v_lshrrev_b32 %s, 5, %s' % (v(t[4]), v(t[1])))
        e('v_lshl_add_u32 %s, %s, 8, %s' % (v(vV), v(t[4]), v(vV)))
        e('v_and_b32 %s, 3, %s' % (v(t[4]), v(t[1])))
        e('v_lshl_add_u32 %s, %s, 3, %s' % (v(vV), v(t[4]), v(vV)))
        e('v_add_u32 %s, %d, %s' % (v(vV), VOFF, v(vV)), wr=[v(vV)])
        e('s_mov_b32 %s, 0x%08x' % (s(sC), f32bits(C_SCALE)), 'salu')
        e('s_mov_b32 %s, 0x%08x' % (s(sC + 1), f32bits(C_SCALE)), 'salu')
        e('s_mov_b32 %s, 0x%08x' % (s(sTHR), cfg.thr), 'salu')
        e('s_mov_b32 %s, 0xffff0000' % s(sMASK), 'salu')
        e('s_mov_b64 %s, 0' % rng('s', sFLAG[0], 2), 'salu')
        e('s_mov_b64 %s, 0' % rng('s', sFLAG[1], 2), 'salu')
        e('s_mul_i32 %s, %s, %d' % (s(sSTG), s(sW), STAGEW), 'salu')
        e('s_add_u32 %s, %s, %d' % (s(sQREL), s(sSTG), STAGE0 - DUMMY), 'salu')
        e('s_add_u32 %s, %s, %d' % (s(sSTG), s(sSTG), STAGE0), 'salu')
        e('s_lshl_b32 s3, %s, 11' % s(sW), 'salu')
        e('s_sub_u32 s43, %s, s3' % s(sSTG), 'salu')
        e('s_sub_u32 s63, s43, %d' % (3 * CH), 'salu')
        e('s_mov_b32 %s, -2' % s(sQI), 'salu')
        e('s_sub_u32 %s, %s, %d' % (s(sQREL), s(sQREL), 2 * CH), 'salu')
        e('s_mul_i32 %s, %s, %d' % (s(sQSO), s(sW), 24576 - 2048), 'salu')
        e('s_add_u32 %s, %s, %d' % (s(sQSO), s(sQSO), 98304 - 2048), 'salu')
        e('s_mov_b32 %s, 0' % s(sOI), 'salu')
        e('v_and_b32 %s, 1, %s' % (v(t[4]), v(t[2])))
        e('v_mov_b32 %s, 0x4444' % v(t[5]))
        e('v_mov_b32 %s, 0xeeee' % v(t[6]))
        e('v_cmp_eq_u32 vcc, 0, %s' % v(t[4]), wr=['vcc'])
        e('v_cndmask_b32 %s, %s, %s, vcc' % (v(vIDX), v(t[6]), v(t[5])), rd=['vcc'], wr=[(v(vIDX), 'IDX')])
        e('v_bfe_u32 %s, %s, 1, 1' % (v(t[4]), v(t[2])))
        e('v_lshrrev_b32 %s, 1, %s' % (v(t[5]), v(t[3])))
        e('v_cmp_eq_u32 vcc, %s, %s' % (v(t[4]), v(t[5])), wr=['vcc'])
        e('v_mov_b32 %s, 0x3f803f80' % v(t[6]))
        e('v_cndmask_b32 %s, 0, %s, vcc' % (v(t[4]), v(t[6])), rd=['vcc'], wr=[v(t[4])])
        for i in range(4):
            e('v_accvgpr_write_b32 %s, %s' % (a(SA + i), v(t[4])), rd=[v(t[4])], wr=[(a(SA + i), 'SA')])
        for k in range(3):
            for i in range(4):
                e('v_accvgpr_write_b32 %s, 0' % a(L(k) + i), wr=[(a(L(k) + i), ('L', 0, k, -1, i))])
        w = e('s_waitcnt vmcnt(0)', 'wait')
        w.meta['vm_for'] = q0[-1]
        w.meta['stamp'] = True
        if cfg.qdepth < 6:
            self.q_load(cfg.qdepth, addq)
        b = 0
        for st in range(4):
            d = self.RAW + 16 * b + 4 * st
            tb = 8 * (st & 1)
            for i in range(4):
                e('v_lshlrev_b32 %s, 16, %s' % (v(tb + 2 * i), v(d + i)), rd=[(v(d + i), ('QA', b, st, i))],
                  wr=[v(tb + 2 * i)])
                e('v_and_b32 %s, %s, %s' % (v(tb + 2 * i + 1), s(sMASK), v(d + i)), rd=[v(d + i)],
                  wr=[v(tb + 2 * i + 1)])
            for i in range(4):
                e('v_pk_mul_f32 %s, %s, %s' % (rng('v', tb + 2 * i, 2), rng('v', tb + 2 * i, 2), rng('s', sC, 2)),
                  rd=regs('v', tb + 2 * i, 2), wr=regs('v', tb + 2 * i, 2))
            for i in range(4):
                e('v_cvt_pk_bf16_f32 %s, %s, %s' % (v(d + i), v(tb + 2 * i), v(tb + 2 * i + 1)),
                  rd=regs('v', tb + 2 * i, 2), wr=[v(d + i)])
            for i in range(4):
                e('v_accvgpr_write_b32 %s, %s' % (a(Q(b, st) + i), v(d + i)), rd=[v(d + i)],
                  wr=[(a(Q(b, st) + i), ('Q', 0, b, st, i))])
        e('s_barrier', 'bar')
        for u in range(2):
            for st in range(4):
                d = KF(u, st)
                e('ds_read_b128 %s, %s offset:%d' % (rng('a', d, 4), v(vK), 512 * u + 64 * st), 'ds',
                  rd=[v(vK)], wr=[(a(d + i), ('K', 0, u, st, i)) for i in range(4)])
        return o

    def early(self):
        cfg = self.cfg
        R, D = cfg.R, cfg.D
        firstop = {}
        chain = None
        qprev = None
        tiles = list(range(1, D))
        plan = {b_: cfg.tplan.get(b_, []) for b_ in range(1, 6)}
        assert sorted(sum(plan.values(), [])) == tiles
        doff = None
        self.m0chain = None
        for b in range(1, 6):
            first = None
            for st in range(4):
                dl = self.iQK[(b, 0, st)] - 2
                for i in range(4):
                    r = self.RAW + 16 * b + 4 * st + i
                    tb = T(5 + (i & 1))
                    key = (b, st, i)
                    c = self.add(V_('v_lshlrev_b32 %s, 16, %s' % (v(tb), v(r)), [(v(r), ('QA', b, st, i))],
                                    [(v(tb), ('qb', key))]), lo=0, deps=[chain])
                    if first is None:
                        first = c
                    c = self.add(V_('v_and_b32 %s, %s, %s' % (v(r), s(sMASK), v(r)), [(v(r), ('QA', b, st, i)), s(sMASK)],
                                    [(v(r), ('qc', key))]), lo=0, deps=[c])
                    c = self.add(V_('v_mul_f32 %s, %s, %s' % (v(tb), s(sC), v(tb)), [(v(tb), ('qb', key)), s(sC)],
                                    [(v(tb), ('qd', key))]), lo=0, deps=[c])
                    c = self.add(V_('v_mul_f32 %s, %s, %s' % (v(r), s(sC), v(r)), [(v(r), ('qc', key)), s(sC)],
                                    [(v(r), ('qe', key))]), lo=0, deps=[c])
                    c = self.add(V_('v_cvt_pk_bf16_f32 %s, %s, %s' % (v(r), v(tb), v(r)),
                                    [(v(r), ('qe', key)), (v(tb), ('qd', key))], [(v(r), ('qf', key))]), lo=0, deps=[c])
                    c = self.add(V_('v_accvgpr_write_b32 %s, %s' % (a(Q(b, st) + i), v(r)), [(v(r), ('qf', key))],
                                    [(a(Q(b, st) + i), ('Q', 0, b, st, i))]), lo=0, hi=dl, deps=[c])
                    chain = c
            firstop[b] = first
            if cfg.start_stamps:
                first.meta['stamp'] = True
            mark = len(self.flex)
            if b + cfg.qdepth <= 5:
                def addq(ins, dep, first=first):
                    nonlocal qprev
                    deps = [(first, 1)]
                    if dep is not None:
                        deps.append((dep, 1))
                    elif qprev is not None:
                        deps.append((qprev, 1))
                    self.add(ins, lo=0, hi=None, deps=deps, prio=3)
                    ins.hi = None
                    return ins
                ql = self.q_load(b + cfg.qdepth, addq)
                qprev = ql[-1]
            for J in plan[b]:
                doff = self.add(Ins('s_mov_b32 %s, %d' % (s(sDOFF), J * 8192), 'salu', [], [s(sDOFF)]), lo=0,
                                deps=[(first, 1)] + ([(self.m0chain, 1)] if self.m0chain else []))
                self.dma_group(J, 0, None, [(doff, 1)])
            for x in self.flex[mark:]:
                x.meta['asap'] = True
        self.qoff_last = qprev
        self.qc_chain = self.add(V_('v_add_u32 %s, s63, %s' % (v(T(5)), v(vDMA)), [v(vDMA)], [v(T(5))]), lo=0,
                                 hi=self.pstart[6 * cfg.loopA[0]] - 4, deps=[chain])
        self.doff_final = self.add(Ins('s_mov_b32 %s, %d' % (s(sDOFF), D * 8192), 'salu', [], [s(sDOFF)]), lo=0,
                                   hi=self.pstart[5] - 4, deps=[(self.m0chain, 1)])
        k = self.pstart[0] + 1
        w = Ins('s_waitcnt vmcnt(0)', 'wait')
        w.meta['vm_for_tile0'] = True
        self.add(w, lo=k, hi=k)
        self.bar_v0 = Ins('s_barrier', 'bar')
        self.add(self.bar_v0, lo=k + 1, hi=k + 1, deps=[(w, 1)])
        self.v0wait = w

    def slowpath(self):
        o = []
        e = o.append
        e('L_slow:')
        e('s_waitcnt vmcnt(0) lgkmcnt(0)')
        e('s_mul_i32 s52, %s, %d' % (s(sW), SLOT))
        e('v_and_b32 v1, 63, %s' % v(vDMA))
        e('v_lshrrev_b32 v162, 4, %s' % v(vDMA))
        e('v_and_b32 v162, 63, v162')
        e('v_and_b32 v2, 15, v162')
        e('v_lshrrev_b32 v3, 4, v162')
        e('v_and_b32 v4, 7, v2')
        e('v_mul_u32_u24 v160, %d, v4' % CH)
        e('v_lshrrev_b32 v4, 3, v2')
        e('v_lshl_add_u32 v160, v4, 8, v160')
        e('v_lshl_add_u32 v160, v3, 4, v160')
        e('v_add_u32 v160, s52, v160')
        e('v_bfe_u32 v4, v162, 2, 3')
        e('v_mul_u32_u24 v161, %d, v4' % CH)
        e('v_lshrrev_b32 v4, 5, v162')
        e('v_lshl_add_u32 v161, v4, 8, v161')
        e('v_and_b32 v4, 3, v162')
        e('v_lshl_add_u32 v161, v4, 3, v161')
        e('v_add_u32 v161, %d, v161' % VOFF)
        e('v_add_u32 v161, s52, v161')
        e('v_lshlrev_b32 v162, 4, v162')
        e('s_mov_b32 s53, 0')
        e('L_slow_head:')
        e('s_cmp_eq_u32 s53, 0')
        e('s_cselect_b64 s[54:55], %s, %s' % (rng('s', sFLAG[0], 2), rng('s', sFLAG[1], 2)))
        e('s_cmp_eq_u64 s[54:55], 0')
        e('s_cbranch_scc1 L_slow_next')
        e('s_mov_b32 s56, 0')
        e('L_slow_blk:')
        e('s_mul_i32 s57, s53, 98304')
        e('s_lshr_b32 s58, s56, 1')
        e('s_lshl_b32 s58, s58, 13')
        e('s_add_u32 s57, s57, s58')
        e('s_and_b32 s58, s56, 1')
        e('s_lshl_b32 s58, s58, 9')
        e('s_add_u32 s57, s57, s58')
        for st in range(4):
            e('buffer_load_dwordx4 v[%d:%d], %s, %s, s57 offen offset:%d' % (
                4 * st, 4 * st + 3, v(vQ), rng('s', sQ, 4), 64 * st))
        e('s_waitcnt vmcnt(0)')
        for i in range(16):
            e('v_lshlrev_b32 v42, 16, v%d' % i)
            e('v_and_b32 v43, %s, v%d' % (s(sMASK), i))
            e('v_mul_f32 v42, %s, v42' % s(sC))
            e('v_mul_f32 v43, %s, v43' % s(sC))
            e('v_cvt_pk_bf16_f32 v%d, v42, v43' % (16 + i))
        e('v_mov_b32 v32, 0xff800000')
        e('v_mov_b32 v33, 0')
        for i in range(32):
            e('v_mov_b32 v%d, 0' % (64 + i))
        e('s_mul_i32 s59, s53, 262144')
        e('s_mov_b32 s60, 0')
        e('L_slow_tile:')
        for c in range(8):
            for which, srd in ((0, sK), (VOFF, sV)):
                e('s_add_u32 m0, s52, %d' % (which + c * CH))
                e('s_add_u32 s61, s59, %d' % (c * 1024))
                e('buffer_load_dwordx4 v162, %s, s61 offen lds' % rng('s', srd, 4))
        e('s_waitcnt vmcnt(0)')
        for u in range(2):
            for st in range(4):
                d = 96 + 16 * u + 4 * st
                e('ds_read_b128 v[%d:%d], v160 offset:%d' % (d, d + 3, 512 * u + 64 * st))
        e('s_waitcnt lgkmcnt(0)')
        for t in range(8):
            for pp in range(2):
                d = 128 + 4 * t + 2 * pp
                e('ds_read_b64_tr_b16 v[%d:%d], v161 offset:%d' % (d, d + 1, 512 * pp + 32 * t))
            if t == 3:
                e('s_waitcnt lgkmcnt(0)')
        e('s_waitcnt lgkmcnt(0)')
        for u in range(2):
            for st in range(4):
                d = 34 + 4 * u
                k = 96 + 16 * u + 4 * st
                e('v_mfma_f32_16x16x32_bf16 v[%d:%d], v[%d:%d], v[%d:%d], %s' % (
                    d, d + 3, k, k + 3, 16 + 4 * st, 19 + 4 * st, '0' if st == 0 else 'v[%d:%d]' % (d, d + 3)))
        e('s_nop 15')
        e('v_max3_f32 v42, v34, v35, v36')
        e('v_max3_f32 v42, v42, v37, v38')
        e('v_max3_f32 v42, v42, v39, v40')
        e('v_max3_f32 v42, v42, v41, v32')
        e('v_mov_b32 v43, v42')
        e('s_nop 2')
        e('v_permlane16_swap_b32 v42, v43')
        e('s_nop 2')
        e('v_max_f32 v42, v42, v43')
        e('v_mov_b32 v43, v42')
        e('s_nop 2')
        e('v_permlane32_swap_b32 v42, v43')
        e('s_nop 2')
        e('v_max_f32 v42, v42, v43')
        e('v_sub_f32 v44, v32, v42')
        e('v_exp_f32 v44, v44')
        e('v_mov_b32 v32, v42')
        for r in range(8):
            e('v_sub_f32 v%d, v%d, v42' % (34 + r, 34 + r))
        for r in range(8):
            e('v_exp_f32 v%d, v%d' % (34 + r, 34 + r))
        e('s_nop 1')
        e('v_mul_f32 v33, v33, v44')
        for i in range(4):
            e('v_cvt_pk_bf16_f32 v%d, v%d, v%d' % (48 + i, 34 + 2 * i, 35 + 2 * i))
        for i in range(4):
            e('v_lshlrev_b32 v45, 16, v%d' % (48 + i))
            e('v_and_b32 v46, %s, v%d' % (s(sMASK), 48 + i))
            e('v_add_f32 v33, v33, v45')
            e('v_add_f32 v33, v33, v46')
        for i in range(32):
            e('v_mul_f32 v%d, v%d, v44' % (64 + i, 64 + i))
        e('s_nop 2')
        for t in range(8):
            d = 64 + 4 * t
            e('v_mfma_f32_16x16x32_bf16 v[%d:%d], v[%d:%d], v[48:51], v[%d:%d]' % (
                d, d + 3, 128 + 4 * t, 131 + 4 * t, d, d + 3))
        e('s_nop 15')
        e('s_add_u32 s59, s59, 8192')
        e('s_add_u32 s60, s60, 1')
        e('s_cmp_lt_u32 s60, 32')
        e('s_cbranch_scc1 L_slow_tile')
        e('v_mov_b32 v43, v33')
        e('s_nop 2')
        e('v_permlane16_swap_b32 v33, v43')
        e('s_nop 2')
        e('v_add_f32 v33, v33, v43')
        e('v_mov_b32 v43, v33')
        e('s_nop 2')
        e('v_permlane32_swap_b32 v33, v43')
        e('s_nop 2')
        e('v_add_f32 v33, v33, v43')
        e('v_rcp_f32 v33, v33')
        e('s_nop 1')
        for i in range(32):
            e('v_mul_f32 v%d, v%d, v33' % (64 + i, 64 + i))
        for tau in range(4):
            b0 = 64 + 8 * tau
            e('v_cvt_pk_bf16_f32 v%d, v%d, v%d' % (b0, b0, b0 + 1))
            e('v_cvt_pk_bf16_f32 v%d, v%d, v%d' % (b0 + 1, b0 + 2, b0 + 3))
            e('v_cvt_pk_bf16_f32 v%d, v%d, v%d' % (b0 + 2, b0 + 4, b0 + 5))
            e('v_cvt_pk_bf16_f32 v%d, v%d, v%d' % (b0 + 3, b0 + 6, b0 + 7))
            e('s_nop 2')
            e('v_permlane16_swap_b32 v%d, v%d' % (b0, b0 + 2))
            e('v_permlane16_swap_b32 v%d, v%d' % (b0 + 1, b0 + 3))
            e('s_nop 2')
            e('buffer_store_dwordx4 v[%d:%d], %s, %s, s57 offen offset:%d' % (
                b0, b0 + 3, v(vO), rng('s', sO, 4), 64 * tau))
        e('s_waitcnt vmcnt(0)')
        e('s_add_u32 s56, s56, 1')
        e('s_cmp_lt_u32 s56, 6')
        e('s_cbranch_scc1 L_slow_blk')
        e('L_slow_next:')
        e('s_add_u32 s53, s53, 1')
        e('s_cmp_lt_u32 s53, 2')
        e('s_cbranch_scc1 L_slow_head')
        e('s_endpgm')
        return o

    def build(self):
        cfg = self.cfg
        self.lastdma = {}
        self.qs_chain = self.od_chain = self.od_st = None
        self.build_backbone()
        self.reserve_wait_slots()
        pro = self.prologue()
        self.early()
        self.v0wait.meta['vm_for'] = self.lastdma[0]
        self.softmax()
        self.kv_stream()
        self.qb()
        self.epilogue(0)
        self.epilogue(1)
        for J, w in self.barwait.items():
            tw = w.meta['tile_wait']
            if cfg.no_dma and self.inloop(J):
                w.text = 's_nop 0'
                w.kind = 'nop'
            elif tw == 'all':
                w.meta['vm_for_last_dma'] = True
            elif tw in self.lastdma:
                w.meta['vm_for'] = self.lastdma[tw]
            else:
                assert cfg.no_dma
                w.text = 's_nop 0'
                w.kind = 'nop'
        gaps = schedule(self.bb, self.flex)
        body = linearize(self.bb, gaps)
        prog0 = pro + body
        lastd = None
        for ins in prog0:
            if ins.kind == 'dma':
                lastd = ins
            if ins.meta.get('vm_for_last_dma'):
                ins.meta['vm_for'] = lastd
        insert_waits(prog0)
        for l0, l1 in (cfg.loopA, cfg.loopB):
            for ph in range(cfg.U):
                ws = [self.barwait[J] for J in range(l0 + ph, l1, cfg.U) if self.barwait[J].kind == 'wait']
                if ws:
                    cap = min(w.meta['vm'] for w in ws)
                    for w in ws:
                        w.meta['vm_cap'] = cap
        if cfg.xp:
            def drop(i):
                t = i.text
                if 'd' in cfg.xp and i.kind == 'dma' and rng('s', sQ, 4) in t and s(sQT2) in t: return True
                if 'w' in cfg.xp and t.startswith('ds_write_b128 %s' % v(T(5))): return True
                if 'v' in cfg.xp and i.kind == 'valu' and any(r in (v(T(k)) for k in range(5)) for r in i.wrregs()) and i.gap is not None and i.gap > self.pstart[12] and i.gap < self.pstart[174]: return True
                if 's' in cfg.xp and i.kind == 'vstore' and s(sOSO) in t: return True
                if 'r' in cfg.xp and t.startswith('ds_read_b128 v') and v(T(8)) in t: return True
                return False
            prog0 = [i for i in prog0 if not drop(i)]
            insert_waits(prog0)
            for l0, l1 in (cfg.loopA, cfg.loopB):
                for ph in range(cfg.U):
                    ws = [self.barwait[J] for J in range(l0 + ph, l1, cfg.U) if self.barwait[J].kind == 'wait']
                    for w in ws:
                        w.meta.pop('vm_cap', None)
            insert_waits(prog0)
            for l0, l1 in (cfg.loopA, cfg.loopB):
                for ph in range(cfg.U):
                    ws = [self.barwait[J] for J in range(l0 + ph, l1, cfg.U) if self.barwait[J].kind == 'wait']
                    cap = min(w.meta['vm'] for w in ws)
                    for w in ws:
                        w.meta['vm_cap'] = cap
        prog = insert_waits(prog0)
        prog, nn = fix_hazards(prog, verbose=cfg.debug)
        errs = check_tags(prog) if not cfg.xp else 0
        assert errs == 0, errs
        self.check_m0(prog)
        self.gaps = gaps
        self.prog = prog
        self.nnops = nn
        return prog

    def check_m0(self, prog):
        lastm0 = None
        used = set()
        for ins in prog:
            if 'm0' in ins.wrregs():
                lastm0 = ins
            if ins.kind == 'dma':
                assert lastm0 is not None and lastm0.uid not in used, ('M0 reuse', ins.text)
                for d, _ in ins.deps:
                    if 'm0' in d.wrregs():
                        assert d is lastm0, ('M0 clobbered', ins.text)
                used.add(lastm0.uid)

    def roll(self):
        cfg = self.cfg
        prog = self.prog
        segs = []
        cur = []
        names = ['pre']
        for ins in prog:
            cur.append(ins)
            if ins.kind == 'mfma' and 'tile_start' in ins.meta:
                segs.append(cur)
                cur = []
                names.append(ins.meta['tile_start'])
        segs.append(cur)
        seg = dict(zip(names, segs))
        txt = lambda J: [i.text for i in seg[J]]
        U = cfg.U
        loops = [cfg.loopA, cfg.loopB]
        for l0, l1 in loops:
            assert (l1 - l0) % U == 0, (l0, l1)
            for J in range(l0, l1):
                ref = txt(l0 + (J - l0) % U)
                if txt(J) != ref:
                    x, y = txt(J), ref
                    for i in range(min(len(x), len(y))):
                        if x[i] != y[i]:
                            print('tile', J, 'differs at', i, x[i], '|', y[i])
                            break
                    raise Exception('tile %d not periodic' % J)
        out = []
        nst = [0]

        def stamp(real=False, late=False):
            if not cfg.stamps or (late and cfg.start_stamps):
                return
            k = 64 + 2 * nst[0]
            nst[0] += 1
            out.append('    s_waitcnt lgkmcnt(0)')
            out.append('    %s s[%d:%d]' % ('s_memrealtime' if real else 's_memtime', k, k + 1))
            out.append('    s_waitcnt lgkmcnt(0)')

        def fmt(i):
            if cfg.bar_stamps and i.meta.get('tile_wait') is not None and i.kind == 'wait':
                return ['    s_waitcnt lgkmcnt(0)', '    s_memtime s[96:97]', '    s_waitcnt lgkmcnt(0)', '    ' + i.text,
                        '    s_memtime s[98:99]', '    s_waitcnt lgkmcnt(0)',
                        '    s_sub_u32 s98, s98, s96', '    s_add_u32 s100, s100, s98']
            if cfg.bar_stamps and i.kind == 'bar' and 'assert_lg_done' in i.meta:
                return ['    s_memtime s[96:97]', '    s_waitcnt lgkmcnt(0)', '    s_barrier',
                        '    s_memtime s[98:99]', '    s_waitcnt lgkmcnt(0)',
                        '    s_sub_u32 s98, s98, s96', '    s_add_u32 s101, s101, s98']
            return ['    ' + i.text]

        def emit(J):
            for i in seg[J]:
                if cfg.stamps and i.meta.get('stamp'):
                    stamp()
                out.extend(fmt(i))
        stamp(True)
        stamp()
        if cfg.bar_stamps:
            out.append('    s_mov_b32 s100, 0')
            out.append('    s_mov_b32 s101, 0')
        emit('pre')
        J = 1
        for li, (l0, l1) in enumerate(loops):
            while J < l0:
                emit(J)
                J += 1
            stamp(late=li > 0)
            out.append('    s_mov_b32 %s, %d' % (s(sCNT), (l1 - l0) // U - 1))
            out.append('L_loop%d:' % li)
            for r in range(U):
                sg = seg[l0 + r]
                lines = [fmt(i) for i in sg]
                if r == U - 1:
                    idx = [k for k, i in enumerate(sg) if i.kind == 'mfma']
                    k = idx[-2]
                    for i in sg[k + 1:]:
                        assert 'scc' not in i.wrregs(), i.text
                    lines.insert(k + 1, ['    s_sub_u32 %s, %s, 1' % (s(sCNT), s(sCNT))])
                    lines.append(['    s_cbranch_scc0 L_loop%d' % li])
                for x in lines:
                    out.extend(x)
            stamp(late=True)
            J = l1
        while J < NT:
            emit(J)
            J += 1
        stamp()
        if cfg.stamps:
            out.append('    s_waitcnt vmcnt(0)')
            stamp()
            stamp(True)
            if cfg.dbg_wg is not None:
                n_ = nst[0]
                out.append('    s_cmp_lg_u32 s2, %d' % cfg.dbg_wg)
                out.append('    s_cbranch_scc1 L_nodbg')
                out.append('    s_cmp_lg_u32 %s, 0' % s(sW))
                out.append('    s_cbranch_scc1 L_nodbg')
                out.append('    s_load_dwordx2 s[44:45], s[0:1], 32')
                out.append('    s_waitcnt lgkmcnt(0)')
                out.append('    s_and_b32 s45, s45, 0xffff')
                out.append('    s_mov_b32 s46, 256')
                out.append('    s_mov_b32 s47, 0x20000')
                out.append('    s_mov_b64 s[32:33], exec')
                out.append('    s_mov_b64 exec, 1')
                out.append('    v_mov_b32 v1, 0')
                vals = [('s%d' % (64 + 2 * (n_ - 1)), 's64')] + [('s%d' % (64 + 2 * (n_ - 2)), 's66')]
                vals += [('s%d' % (64 + 2 * (k + 1)), 's%d' % (64 + 2 * k)) for k in range(1, n_ - 2)]
                for k, (x, y) in enumerate(vals):
                    out.append('    s_sub_u32 s3, %s, %s' % (x, y))
                    out.append('    v_mov_b32 v0, s3')
                    out.append('    buffer_store_dword v0, v1, s[44:47], 0 offen offset:%d' % (4 * k))
                    out.append('    s_waitcnt vmcnt(0)')
                out.append('    s_mov_b64 exec, s[32:33]')
                out.append('L_nodbg:')
            out.append('    s_load_dwordx2 s[44:45], s[0:1], 40')
            out.append('    s_waitcnt lgkmcnt(0)')
            out.append('    s_and_b32 s45, s45, 0xffff')
            out.append('    s_mov_b32 s46, 0x100000')
            out.append('    s_mov_b32 s47, 0x20000')
            out.append('    s_lshl_b32 s3, s2, 2')
            out.append('    s_add_u32 s3, s3, %s' % s(sW))
            out.append('    s_lshl_b32 s3, s3, 7')
            extra = [100, 101] if cfg.bar_stamps else []
            for k, sr in enumerate([64 + 2 * k for k in range(nst[0])] + extra):
                out.append('    v_mov_b32 v0, s%d' % sr)
                out.append('    v_mov_b32 v1, s3')
                out.append('    s_mov_b64 s[32:33], exec')
                out.append('    s_mov_b64 exec, 1')
                out.append('    buffer_store_dword v0, v1, s[44:47], 0 offen offset:%d' % (4 * k))
                out.append('    s_waitcnt vmcnt(0)')
                out.append('    s_mov_b64 exec, s[32:33]')
        out.append('    s_or_b64 s[54:55], %s, %s' % (rng('s', sFLAG[0], 2), rng('s', sFLAG[1], 2)))
        out.append('    s_cbranch_scc1 L_slow')
        out.append('L_done:')
        out.append('    s_endpgm')
        for l in self.slowpath():
            out.append(l if l.endswith(':') else '    ' + l)
        return out, seg


HEADER = """; Kernarg layout for this problem (48 bytes, ptrs only, base s[0:1]):
; @launch grid=(256,1,1) block=(256,1,1) lds=%d
.amdgcn_target "amdgcn-amd-amdhsa--gfx950"
.text
.globl NAME_kernel
.p2align 8
.type NAME_kernel,@function
NAME_kernel:
"""
FOOTER = """
.section .rodata,"a"
.p2align 6
.amdhsa_kernel NAME_kernel
  .amdhsa_next_free_vgpr 512
  .amdhsa_next_free_sgpr 102
  .amdhsa_accum_offset 256
  .amdhsa_group_segment_fixed_size 0
  .amdhsa_kernarg_size 48
  .amdhsa_user_sgpr_count 2
  .amdhsa_user_sgpr_kernarg_segment_ptr 1
  .amdhsa_system_sgpr_workgroup_id_x 1
.end_amdhsa_kernel
"""


def generate(cfg):
    g = Gen(cfg)
    g.build()
    lines, seg = g.roll()
    lds = LDS_BYTES
    src = (HEADER % lds).replace('NAME', NAME) + '\n'.join(lines) + '\n' + FOOTER.replace('NAME', NAME)
    return src, g, seg


if __name__ == '__main__':
    cfg = Cfg()
    out = sys.argv[1] if len(sys.argv) > 1 else 'cdna_kernels/%s.s' % NAME
    for kv in sys.argv[2:]:
        k, val = kv.split('=')
        setattr(cfg, k, eval(val))
    src, g, seg = generate(cfg)
    open(out, 'w').write(src)
    print('nops inserted', g.nnops, 'total est cycles', est_cycles(g.prog), 'lines', src.count('\n'))
    print(' '.join('%s:%d' % (J, est_cycles(seg[J])) for J in seg))
```

```python
import re

VALU_KINDS = ('valu', 'trans', 'perm')
FRONT_KINDS = ('ds', 'dsw', 'vload', 'dma', 'vstore')
SCAL_KINDS = ('salu', 'wait', 'bar', 'nop', 'branch')
COST = {'valu': 4, 'trans': 8, 'perm': 8, 'ds': 4, 'dsw': 8, 'vload': 8, 'dma': 8, 'vstore': 8,
        'salu': 4, 'wait': 4, 'bar': 4, 'nop': 4, 'branch': 4, 'mfma': 8, 'label': 0}


def regs(prefix, start, n):
    return ['%s%d' % (prefix, start + i) for i in range(n)]


def rng(prefix, start, n):
    if n == 1:
        return '%s%d' % (prefix, start)
    return '%s[%d:%d]' % (prefix, start, start + n - 1)


class Ins:
    _n = 0

    def __init__(self, text, kind, rd=(), wr=(), name=None, srcc=(), passes=4):
        self.text = text
        self.kind = kind
        self.rd = [(r if isinstance(r, tuple) else (r, None)) for r in rd]
        self.wr = [(r if isinstance(r, tuple) else (r, None)) for r in wr]
        self.srcc = set(srcc)
        self.passes = passes
        self.name = name or text
        self.lo = None
        self.hi = None
        self.deps = []
        self.gap = None
        self.prio = 0
        self.meta = {}
        Ins._n += 1
        self.uid = Ins._n

    @property
    def cost(self):
        return self.meta.get('cost', COST[self.kind])

    def rdregs(self):
        return [r for r, _ in self.rd]

    def wrregs(self):
        return [r for r, _ in self.wr]

    def __repr__(self):
        return '<%s %s>' % (self.kind, self.text)


class Gap:
    def __init__(self):
        self.scal = []
        self.front = []
        self.valu = []
        self.reserved_scal = False

    def used(self):
        u = sum(i.cost for i in self.front) + sum(i.cost for i in self.valu)
        ns = len(self.scal) + (1 if self.reserved_scal else 0)
        if ns > 1:
            u += 4 * (ns - 1)
        return u

    def has_free_scal(self):
        return len(self.scal) == 0 and not self.reserved_scal


def schedule(backbone, flex, cap=8, verbose=False):
    n = len(backbone)
    gaps = [Gap() for _ in range(n)]
    for k, m in enumerate(backbone):
        m.gap = k
        if m.meta.get('reserve_scal'):
            gaps[k].reserved_scal = True
    succ = {}
    for f in flex:
        for d, delta in f.deps:
            succ.setdefault(d.uid, []).append((f, delta))
    order = list(flex)
    changed = True
    it = 0
    while changed:
        changed = False
        it += 1
        for f in reversed(order):
            for s, delta in succ.get(f.uid, []):
                if s.hi is not None:
                    h = s.hi - delta
                    if f.kind != 'mfma' and (f.hi is None or h < f.hi):
                        f.hi = h
                        changed = True
        assert it < 200
    pending = sorted(flex, key=lambda f: (f.lo if f.lo is not None else 0, f.uid))
    pi = 0
    avail = []
    for k in range(n):
        g = gaps[k]
        while pi < len(pending) and (pending[pi].lo is None or pending[pi].lo <= k):
            avail.append(pending[pi])
            pi += 1
        progress = True
        while progress:
            progress = False
            cands = []
            for f in avail:
                ok = True
                for d, delta in f.deps:
                    if d.gap is None or d.gap + delta > k:
                        ok = False
                        break
                    if d.gap == k and d.kind != 'mfma':
                        od = 0 if d.kind in SCAL_KINDS else 1 if d.kind in FRONT_KINDS else 2
                        of = 0 if f.kind in SCAL_KINDS else 1 if f.kind in FRONT_KINDS else 2
                        if od > of:
                            ok = False
                            break
                if ok:
                    cands.append(f)
            if not cands:
                break
            cands.sort(key=lambda f: (-1 if f.meta.get('asap') else f.hi if f.hi is not None else 10 ** 9,
                                      -f.prio, f.uid))
            for f in cands:
                forced = (f.hi is not None and f.hi <= k) or f.meta.get('asap')
                if f.kind in SCAL_KINDS:
                    fits = g.has_free_scal() or (g.used() + 4 <= cap and f.meta.get('scal_any'))
                else:
                    fits = g.used() + f.cost <= cap
                if fits or forced:
                    f.gap = k
                    if f.kind in SCAL_KINDS:
                        g.scal.append(f)
                    elif f.kind in FRONT_KINDS:
                        g.front.append(f)
                    else:
                        g.valu.append(f)
                    avail.remove(f)
                    progress = True
                    break
    left = avail + pending[pi:]
    if left:
        g = gaps[-1]
        k = n - 1
        rest = sorted(left, key=lambda f: f.uid)
        inrest = set(f.uid for f in rest)
        done_t = {}
        tail = []
        now = 0
        PRI = {'vstore': 0, 'ds': 1, 'dsw': 2, 'salu': 3, 'wait': 3, 'trans': 4, 'valu': 5, 'perm': 5}

        def ready_time(f):
            t = 0
            for d, _ in f.deps:
                if d.uid in inrest:
                    if d.uid not in done_t:
                        return None
                    lat = 0
                    if d.kind == 'ds' and f.kind != 'ds':
                        lat = 160
                    elif d.kind == 'trans':
                        lat = 8
                    t = max(t, done_t[d.uid] + lat)
            return t
        while rest:
            cands = [(ready_time(f), f) for f in rest]
            cands = [(t, f) for t, f in cands if t is not None]
            assert cands, rest[:5]
            rdy = [(PRI.get(f.kind, 6), f.uid, f) for t, f in cands if t <= now]
            if not rdy:
                now = min(t for t, f in cands)
                continue
            f = min(rdy)[2]
            f.gap = k
            tail.append(f)
            rest.remove(f)
            now += {'dsw': 16, 'vstore': 16, 'trans': 8, 'perm': 8}.get(f.kind, 4)
            done_t[f.uid] = now
        g.tail = tail
    return gaps


def linearize(backbone, gaps):
    out = []
    for k, m in enumerate(backbone):
        for pre in m.meta.get('pre', []):
            out.append(pre)
        out.append(m)
        g = gaps[k]
        out.extend(g.scal)
        out.extend(g.front)
        out.extend(g.valu)
        out.extend(getattr(g, 'tail', []))
    return out


def mk_wait(vm=None, lgkm=None):
    t = 's_waitcnt'
    if vm is not None:
        t += ' vmcnt(%d)' % vm
    if lgkm is not None:
        t += ' lgkmcnt(%d)' % lgkm
    w = Ins(t, 'wait')
    w.meta['vm'] = vm
    w.meta['lgkm'] = lgkm
    return w


def insert_waits(prog):
    out = []
    vmq = []
    lgq = []
    pend = {}
    allvm = []

    def retire(q, upto):
        while q:
            x = q.pop(0)
            for r in x.wrregs():
                if pend.get(r, (None, None))[1] is x:
                    del pend[r]
            if x is upto:
                break

    def apply_wait(vm, lg):
        if vm is not None:
            while len(vmq) > vm:
                retire(vmq, vmq[0])
        if lg is not None:
            while len(lgq) > lg:
                retire(lgq, lgq[0])

    for ins in prog:
        if ins.kind == 'wait':
            if 'vm_for' in ins.meta:
                tgt = ins.meta['vm_for']
                nvm = min(ins.meta.get('vm_cap', 63), len(allvm) - 1 - allvm.index(tgt))
                lg = ins.meta.get('lgkm')
                if nvm is None and lg is None:
                    ins.text = 's_nop 0'
                    ins.kind = 'nop'
                    out.append(ins)
                    continue
                assert nvm is None or nvm <= 63, nvm
                w = mk_wait(nvm, lg)
                ins.text = w.text
                ins.meta['vm'] = nvm
            apply_wait(ins.meta.get('vm'), ins.meta.get('lgkm'))
            out.append(ins)
            continue
        need_vm = None
        need_lg = None
        touched = ins.rdregs() + ins.wrregs()
        for r in touched:
            if r in pend:
                qn, x = pend[r]
                if qn == 'vm':
                    i = vmq.index(x)
                    if need_vm is None or i > vmq.index(need_vm):
                        need_vm = x
                else:
                    i = lgq.index(x)
                    if need_lg is None or i > lgq.index(need_lg):
                        need_lg = x
        if need_vm is not None or need_lg is not None:
            pos = len(out)
            j = len(out) - 1
            while j >= 0 and out[j].kind not in ('mfma', 'label', 'branch', 'bar'):
                j -= 1
            hoist = False
            if j >= 0 and out[j].kind == 'mfma':
                after = out[j + 1:]
                if (need_vm is None or need_vm not in after) and (need_lg is None or need_lg not in after):
                    hoist = True
            if hoist:
                after = out[j + 1:]
                nvm_after = sum(1 for x in after if x.kind in ('vload', 'dma', 'vstore'))
                nlg_after = sum(1 for x in after if x.kind in ('ds', 'dsw'))
                vm = lg = None
                if need_vm is not None:
                    vm = len(vmq) - 1 - vmq.index(need_vm) - nvm_after
                if need_lg is not None:
                    lg = len(lgq) - 1 - lgq.index(need_lg) - nlg_after
                assert (vm is None or vm >= 0) and (lg is None or lg >= 0)
                if j + 1 < len(out) and out[j + 1].kind == 'wait' and 'vm_for' not in out[j + 1].meta:
                    ex = out[j + 1]
                    evm, elg = ex.meta.get('vm'), ex.meta.get('lgkm')
                    vm2 = vm if evm is None else evm if vm is None else min(vm, evm)
                    lg2 = lg if elg is None else elg if lg is None else min(lg, elg)
                    nw = mk_wait(None if vm2 is None else min(vm2, 63), None if lg2 is None else min(lg2, 15))
                    out[j + 1] = nw
                else:
                    nw = mk_wait(None if vm is None else min(vm, 63), None if lg is None else min(lg, 15))
                    out.insert(j + 1, nw)
                if need_vm is not None:
                    retire(vmq, need_vm)
                if need_lg is not None:
                    retire(lgq, need_lg)
            else:
                vm = lg = None
                if need_vm is not None:
                    vm = min(63, len(vmq) - 1 - vmq.index(need_vm))
                if need_lg is not None:
                    lg = min(15, len(lgq) - 1 - lgq.index(need_lg))
                out.append(mk_wait(vm, lg))
                if need_vm is not None:
                    retire(vmq, need_vm)
                if need_lg is not None:
                    retire(lgq, need_lg)
        if ins.kind == 'bar' and ins.meta.get('assert_lg_done'):
            for x in lgq:
                assert x not in ins.meta['assert_lg_done'], ('LDS read still in flight at barrier', x)
        if ins.kind in ('vload', 'dma', 'vstore'):
            vmq.append(ins)
            allvm.append(ins)
            assert len(vmq) <= 63, 'vmcnt overflow'
            if ins.kind == 'vload':
                for r in ins.wrregs():
                    pend[r] = ('vm', ins)
        elif ins.kind in ('ds', 'dsw'):
            lgq.append(ins)
            if ins.kind == 'ds':
                for r in ins.wrregs():
                    pend[r] = ('lg', ins)
        out.append(ins)
    return out


def states(ins):
    if ins.kind == 'nop':
        m = re.match(r's_nop (\d+)', ins.text)
        return int(m.group(1)) + 1
    if ins.kind == 'label':
        return 0
    return 1


def fix_hazards(prog, verbose=False):
    out = []
    ninserted = 0
    LOOK = 24

    def dist_back(pred):
        d = 0
        for x in reversed(out[-LOOK:]):
            if pred(x):
                return d
            d += states(x)
        return 10 ** 6

    for ins in prog:
        need = 0
        rd = set(ins.rdregs())
        wr = set(ins.wrregs())
        isvalu = ins.kind in VALU_KINDS
        ismfma = ins.kind == 'mfma'
        ismem = ins.kind in FRONT_KINDS

        def req(n, pred):
            nonlocal need
            d = dist_back(pred)
            if d < n:
                need = max(need, n - d)

        if ismfma:
            req(2, lambda x: x.kind in VALU_KINDS and set(x.wrregs()) & rd)
            ab = rd - ins.srcc

            def p1(x):
                return x.kind == 'mfma' and set(x.wrregs()) & ab
            req(8, p1)

            def p2(x):
                if x.kind != 'mfma':
                    return False
                ov = set(x.wrregs()) & ins.srcc
                return bool(ov) and (set(x.wrregs()) != ins.srcc or x.meta.get('cls') != ins.meta.get('cls'))
            req(6, p2)
        if isvalu or ismem:
            req(8, lambda x: x.kind == 'mfma' and set(x.wrregs()) & (rd | wr))
        if isvalu:
            req(3, lambda x: x.kind == 'mfma' and x.srcc & wr)
            if ins.kind != 'trans':
                req(1, lambda x: x.kind == 'trans' and set(x.wrregs()) & rd)
            req(2, lambda x: x.kind == 'vstore' and set(x.rdregs()) & wr)
            req(2, lambda x: x.kind in VALU_KINDS and
                {r for r in x.wrregs() if r[0] == 's' or r == 'vcc'} & rd)
        if ismfma or ins.kind in ('ds', 'vload'):
            req(2, lambda x: x.kind == 'vstore' and set(x.rdregs()) & wr)
        if ins.kind == 'perm':
            req(2, lambda x: x.kind in VALU_KINDS and set(x.wrregs()) & (rd | wr))
        if ismem:
            req(5, lambda x: x.kind in VALU_KINDS and
                {r for r in x.wrregs() if r[0] == 's'} & rd)
            if ins.kind == 'dma':
                req(1, lambda x: x.kind == 'salu' and 'm0' in x.wrregs())
        if ins.kind == 'salu':
            req(2, lambda x: x.kind in VALU_KINDS and
                {r for r in x.wrregs() if r[0] == 's' or r == 'vcc'} & rd)
        if ins.text.startswith('v_readfirstlane') or ins.text.startswith('v_readlane'):
            req(1, lambda x: x.kind in VALU_KINDS and set(x.wrregs()) & rd)
        while need > 0:
            n = min(need, 16)
            out.append(Ins('s_nop %d' % (n - 1), 'nop'))
            ninserted += 1
            if verbose:
                print('hazard nop %d before %s' % (n, ins.text))
            need -= n
        out.append(ins)
    return out, ninserted


def check_tags(prog, init=None):
    st = dict(init or {})
    errs = 0
    for idx, ins in enumerate(prog):
        for r, tag in ins.rd:
            if tag is not None and st.get(r) != tag:
                errs += 1
                if errs < 20:
                    print('TAG MISMATCH at %d: %s reads %s expects %r has %r' % (idx, ins.text, r, tag, st.get(r)))
        for r, tag in ins.wr:
            st[r] = tag if tag is not None else ('?', ins.uid)
    return errs


def est_cycles(prog):
    t = 0
    last_mfma = -100
    prev = None
    for ins in prog:
        if ins.kind == 'label':
            continue
        if ins.kind == 'mfma':
            t = max(t, last_mfma + 4 * ins.passes)
            last_mfma = t
            t += 8
        elif ins.kind in SCAL_KINDS:
            if prev is not None and prev.kind == 'mfma':
                pass
            else:
                t += 4 * states(ins) if ins.kind == 'nop' else 4
        else:
            c = 20 if ins.kind in ('dsw', 'vstore') else ins.cost
            if ins.kind in FRONT_KINDS and prev is not None and prev.kind in VALU_KINDS:
                c += 8
            t += c
        prev = ins
    return t
```

```python
import sys, os, struct
from sched import *

NAME = 'standalone__gqa_softmax__near_ridge'


class Cfg:
    R = 3
    D = 3
    U = 3
    LAT = 7
    loopA = (2, 29)
    loopB = (34, 61)
    thr = 0x4b800000
    debug = False
    stamps = False
    nt = ' nt'
    st_mod = ' nt sc1'
    st_mod2 = ' nt sc1'
    no_dma = False
    no_qb = False
    no_drain = False
    pair_cvt = True
    pk_tail = True
    tail_lds = True
    fullline = True
    vmap = True
    exp_odd = True
    order = 'g44'
    qdepth = 2
    tplan = {1: [1], 4: [2]}
    v0_late = False
    start_stamps = False
    dbg_wg = None
    xp = ''
    bar_stamps = False
    dma_early = True
    qrd_lat = 8


SLOT = 16896
KOFF, VOFF = 0, 8448
CH = 1056
NT = 64
NS = NT * 6
DUMMY = 3 * SLOT
STAGE0 = DUMMY + 3 * CH
STAGEW = 24 * CH
LDS_BYTES = STAGE0 + 4 * STAGEW
C_SCALE = 1.4426950408889634 * (128 ** -0.5)


def f32bits(x):
    return struct.unpack('<I', struct.pack('<f', x))[0]


def O(b, t): return 32 * b + 4 * t
def S(buf, u): return 192 + 8 * buf + 4 * u
def P(buf): return 208 + 4 * buf
def CI(b): return 216 + 4 * b
vIDX, vK, vV, vDMA = 240, 241, 242, 243
def T(i): return 244 + i
vQ, vO = T(10), T(11)
def Q(b, s): return 16 * b + 4 * s
def KF(u, s): return 96 + 16 * u + 4 * s
def VF(t): return 128 + 4 * t
def L(k): return 160 + 4 * k
SA = 172
def QR(b, s): return 176 + 16 * b + 4 * s
def qoff(b): return 8192 * (b >> 1) + 512 * (b & 1)

sK, sV, sQ, sO = 4, 8, 12, 16
sDOFF, sDLDS, sSLOT, sDELTA, sWPART, sTMP, sW, sIDX = 20, 21, 22, 23, 24, 25, 26, 27
sC, sTHR, sMASK = 28, 30, 31
sFLAG = [34, 36]
sCNT, sPHASE, sQOFF, sOOFF = 38, 39, 40, 41
sWPARTV = 21
sSTG, sQI, sQREL, sQM, sQSO, sQT, sQT2 = 42, 44, 45, 46, 47, 48, 49
sOI, sOSO, sOT, sOT2, sOINC = 50, 51, 32, 33, 62


def v(n): return 'v%d' % n
def a(n): return 'a%d' % n
def s(n): return 's%d' % n


def V_(text, rd=(), wr=(), kind='valu'):
    return Ins(text, kind, rd, wr)


def S_(text, rd=(), wr=()):
    return Ins(text, 'salu', rd, list(wr) + ['scc'])


class Gen:
    def __init__(self, cfg):
        self.cfg = cfg
        self.bb = []
        self.flex = []
        self.iQK = {}
        self.iPV = {}
        self.iZ = {}
        self.pos = {}
        self.pstart = {}
        self.pend_ = {}

    def mk_qk(self, n, u, st):
        j, b = (n % 192) // 6, n % 6
        J = n // 6
        d = S(n & 1, u)
        h = n // 192
        rd = [(a(KF(u, st) + i), ('K', J, u, st, i)) for i in range(4)]
        rd += [(a(Q(b, st) + i), ('Q', h, b, st, i)) for i in range(4)]
        if st == 0:
            if j == 0:
                c = '0'
                srcc = []
            else:
                c = rng('v', CI(b), 4)
                srcc = regs('v', CI(b), 4)
                rd += [(r, ('CI', h, b)) for r in srcc]
        else:
            c = rng('v', d, 4)
            srcc = regs('v', d, 4)
            rd += [(v(d + i), ('Sp', n, u, st - 1, i)) for i in range(4)]
        tag = 'Sp' if st < 3 else 'S'
        wr = [(v(d + i), (tag, n, u, st, i) if st < 3 else ('S', n, u, i)) for i in range(4)]
        m = Ins('v_mfma_f32_16x16x32_bf16 %s, %s, %s, %s' % (rng('v', d, 4), rng('a', KF(u, st), 4),
                                                          rng('a', Q(b, st), 4), c),
                'mfma', rd, wr, srcc=srcc)
        m.meta['cls'] = 'xdl'
        return m

    def mk_pv(self, n, t):
        j, b = (n % 192) // 6, n % 6
        J = n // 6
        h = n // 192
        d = O(b, t)
        rd = [(a(VF(t) + i), ('V', J, t, i)) for i in range(4)]
        rd += [(v(P(n & 1) + i), ('P', n, i)) for i in range(4)]
        if j == 0:
            c = '0'
            srcc = []
        else:
            c = rng('v', d, 4)
            srcc = regs('v', d, 4)
            rd += [(v(d + i), ('O', h, b, t, j - 1, i)) for i in range(4)]
        wr = [(v(d + i), ('O', h, b, t, j, i)) for i in range(4)]
        m = Ins('v_mfma_f32_16x16x32_bf16 %s, %s, %s, %s' % (rng('v', d, 4), rng('a', VF(t), 4),
                                                          rng('v', P(n & 1), 4), c),
                'mfma', rd, wr, srcc=srcc)
        m.meta['cls'] = 'xdl'
        return m

    def mk_z(self, p):
        n0 = p - 2
        h, j, k = n0 // 192, (n0 % 192) // 6, (n0 % 6) // 2
        d = L(k)
        rd = [(v(P(0) + i), ('P', n0, i)) for i in range(4)] + [(v(P(1) + i), ('P', n0 + 1, i)) for i in range(4)]
        rd += [(a(SA + i), 'SA') for i in range(4)] + [(v(vIDX), 'IDX')]
        rd += [(a(d + i), ('L', h, k, j - 1, i)) for i in range(4)]
        wr = [(a(d + i), ('L', h, k, j, i)) for i in range(4)]
        m = Ins('v_smfmac_f32_16x16x64_bf16 %s, %s, %s, %s' % (rng('a', d, 4), rng('a', SA, 4),
                                                            rng('v', P(0), 8), v(vIDX)),
                'mfma', rd, wr, srcc=regs('a', d, 4))
        m.meta['cls'] = 'smf'
        return m

    def build_backbone(self):
        bb = self.bb
        for p in range(-1, NS + 1):
            qk = p + 1 if p + 1 < NS else None
            pv = p - 1 if 0 <= p - 1 < NS else None
            z = p >= 2 and p % 2 == 0
            self.pstart[p] = len(bb)
            seq = []
            qs = [('q', i >> 2, i & 3) for i in range(8)] if qk is not None else []
            ps = [('p', i) for i in range(8)] if pv is not None else []
            if self.cfg.order == 'alt' or not qs or not ps:
                for i in range(8):
                    seq += qs[i:i + 1] + ps[i:i + 1]
            elif self.cfg.order == 'g44':
                seq = qs[:4] + ps[:4] + qs[4:] + ps[4:]
            elif self.cfg.order == 'g88':
                seq = qs + ps
            zfirst = self.cfg.order != 'alt'
            zdone = not z
            npos = 0
            for it in seq:
                if it[0] == 'p' and not zdone and zfirst and qs:
                    self.iZ[p] = len(bb)
                    bb.append(self.mk_z(p))
                    zdone = True
                if it[0] == 'q':
                    m = self.mk_qk(qk, it[1], it[2])
                    self.iQK[(qk, it[1], it[2])] = len(bb)
                else:
                    m = self.mk_pv(pv, it[1])
                    self.iPV[(pv, it[1])] = len(bb)
                self.pos[(p, npos)] = len(bb)
                npos += 1
                bb.append(m)
                if it[0] == 'p' and not zdone:
                    self.iZ[p] = len(bb)
                    bb.append(self.mk_z(p))
                    zdone = True
            self.pend_[p] = len(bb) - 1
        for J in range(1, NT):
            k = self.pstart[6 * J]
            bb[k].meta['tile_start'] = J
            bb[k].meta['reserve_scal'] = True
            bb[k - 1].meta['reserve_scal'] = True

    def reserve_wait_slots(self):
        for J in range(1, NT):
            for u in range(2):
                for st in range(4):
                    self.bb[self.iQK[(6 * J, u, st)] - 1].meta['reserve_scal'] = True
        for J in range(0, NT):
            for t in range(8):
                self.bb[self.iPV[(6 * J, t)] - 1].meta['reserve_scal'] = True

    def add(self, ins, lo=None, hi=None, deps=(), prio=0):
        ins.lo, ins.hi, ins.prio = lo, hi, prio
        ins.deps = [d if isinstance(d, tuple) else (d, 0) for d in deps if d is not None]
        self.flex.append(ins)
        return ins

    def softmax(self):
        lastcvt = {}
        for n in range(NS):
            j, b, h = (n % 192) // 6, n % 6, n // 192
            buf = n & 1
            sr = [S(buf, u) + i for u in range(2) for i in range(4)]
            firstpv = self.iPV[(n, 0)]
            normal = j != 0 and (n, 15) in self.pos and n + 2 < NS
            stag = [('S', n, r >> 2, r & 3) for r in range(8)]
            pre = None
            if j == 0:
                t0, t1 = T(0), T(1)
                lo0 = self.iQK[(n, 0, 3)] + 4
                lo1 = self.iQK[(n, 1, 3)] + 4
                prevuse = self.t0_last if hasattr(self, 't0_last') else None
                c = self.add(V_('v_max3_f32 %s, %s, %s, %s' % (v(t0), v(sr[0]), v(sr[1]), v(sr[2])),
                                [(v(sr[i]), stag[i]) for i in range(3)], [(v(t0), ('m0', n))]), lo=lo0,
                             deps=[prevuse])
                c = self.add(V_('v_max_f32 %s, %s, %s' % (v(t0), v(t0), v(sr[3])),
                                [(v(t0), ('m0', n)), (v(sr[3]), stag[3])], [(v(t0), ('m1', n))]), lo=lo0, deps=[c])
                c = self.add(V_('v_max3_f32 %s, %s, %s, %s' % (v(t0), v(t0), v(sr[4]), v(sr[5])),
                                [(v(t0), ('m1', n)), (v(sr[4]), stag[4]), (v(sr[5]), stag[5])],
                                [(v(t0), ('m2', n))]), lo=lo1, deps=[c])
                c = self.add(V_('v_max3_f32 %s, %s, %s, %s' % (v(t0), v(t0), v(sr[6]), v(sr[7])),
                                [(v(t0), ('m2', n)), (v(sr[6]), stag[6]), (v(sr[7]), stag[7])],
                                [(v(t0), ('m3', n))]), lo=lo1, deps=[c])
                c = self.add(V_('v_mov_b32 %s, %s' % (v(t1), v(t0)), [(v(t0), ('m3', n))], [(v(t1), ('m3c', n))]),
                             deps=[c], lo=lo1)
                c = self.add(V_('v_permlane16_swap_b32 %s, %s' % (v(t0), v(t1)),
                                [(v(t0), ('m3', n)), (v(t1), ('m3c', n))],
                                [(v(t0), ('m4a', n)), (v(t1), ('m4b', n))], kind='perm'), deps=[(c, 1)], lo=lo1)
                c = self.add(V_('v_max_f32 %s, %s, %s' % (v(t0), v(t0), v(t1)),
                                [(v(t0), ('m4a', n)), (v(t1), ('m4b', n))], [(v(t0), ('m5', n))]), deps=[c], lo=lo1)
                c = self.add(V_('v_mov_b32 %s, %s' % (v(t1), v(t0)), [(v(t0), ('m5', n))], [(v(t1), ('m5c', n))]),
                             deps=[c], lo=lo1)
                c = self.add(V_('v_permlane32_swap_b32 %s, %s' % (v(t0), v(t1)),
                                [(v(t0), ('m5', n)), (v(t1), ('m5c', n))],
                                [(v(t0), ('m6a', n)), (v(t1), ('m6b', n))], kind='perm'), deps=[(c, 1)], lo=lo1)
                cis = []
                for i in range(4):
                    c = self.add(V_('v_min_f32 %s, -%s, -%s' % (v(CI(b) + i), v(t0), v(t1)),
                                    [(v(t0), ('m6a', n)), (v(t1), ('m6b', n))], [(v(CI(b) + i), ('CI', h, b))]),
                                 deps=[c], lo=lo1)
                    cis.append(c)
                self.t0_last = cis[-1]
                for cc in cis:
                    cc.hi = self.iQK[(n + 6, 0, 0)] - 2
                pre = []
                for r in range(8):
                    c = self.add(V_('v_add_f32 %s, %s, %s' % (v(sr[r]), v(CI(b)), v(sr[r])),
                                    [(v(CI(b)), ('CI', h, b)), (v(sr[r]), stag[r])], [(v(sr[r]), ('Ss', n, r))]),
                                 deps=[cis[0]], lo=lo1)
                    pre.append(c)
                stag = [('Ss', n, r) for r in range(8)]
            exps = []
            for r in range(8):
                e = V_('v_exp_f32 %s, %s' % (v(sr[r]), v(sr[r])), [(v(sr[r]), stag[r])],
                       [(v(sr[r]), ('E', n, r))], kind='trans')
                if normal:
                    g = self.pos[(n, 2 * r + (1 if self.cfg.exp_odd else 0))]
                    self.add(e, lo=g, hi=g, prio=5)
                else:
                    lo = self.iQK[(n, r >> 2, 3)] + 4
                    self.add(e, lo=lo, deps=[pre[r]] if pre else [])
                exps.append(e)
            for i in range(4):
                c = V_('v_cvt_pk_bf16_f32 %s, %s, %s' % (v(P(buf) + i), v(sr[2 * i]), v(sr[2 * i + 1])),
                       [(v(sr[2 * i]), ('E', n, 2 * i)), (v(sr[2 * i + 1]), ('E', n, 2 * i + 1))],
                       [(v(P(buf) + i), ('P', n, i))])
                lo = 0
                if n >= 2:
                    lo = self.iPV[(n - 2, 7)]
                    zp = n if n % 2 == 0 else n - 1
                    zp = (n - 2) - ((n - 2) % 2) + 2
                    lo = max(lo, self.iZ[zp])
                if normal:
                    if self.cfg.exp_odd:
                        g = self.pos[(n, 8)] if i < 2 else self.pstart[n + 1]
                    else:
                        g = self.pos[(n, (8 * (i >> 1) + 7) if self.cfg.pair_cvt else 4 * i + 3)]
                    assert g >= lo
                    self.add(c, lo=g, hi=g, deps=[(exps[2 * i], 1), (exps[2 * i + 1], 1)], prio=5)
                else:
                    hi = firstpv - 2
                    if n + 2 < NS:
                        hi = min(hi, self.iQK[(n + 2, i >> 1, 0)] - 1)
                    self.add(c, lo=lo, hi=hi, deps=[(exps[2 * i], 1), (exps[2 * i + 1], 1)])

    def inloop(self, J):
        return any(a_ <= J < b_ for a_, b_ in (self.cfg.loopA, self.cfg.loopB))

    def dma_group(self, JJ, lo, hi, deps, which=(0, 1, 2, 3)):
        cfg = self.cfg
        prev = self.m0chain
        base = (JJ % cfg.R) * SLOT
        for i in which:
            off = (0, 32, VOFF, VOFF + (8 if cfg.vmap else 32))[i]
            wp = sWPART
            m = S_('s_add_u32 m0, %s, %d' % (s(wp), base + off), [s(wp)], ['m0'])
            self.add(m, lo=lo, hi=hi, deps=list(deps) + ([(prev, 1)] if prev else []))
            srd = sK if i < 2 else sV
            dma = Ins('buffer_load_dwordx4 %s, %s, %s offen%s%s lds' % (
                v(vDMA), rng('s', srd, 4), s(sDOFF), ' offset:1024' if i & 1 else '', cfg.nt), 'dma',
                [v(vDMA), 'm0', s(sDOFF)] + regs('s', srd, 4), [])
            dma.meta['tile'] = JJ
            self.add(dma, lo=lo, hi=hi, deps=[(m, 1)] + list(deps))
            prev = dma
        self.m0chain = prev
        self.lastdma[JJ] = prev
        return prev

    def kv_stream(self):
        cfg = self.cfg
        R, D = cfg.R, cfg.D
        self.bar = {}
        self.barwait = {}
        kreads = {}
        chain = None
        for J in range(0, NT):
            p3 = 6 * J + 3
            last = J == NT - 1
            if cfg.loopA[0] - 1 <= J < cfg.loopA[1] and not cfg.no_qb:
                self.q_stage_tile(J, dma_only=J < cfg.loopA[0])
            if cfg.loopB[0] <= J < cfg.loopB[1] and not cfg.no_drain:
                self.o_drain_tile(J)
            vr = []
            for t in range(8):
                for pp in range(2):
                    d = VF(t) + 2 * pp
                    ins = Ins('ds_read_b64_tr_b16 %s, %s offset:%d' % (
                        rng('a', d, 2), v(vV), (J % R) * SLOT + 512 * pp +
                        ((64 * (t >> 1) + 8 * (t & 1)) if cfg.vmap else 32 * t)),
                        'ds', [v(vV)], [(a(d + i), ('V', J, t, 2 * pp + i)) for i in range(2)])
                    lo_ = self.iPV[(6 * J - 1, t)] if J > 0 else 0
                    hi_ = self.iPV[(6 * J, t)] - cfg.LAT
                    if J > 0:
                        deps = [(self.bar[J - 1], 0)]
                    else:
                        deps = [(self.bar_v0, 0)]
                        lo_ = max(lo_, self.bar_v0.lo)
                    self.add(ins, lo=lo_, hi=max(hi_, lo_), deps=deps)
                    vr.append(ins)
            e = self.pend_[p3]
            w = Ins('s_waitcnt vmcnt(0)', 'wait')
            w.meta['tile_wait'] = J + 1 if not last else 'all'
            self.add(w, lo=e - 2, hi=e - 1)
            bar = Ins('s_barrier', 'bar')
            bar.meta['assert_lg_done'] = set(vr) | set(kreads.get(J, []))
            self.add(bar, lo=e - 1, hi=e, deps=[(w, 1)])
            self.bar[J] = bar
            self.barwait[J] = w
            if cfg.start_stamps and J < 2:
                bar.meta['stamp'] = True
            if last:
                break
            kr = []
            for u in range(2):
                for st in range(4):
                    d = KF(u, st)
                    ins = Ins('ds_read_b128 %s, %s offset:%d' % (
                        rng('a', d, 4), v(vK), ((J + 1) % R) * SLOT + 512 * u + 64 * st), 'ds',
                        [v(vK)], [(a(d + i), ('K', J + 1, u, st, i)) for i in range(4)])
                    lo_ = self.iQK[(6 * J + 5, u, st)]
                    hi_ = self.iQK[(6 * J + 6, u, st)] - cfg.LAT
                    self.add(ins, lo=lo_, hi=max(hi_, lo_), deps=[(bar, 0)])
                    kr.append(ins)
            kreads[J + 1] = kr
            JJ = J + D
            if JJ < NT and not (cfg.no_dma and self.inloop(J)):
                lo_ = self.pstart[6 * J + 5] - 2
                hi_ = self.pend_[6 * J + 5] - 1
                if cfg.dma_early:
                    lo_ = self.pend_[6 * J + 3]
                    hi_ = self.pstart[6 * J + 5] + 2
                if J == 0:
                    inc = self.doff_final
                else:
                    inc = self.add(S_('s_add_u32 %s, %s, 8192' % (s(sDOFF), s(sDOFF)), [s(sDOFF)], [s(sDOFF)]),
                                   lo=self.pstart[6 * J + 2] + 1, hi=self.pend_[6 * J + 3] - 3, deps=[(chain, 1)])
                chain = self.dma_group(JJ, lo_, hi_, [(bar, 1), (inc, 1)])

    def q_stage_tile(self, J, dma_only=False):
        cfg = self.cfg
        lo, hi = self.pstart[6 * J + 1] + 2, self.pend_[6 * J + 3] - 3
        prev = self.qs_chain

        def sc(ins, h=hi):
            nonlocal prev
            prev = self.add(ins, lo=lo, hi=h, deps=[(prev, 1)] if prev else [])
            return prev
        sc(S_('s_add_u32 %s, %s, 1' % (s(sQI), s(sQI)), [s(sQI)], [s(sQI)]))
        sc(S_('s_add_u32 %s, %s, %d' % (s(sQREL), s(sQREL), CH), [s(sQREL)], [s(sQREL)]))
        sc(S_('s_add_u32 %s, %s, 1024' % (s(sQSO), s(sQSO)), [s(sQSO)], [s(sQSO)]))
        sc(S_('s_sub_u32 %s, %s, 24' % (s(sQM), s(sQI)), [s(sQI)], [s(sQM)]))
        sc(S_('s_ashr_i32 %s, %s, 31' % (s(sQM), s(sQM)), [s(sQM)], [s(sQM)]))
        sc(S_('s_and_b32 %s, %s, %s' % (s(sQT), s(sQREL), s(sQM)), [s(sQREL), s(sQM)], [s(sQT)]))
        sc(S_('s_andn2_b32 %s, 0x40000000, %s' % (s(sQT2), s(sQM)), [s(sQM)], [s(sQT2)]))
        so = sc(S_('s_or_b32 %s, %s, %s' % (s(sQT2), s(sQT2), s(sQSO)), [s(sQT2), s(sQSO)], [s(sQT2)]))
        wlo, whi = self.pstart[6 * J + 5] - 3, self.pstart[6 * J + 5] + 3
        if cfg.dma_early:
            wlo, whi = self.pend_[6 * J + 3] - 4, self.pend_[6 * J + 3] + 2
        m = S_('s_add_u32 m0, %s, %d' % (s(sQT), DUMMY), [s(sQT)], ['m0'])
        self.add(m, lo=wlo, hi=whi, deps=[(so, 1)] + ([(self.m0chain, 1)] if self.m0chain else []))
        dma = Ins('buffer_load_dwordx4 %s, %s, %s offen%s lds' % (v(vDMA), rng('s', sQ, 4), s(sQT2), cfg.nt), 'dma',
                  [v(vDMA), 'm0', s(sQT2)] + regs('s', sQ, 4), [])
        self.add(dma, lo=wlo, hi=whi, deps=[(m, 1)])
        self.m0chain = dma
        self.qs_chain = dma
        if dma_only:
            return
        t0, tb, ad = T(0), T(4), T(5)
        key = ('qc', J)
        lo = self.pstart[6 * J + 1] + 8
        hi = self.pend_[6 * J + 3] - 3
        rd = Ins('ds_read_b128 %s, %s' % (rng('v', t0, 4), v(ad)), 'ds', [v(ad)],
                 [(v(t0 + i), (key, 'raw', i)) for i in range(4)])
        self.add(rd, lo=lo, hi=self.pstart[6 * J + 2] - 2, deps=[(self.qc_chain, 1)] if self.qc_chain else [])
        c = None
        lo2 = self.pstart[6 * J + 2] + 1
        for i in range(4):
            r = t0 + i
            c = self.add(V_('v_lshlrev_b32 %s, 16, %s' % (v(tb), v(r)), [(v(r), (key, 'raw', i))], [(v(tb), (key, 'b', i))]),
                         lo=lo2, deps=[(rd, cfg.qrd_lat), c] if c else [(rd, cfg.qrd_lat)])
            c = self.add(V_('v_and_b32 %s, %s, %s' % (v(r), s(sMASK), v(r)), [(v(r), (key, 'raw', i)), s(sMASK)],
                            [(v(r), (key, 'c', i))]), lo=lo2, deps=[c])
            c = self.add(V_('v_mul_f32 %s, %s, %s' % (v(tb), s(sC), v(tb)), [(v(tb), (key, 'b', i)), s(sC)],
                            [(v(tb), (key, 'd', i))]), lo=lo2, deps=[c])
            c = self.add(V_('v_mul_f32 %s, %s, %s' % (v(r), s(sC), v(r)), [(v(r), (key, 'c', i)), s(sC)],
                            [(v(r), (key, 'e', i))]), lo=lo2, deps=[c])
            c = self.add(V_('v_cvt_pk_bf16_f32 %s, %s, %s' % (v(r), v(tb), v(r)),
                            [(v(r), (key, 'e', i)), (v(tb), (key, 'd', i))], [(v(r), (key, 'f', i))]), lo=lo2, deps=[c])
        wr = Ins('ds_write_b128 %s, %s' % (v(ad), rng('v', t0, 4)), 'dsw',
                 [v(ad)] + [(v(t0 + i), (key, 'f', i)) for i in range(4)], [])
        self.add(wr, lo=lo2, hi=hi + 20, deps=[(c, 1)])
        up = self.add(V_('v_add_u32 %s, %d, %s' % (v(ad), CH, v(ad)), [v(ad)], [v(ad)]), lo=lo2, hi=hi + 24,
                      deps=[(wr, 0)])
        self.qc_chain = up
        self.qc_lastwrite = wr

    def o_drain_tile(self, J):
        cfg = self.cfg
        ph = (J - cfg.loopB[0]) % cfg.U
        if ph == 0:
            lo, hi = self.pstart[6 * J] + 2, self.pend_[6 * J + 1]
            prev = self.od_chain

            def sc(ins):
                nonlocal prev
                prev = self.add(ins, lo=lo, hi=hi, deps=[(prev, 1)] if prev else [])
                return prev
            sc(S_('s_lshr_b32 %s, %s, 1' % (s(sOT), s(sOI)), [s(sOI)], [s(sOT)]))
            sc(S_('s_lshl_b32 %s, %s, 13' % (s(sOT), s(sOT)), [s(sOT)], [s(sOT)]))
            sc(S_('s_and_b32 %s, %s, 1' % (s(sOT2), s(sOI)), [s(sOI)], [s(sOT2)]))
            sc(S_('s_lshl_b32 %s, %s, 9' % (s(sOT2), s(sOT2)), [s(sOT2)], [s(sOT2)]))
            sc(S_('s_add_u32 %s, %s, %s' % (s(sOSO), s(sOT), s(sOT2)), [s(sOT), s(sOT2)], [s(sOSO)]))
            sc(S_('s_sub_u32 %s, %s, 6' % (s(sOT), s(sOI)), [s(sOI)], [s(sOT)]))
            sc(S_('s_ashr_i32 %s, %s, 31' % (s(sOT), s(sOT)), [s(sOT)], [s(sOT)]))
            sc(S_('s_andn2_b32 %s, 0x40000000, %s' % (s(sOT2), s(sOT)), [s(sOT)], [s(sOT2)]))
            sc(S_('s_or_b32 %s, %s, %s' % (s(sOSO), s(sOSO), s(sOT2)), [s(sOSO), s(sOT2)], [s(sOSO)]))
            sc(S_('s_and_b32 %s, %d, %s' % (s(sOINC), 2 * CH, s(sOT)), [s(sOT)], [s(sOINC)]))
            sc(S_('s_add_u32 %s, %s, 1' % (s(sOI), s(sOI)), [s(sOI)], [s(sOI)]))
            self.od_scal = prev
            self.od_chain = prev
        if ph > 1:
            return
        ad = T(8)
        key = ('od', J)
        lo = self.pstart[6 * J + 2] + 1
        rds = []
        for q in range(2):
            t0 = T(4 * q)
            rd = Ins('ds_read_b128 %s, %s offset:%d' % (rng('v', t0, 4), v(ad), (128 if cfg.fullline else CH) * q),
                     'ds', [v(ad)],
                     [(v(t0 + i), (key, q, i)) for i in range(4)])
            self.add(rd, lo=lo, hi=lo + 6, deps=[(self.od_st, 1)] if self.od_st else [])
            rds.append(rd)
        up = self.add(V_('v_add_u32 %s, %s, %s' % (v(ad), s(sOINC), v(ad)), [v(ad), s(sOINC)], [v(ad)]),
                      lo=lo, hi=self.pend_[6 * J + 3], deps=[(rds[0], 0), (rds[1], 0), (self.od_scal, 1)])
        for q in range(2):
            t0 = T(4 * q)
            st = Ins('buffer_store_dwordx4 %s, %s, %s, %s offen offset:%d%s' % (
                rng('v', t0, 4), v(vO), rng('s', sO, 4), s(sOSO),
                128 * ph + (256 if cfg.fullline else 64) * q, cfg.st_mod), 'vstore',
                [(v(t0 + i), (key, q, i)) for i in range(4)] + [v(vO), s(sOSO)] + regs('s', sO, 4), [])
            self.add(st, lo=lo + 10, hi=self.pend_[6 * J + 3] - 3, deps=[(rds[q], cfg.qrd_lat + 1), (self.od_scal, 1)])
            self.od_st = st
        self.od_chain = self.od_st if ph == 1 else self.od_chain

    def epilogue(self, h):
        cfg = self.cfg
        self.st_last = None
        if h == 1 and cfg.tail_lds:
            assert cfg.vmap and cfg.fullline
            lo_ = self.pstart[6 * cfg.loopB[1]] + 2
            hi_ = self.pstart[6 * 62]
            t0_ = T(0)
            c = self.add(V_('v_bfe_u32 %s, %s, 4, 3' % (v(t0_), v(vDMA)), [v(vDMA)], [v(t0_)]), lo=lo_, hi=hi_)
            c = self.add(V_('v_lshrrev_b32 %s, 2, %s' % (v(T(9)), v(t0_)), [v(t0_)], [v(T(9))]), lo=lo_, hi=hi_, deps=[c])
            c = self.add(V_('v_mul_u32_u24 %s, %d, %s' % (v(T(9)), CH, v(T(9))), [v(T(9))], [v(T(9))]), lo=lo_, hi=hi_, deps=[c])
            c = self.add(V_('v_and_b32 %s, 3, %s' % (v(t0_), v(t0_)), [v(t0_)], [v(t0_)]), lo=lo_, hi=hi_, deps=[c])
            c = self.add(V_('v_lshl_add_u32 %s, %s, 8, %s' % (v(T(9)), v(t0_), v(T(9))), [v(t0_), v(T(9))], [v(T(9))]), lo=lo_, hi=hi_, deps=[c])
            c = self.add(V_('v_bfe_u32 %s, %s, 7, 3' % (v(t0_), v(vDMA)), [v(vDMA)], [v(t0_)]), lo=lo_, hi=hi_, deps=[c])
            c = self.add(V_('v_lshl_add_u32 %s, %s, 4, %s' % (v(T(9)), v(t0_), v(T(9))), [v(t0_), v(T(9))], [v(T(9))]), lo=lo_, hi=hi_, deps=[c])
            self.tr_addr = self.add(V_('v_add_u32 %s, %s, %s' % (v(T(9)), s(sSTG), v(T(9))), [s(sSTG), v(T(9))],
                                       [(v(T(9)), 'traddr')]), lo=lo_, hi=hi_, deps=[c])
            self.tw_addr = self.add(V_('v_add_u32 %s, %s, %s' % (v(T(8)), s(43), v(vDMA)), [s(43), v(vDMA)],
                                       [(v(T(8)), 'twaddr')]), lo=lo_, hi=hi_)
        prev_wr = None
        prevchain = getattr(self, 'sq_chain', None)
        lread = {}
        for b in range(6):
            n = 192 * h + 186 + b
            k, e = b >> 1, b & 1
            zi = self.iZ[192 * h + 188 + 2 * k]
            x = T(2 + (b & 1))
            y = T(4)
            nxt = n + 6 if h == 0 else None
            jl = 31
            prevx = getattr(self, 'xlast', {}).get(b & 1)
            r0 = self.add(V_('v_accvgpr_read_b32 %s, %s' % (v(x), a(L(k) + 2 * e)),
                             [(a(L(k) + 2 * e), ('L', h, k, jl, 2 * e))], [(v(x), ('l0', h, b))]),
                          lo=zi + 5, deps=[prevx])
            r1 = self.add(V_('v_accvgpr_read_b32 %s, %s' % (v(y), a(L(k) + 2 * e + 1)),
                             [(a(L(k) + 2 * e + 1), ('L', h, k, jl, 2 * e + 1))], [(v(y), ('l1', h, b))]),
                          lo=zi + 5, deps=[getattr(self, 'ylast', None)])
            lread[b] = (r0, r1)
            ad = self.add(V_('v_add_f32 %s, %s, %s' % (v(x), v(x), v(y)),
                             [(v(x), ('l0', h, b)), (v(y), ('l1', h, b))], [(v(x), ('l', h, b))]), deps=[r0, r1],
                          lo=zi + 5)
            self.ylast = ad
            cmp_ = self.add(V_('v_cmp_nge_f32 vcc, %s, %s' % (s(sTHR), v(x)), [s(sTHR), (v(x), ('l', h, b))],
                               [('vcc', ('chk', h, b))]), deps=[ad, getattr(self, 'vcc_last', None)], lo=zi + 5)
            fl = self.add(S_('s_or_b64 %s, %s, vcc' % (rng('s', sFLAG[h], 2), rng('s', sFLAG[h], 2)),
                             [('vcc', ('chk', h, b))] + regs('s', sFLAG[h], 2), regs('s', sFLAG[h], 2)),
                          deps=[(cmp_, 1)], lo=zi + 5)
            self.vcc_last = (fl, 1)
            rc = self.add(V_('v_rcp_f32 %s, %s' % (v(x), v(x)), [(v(x), ('l', h, b))], [(v(x), ('r', h, b))],
                             kind='trans'), deps=[cmp_], lo=zi + 5)
            fl.hi = None
            so = None
            if h == 1:
                so = self.add(Ins('s_mov_b32 %s, %d' % (s(sOOFF), h * 98304 + qoff(b)), 'salu', [], [s(sOOFF)]),
                              deps=[(self.st_last, 1)] if self.st_last is not None and b > 0 else [], lo=zi)
            last_in_block = None
            for tau in range(4):
                t0, t1 = 2 * tau, 2 * tau + 1
                muls = {}
                lo = self.iPV[(n, t1)] + 5
                for t in (t0, t1):
                    for i in range(4):
                        r = O(b, t) + i
                        muls[(t, i)] = self.add(V_('v_mul_f32 %s, %s, %s' % (v(r), v(x), v(r)),
                                                   [(v(x), ('r', h, b)), (v(r), ('O', h, b, t, jl, i))],
                                                   [(v(r), ('On', h, b, t, i))]), lo=lo, deps=[(rc, 1)])
                base = O(b, t0)
                cv = []
                src = [(t0, 0), (t0, 2), (t1, 0), (t1, 2)]
                for q, (t, i) in enumerate(src):
                    d = base + q
                    deps = [muls[(t, i)], muls[(t, i + 1)]]
                    if q == 1:
                        deps.append(cv[0])
                    if q == 2:
                        deps += [cv[1]]
                    if q == 3:
                        deps += [cv[1], cv[2]]
                    c = self.add(V_('v_cvt_pk_bf16_f32 %s, %s, %s' % (v(d), v(O(b, t) + i), v(O(b, t) + i + 1)),
                                    [(v(O(b, t) + i), ('On', h, b, t, i)), (v(O(b, t) + i + 1), ('On', h, b, t, i + 1))],
                                    [(v(d), ('Oc', h, b, tau, q))]), lo=lo, deps=deps)
                    cv.append(c)
                    if (tau & 1) == 0 and q == 0:
                        cvall = {}
                    cvall[(tau, q)] = c
                if cfg.vmap:
                    tagn = 'Oc'
                    pre_st = [(x, 1) for x in cv]
                else:
                    tagn = 'Os'
                    s0 = self.add(V_('v_permlane16_swap_b32 %s, %s' % (v(base), v(base + 2)),
                                     [(v(base), ('Oc', h, b, tau, 0)), (v(base + 2), ('Oc', h, b, tau, 2))],
                                     [(v(base), ('Os', h, b, tau, 0)), (v(base + 2), ('Os', h, b, tau, 2))], kind='perm'),
                                  deps=[(cv[0], 1), (cv[2], 1)], lo=lo)
                    s1 = self.add(V_('v_permlane16_swap_b32 %s, %s' % (v(base + 1), v(base + 3)),
                                     [(v(base + 1), ('Oc', h, b, tau, 1)), (v(base + 3), ('Oc', h, b, tau, 3))],
                                     [(v(base + 1), ('Os', h, b, tau, 1)), (v(base + 3), ('Os', h, b, tau, 3))],
                                     kind='perm'), deps=[(cv[1], 1), (cv[3], 1)], lo=lo)
                    pre_st = [(s0, 1), (s1, 1)]
                hi = None
                if h == 0:
                    st = Ins('ds_write_b128 %s, %s offset:%d' % (v(T(8)), rng('v', base, 4), CH * (4 * b + tau)), 'dsw',
                             [(v(base + q), (tagn, h, b, tau, q)) for q in range(4)] + [(v(T(8)), 'ostage')], [])
                    st.meta['cost'] = 8
                    hi = self.iPV[(nxt, t0)] - 2
                    deps = pre_st + [(self.ostage_addr, 1)]
                    deps += [(x, 0) for x in self.qb_reads[2 * (b >> 1)] + self.qb_reads[2 * (b >> 1) + 1]]
                    self.add(st, lo=lo, hi=hi, deps=deps)
                elif cfg.tail_lds:
                    wr = Ins('ds_write_b128 %s, %s offset:%d' % (v(T(8)), rng('v', base, 4), CH * (4 * b + tau)), 'dsw',
                             [(v(base + q), (tagn, h, b, tau, q)) for q in range(4)] + [(v(T(8)), 'twaddr')], [])
                    self.add(wr, lo=lo, deps=pre_st + [(self.tw_addr, 1)])
                    st = wr
                    if tau & 1:
                        hh = tau >> 1
                        for q in range(2):
                            dst = O(b, 4 * hh + 2 * q + 1)
                            rdep = [(wr, 0), (self.tr_addr, 1), (prev_wr, 0)]
                            rd = Ins('ds_read_b128 %s, %s offset:%d' % (
                                rng('v', dst, 4), v(T(9)), CH * (4 * b + 2 * hh) + 128 * q), 'ds',
                                [(v(T(9)), 'traddr')], [(v(dst + i), ('Ot', b, hh, q, i)) for i in range(4)])
                            self.add(rd, lo=lo, deps=rdep + [(cvall[k_], 0) for k_ in cvall])
                            st = Ins('buffer_store_dwordx4 %s, %s, %s, %s offen offset:%d%s' % (
                                rng('v', dst, 4), v(vO), rng('s', sO, 4), s(sOOFF), 128 * hh + 256 * q, cfg.st_mod2),
                                'vstore', [(v(dst + i), ('Ot', b, hh, q, i)) for i in range(4)] +
                                [v(vO), s(sOOFF)] + regs('s', sO, 4), [])
                            self.add(st, lo=lo, deps=[(rd, cfg.qrd_lat), (so, 1)])
                    prev_wr = wr
                else:
                    st = Ins('buffer_store_dwordx4 %s, %s, %s, %s offen offset:%d%s' % (
                        rng('v', base, 4), v(vQ if cfg.vmap else vO), rng('s', sO, 4), s(sOOFF), 64 * tau,
                        cfg.st_mod2), 'vstore',
                        [(v(base + q), (tagn, h, b, tau, q)) for q in range(4)] + [v(vO), s(sOOFF)] + regs('s', sO, 4), [])
                    self.add(st, lo=lo, hi=hi, deps=pre_st + [(so, 1)])
                if nxt is not None:
                    for q in (2, 3):
                        cv[q].hi = min(self.iPV[(nxt, t1)] - 2, cv[q].hi if cv[q].hi is not None else 10 ** 9)
                self.st_last = st
                last_in_block = muls[(t1, 3)]
            self.xlast = getattr(self, 'xlast', {})
            self.xlast[b & 1] = last_in_block
        if h == 0 and cfg.fullline:
            assert cfg.vmap
            t9 = T(9)
            lo_ = self.pstart[6 * cfg.loopB[0] - 6]
            hi_ = self.pstart[6 * cfg.loopB[0]] - 3
            dep = self.st_last
            c = self.add(V_('v_bfe_u32 %s, %s, 4, 3' % (v(t9), v(vDMA)), [v(vDMA)], [v(t9)]), lo=lo_, hi=hi_, deps=[(dep, 1)])
            c = self.add(V_('v_lshrrev_b32 %s, 2, %s' % (v(T(8)), v(t9)), [v(t9)], [v(T(8))]), lo=lo_, hi=hi_, deps=[c])
            c = self.add(V_('v_mul_u32_u24 %s, %d, %s' % (v(T(8)), CH, v(T(8))), [v(T(8))], [v(T(8))]), lo=lo_, hi=hi_, deps=[c])
            c = self.add(V_('v_and_b32 %s, 3, %s' % (v(t9), v(t9)), [v(t9)], [v(t9)]), lo=lo_, hi=hi_, deps=[c])
            c = self.add(V_('v_lshl_add_u32 %s, %s, 8, %s' % (v(T(8)), v(t9), v(T(8))), [v(t9), v(T(8))], [v(T(8))]), lo=lo_, hi=hi_, deps=[c])
            c = self.add(V_('v_bfe_u32 %s, %s, 7, 3' % (v(t9), v(vDMA)), [v(vDMA)], [v(t9)]), lo=lo_, hi=hi_, deps=[c])
            c = self.add(V_('v_lshl_add_u32 %s, %s, 4, %s' % (v(T(8)), v(t9), v(T(8))), [v(t9), v(T(8))], [v(T(8))]), lo=lo_, hi=hi_, deps=[c])
            c = self.add(V_('v_add_u32 %s, %s, %s' % (v(T(8)), s(sSTG), v(T(8))), [s(sSTG), v(T(8))], [v(T(8))]), lo=lo_, hi=hi_, deps=[c])
            self.od_addr = c
        if h == 0:
            for k in range(3):
                zi_next = self.iZ[192 + 2 + 2 * k]
                for i in range(4):
                    bb_ = 2 * k + (i >> 1)
                    self.add(V_('v_accvgpr_write_b32 %s, 0' % a(L(k) + i), [],
                                [(a(L(k) + i), ('L', 1, k, -1, i))]),
                             deps=[lread[bb_][i & 1]], hi=zi_next - 2, lo=0)

    def qb(self):
        cfg = self.cfg
        lo = self.pstart[6 * cfg.loopA[1]] + 2
        ad = self.add(V_('v_add_u32 %s, %s, %s' % (v(T(5)), s(sSTG), v(vK)), [s(sSTG), v(vK)], [(v(T(5)), 'qsaddr')]),
                      lo=lo, hi=self.pstart[184], deps=[(self.qc_chain, 1)] if self.qc_chain else [])
        self.qb_reads = {}
        for b in range(6):
            nlast, nfirst = 186 + b, 192 + b
            lst = []
            for st in range(4):
                d = Q(b, st)
                ins = Ins('ds_read_b128 %s, %s offset:%d' % (
                    rng('a', d, 4), v(T(5)), (b >> 1) * 8 * CH + 512 * (b & 1) + 64 * st), 'ds',
                    [(v(T(5)), 'qsaddr')], [(a(d + i), ('Q', 1, b, st, i)) for i in range(4)])
                lo_ = max(self.iQK[(nlast, 0, st)], self.iQK[(nlast, 1, st)])
                self.add(ins, lo=lo_, hi=self.iQK[(nfirst, 0, st)] - cfg.LAT, deps=[(ad, 1)])
                lst.append(ins)
            self.qb_reads[b] = lst
        self.ostage_addr = self.add(V_('v_add_u32 %s, %s, %s' % (v(T(8)), s(43), v(vDMA)), [s(43), v(vDMA)],
                                       [(v(T(8)), 'ostage')]), lo=lo, hi=self.pstart[184])

    RAW = 96

    def q_load(self, b, add):
        cfg = self.cfg
        out = []
        so = add(Ins('s_mov_b32 %s, %d' % (s(sQOFF), qoff(b)), 'salu', [], [s(sQOFF)]), None)
        for st in range(4):
            d = self.RAW + 16 * b + 4 * st
            out.append(add(Ins('buffer_load_dwordx4 %s, %s, %s, %s offen offset:%d%s' % (
                rng('v', d, 4), v(vQ), rng('s', sQ, 4), s(sQOFF), 64 * st, cfg.nt), 'vload',
                [v(vQ), s(sQOFF)] + regs('s', sQ, 4), [(v(d + i), ('QA', b, st, i)) for i in range(4)]), so))
        return out

    def prologue(self):
        cfg = self.cfg
        R = cfg.R
        o = []

        def e(text, kind='valu', rd=(), wr=()):
            i = Ins(text, kind, rd, wr)
            o.append(i)
            return i

        def srd_setup(srd, ptr, per):
            e('s_mul_i32 s3, s2, %d' % per, 'salu')
            e('s_add_u32 %s, %s, s3' % (s(srd), s(ptr)), 'salu')
            e('s_addc_u32 %s, %s, 0' % (s(srd + 1), s(ptr + 1)), 'salu')
            e('s_and_b32 %s, %s, 0xffff' % (s(srd + 1), s(srd + 1)), 'salu')
            e('s_mov_b32 %s, %d' % (s(srd + 2), per), 'salu')
            e('s_mov_b32 %s, 0x20000' % s(srd + 3), 'salu')

        def dma(J, which):
            last = None
            for i in which:
                off = (0, 32, VOFF, VOFF + (8 if cfg.vmap else 32))[i]
                wp = sWPART
                e('s_add_u32 m0, %s, %d' % (s(wp), (J % R) * SLOT + off), 'salu', wr=['m0'])
                srd = sK if i < 2 else sV
                e('s_nop 0', 'nop')
                last = e('buffer_load_dwordx4 %s, %s, %s offen%s%s lds' % (
                    v(vDMA), rng('s', srd, 4), s(sDOFF), ' offset:1024' if i & 1 else '', cfg.nt), 'dma', rd=['m0'])
                last.meta['tile'] = J
            return last

        def addq(ins, dep):
            o.append(ins)
            return ins
        e('s_cmp_ge_u32 s2, 256', 'salu')
        e('s_cbranch_scc1 L_done', 'branch')
        e('s_load_dwordx4 s[44:47], s[0:1], 0', 'salu')
        e('s_load_dwordx4 s[48:51], s[0:1], 16', 'salu')
        t = [T(i) for i in range(10)]
        e('v_lshrrev_b32 %s, 6, v0' % v(t[0]), wr=[v(t[0])])
        e('v_and_b32 %s, 63, v0' % v(t[1]), wr=[v(t[1])])
        e('v_readfirstlane_b32 %s, %s' % (s(sW), v(t[0])), rd=[v(t[0])], wr=[s(sW)])
        e('v_and_b32 %s, 15, %s' % (v(t[2]), v(t[1])))
        e('v_lshrrev_b32 %s, 4, %s' % (v(t[3]), v(t[1])))
        e('v_lshlrev_b32 %s, 4, %s' % (v(vDMA), v(t[1])))
        e('v_lshl_add_u32 %s, %s, 11, %s' % (v(vDMA), v(t[0]), v(vDMA)), wr=[v(vDMA)])
        e('v_mul_u32_u24 %s, %d, %s' % (v(t[4]), 24576, v(t[0])))
        e('v_and_b32 %s, 7, %s' % (v(t[5]), v(t[2])))
        e('v_lshl_add_u32 %s, %s, 10, %s' % (v(t[4]), v(t[5]), v(t[4])))
        e('v_lshrrev_b32 %s, 3, %s' % (v(t[5]), v(t[2])))
        e('v_lshl_add_u32 %s, %s, 8, %s' % (v(t[4]), v(t[5]), v(t[4])))
        e('v_lshl_add_u32 %s, %s, 4, %s' % (v(vQ), v(t[3]), v(t[4])), wr=[v(vQ)])
        e('s_mul_i32 %s, %s, %d' % (s(sWPART), s(sW), 2 * CH), 'salu', rd=[s(sW)], wr=[s(sWPART)])
        e('s_mov_b32 %s, 0' % s(sDOFF), 'salu')
        e('s_waitcnt lgkmcnt(0)', 'wait')
        if cfg.start_stamps:
            e('s_nop 0', 'nop').meta['stamp'] = True
        srd_setup(sK, 46, 524288)
        srd_setup(sQ, 44, 196608)
        k0 = dma(0, (0, 1))
        q0 = self.q_load(0, addq)
        for b_ in range(1, cfg.qdepth):
            self.q_load(b_, addq)
        srd_setup(sV, 48, 524288)
        v0 = dma(0, (2, 3))
        self.lastdma[0] = v0
        srd_setup(sO, 50, 196608)
        if cfg.vmap and cfg.fullline:
            e('v_mul_u32_u24 %s, %d, %s' % (v(vO), 24576, v(t[0])))
            e('v_lshrrev_b32 %s, 3, %s' % (v(t[5]), v(t[1])))
            e('v_lshl_add_u32 %s, %s, 10, %s' % (v(vO), v(t[5]), v(vO)))
            e('v_and_b32 %s, 7, %s' % (v(t[5]), v(t[1])))
            e('v_lshl_add_u32 %s, %s, 4, %s' % (v(vO), v(t[5]), v(vO)), wr=[v(vO)])
        elif cfg.vmap:
            e('v_mov_b32 %s, %s' % (v(vO), v(vQ)), wr=[v(vO)])
        else:
            e('v_and_b32 %s, 1, %s' % (v(t[5]), v(t[3])))
            e('v_lshl_add_u32 %s, %s, 5, %s' % (v(t[4]), v(t[5]), v(t[4])))
            e('v_lshrrev_b32 %s, 1, %s' % (v(t[5]), v(t[3])))
            e('v_lshl_add_u32 %s, %s, 4, %s' % (v(vO), v(t[5]), v(t[4])), wr=[v(vO)])
        e('v_and_b32 %s, 7, %s' % (v(t[4]), v(t[2])))
        e('v_mul_u32_u24 %s, %d, %s' % (v(vK), CH, v(t[4])))
        e('v_lshrrev_b32 %s, 3, %s' % (v(t[4]), v(t[2])))
        e('v_lshl_add_u32 %s, %s, 8, %s' % (v(vK), v(t[4]), v(vK)))
        e('v_lshl_add_u32 %s, %s, 4, %s' % (v(vK), v(t[3]), v(vK)), wr=[v(vK)])
        e('v_bfe_u32 %s, %s, 2, 3' % (v(t[4]), v(t[1])))
        if cfg.vmap:
            e('v_lshrrev_b32 %s, 1, %s' % (v(t[5]), v(t[4])))
            e('v_mul_u32_u24 %s, %d, %s' % (v(vV), 2 * CH, v(t[5])))
            e('v_and_b32 %s, 1, %s' % (v(t[5]), v(t[4])))
            e('v_mul_u32_u24 %s, 1032, %s' % (v(t[5]), v(t[5])))
            e('v_add_u32 %s, %s, %s' % (v(vV), v(t[5]), v(vV)))
        else:
            e('v_mul_u32_u24 %s, %d, %s' % (v(vV), CH, v(t[4])))
        e('v_lshrrev_b32 %s, 5, %s' % (v(t[4]), v(t[1])))
        e('v_lshl_add_u32 %s, %s, 8, %s' % (v(vV), v(t[4]), v(vV)))
        e('v_and_b32 %s, 3, %s' % (v(t[4]), v(t[1])))
        e('v_lshl_add_u32 %s, %s, %d, %s' % (v(vV), v(t[4]), 4 if cfg.vmap else 3, v(vV)))
        e('v_add_u32 %s, %d, %s' % (v(vV), VOFF, v(vV)), wr=[v(vV)])
        e('s_mov_b32 %s, 0x%08x' % (s(sC), f32bits(C_SCALE)), 'salu')
        e('s_mov_b32 %s, 0x%08x' % (s(sC + 1), f32bits(C_SCALE)), 'salu')
        e('s_mov_b32 %s, 0x%08x' % (s(sTHR), cfg.thr), 'salu')
        e('s_mov_b32 %s, 0xffff0000' % s(sMASK), 'salu')
        e('s_mov_b64 %s, 0' % rng('s', sFLAG[0], 2), 'salu')
        e('s_mov_b64 %s, 0' % rng('s', sFLAG[1], 2), 'salu')
        e('s_mul_i32 %s, %s, %d' % (s(sSTG), s(sW), STAGEW), 'salu')
        e('s_add_u32 %s, %s, %d' % (s(sQREL), s(sSTG), STAGE0 - DUMMY), 'salu')
        e('s_add_u32 %s, %s, %d' % (s(sSTG), s(sSTG), STAGE0), 'salu')
        e('s_lshl_b32 s3, %s, 11' % s(sW), 'salu')
        e('s_sub_u32 s43, %s, s3' % s(sSTG), 'salu')
        e('s_sub_u32 s63, s43, %d' % (3 * CH), 'salu')
        e('s_mov_b32 %s, -2' % s(sQI), 'salu')
        e('s_sub_u32 %s, %s, %d' % (s(sQREL), s(sQREL), 2 * CH), 'salu')
        e('s_mul_i32 %s, %s, %d' % (s(sQSO), s(sW), 24576 - 2048), 'salu')
        e('s_add_u32 %s, %s, %d' % (s(sQSO), s(sQSO), 98304 - 2048), 'salu')
        e('s_mov_b32 %s, 0' % s(sOI), 'salu')
        e('v_and_b32 %s, 1, %s' % (v(t[4]), v(t[2])))
        e('v_mov_b32 %s, 0x4444' % v(t[5]))
        e('v_mov_b32 %s, 0xeeee' % v(t[6]))
        e('v_cmp_eq_u32 vcc, 0, %s' % v(t[4]), wr=['vcc'])
        e('v_cndmask_b32 %s, %s, %s, vcc' % (v(vIDX), v(t[6]), v(t[5])), rd=['vcc'], wr=[(v(vIDX), 'IDX')])
        e('v_bfe_u32 %s, %s, 1, 1' % (v(t[4]), v(t[2])))
        e('v_lshrrev_b32 %s, 1, %s' % (v(t[5]), v(t[3])))
        e('v_cmp_eq_u32 vcc, %s, %s' % (v(t[4]), v(t[5])), wr=['vcc'])
        e('v_mov_b32 %s, 0x3f803f80' % v(t[6]))
        e('v_cndmask_b32 %s, 0, %s, vcc' % (v(t[4]), v(t[6])), rd=['vcc'], wr=[v(t[4])])
        for i in range(4):
            e('v_accvgpr_write_b32 %s, %s' % (a(SA + i), v(t[4])), rd=[v(t[4])], wr=[(a(SA + i), 'SA')])
        for k in range(3):
            for i in range(4):
                e('v_accvgpr_write_b32 %s, 0' % a(L(k) + i), wr=[(a(L(k) + i), ('L', 0, k, -1, i))])
        w = e('s_waitcnt vmcnt(0)', 'wait')
        w.meta['vm_for'] = q0[-1]
        w.meta['stamp'] = True
        if cfg.qdepth < 6:
            self.q_load(cfg.qdepth, addq)
        b = 0
        for st in range(4):
            d = self.RAW + 16 * b + 4 * st
            tb = 8 * (st & 1)
            for i in range(4):
                e('v_lshlrev_b32 %s, 16, %s' % (v(tb + 2 * i), v(d + i)), rd=[(v(d + i), ('QA', b, st, i))],
                  wr=[v(tb + 2 * i)])
                e('v_and_b32 %s, %s, %s' % (v(tb + 2 * i + 1), s(sMASK), v(d + i)), rd=[v(d + i)],
                  wr=[v(tb + 2 * i + 1)])
            for i in range(4):
                e('v_pk_mul_f32 %s, %s, %s' % (rng('v', tb + 2 * i, 2), rng('v', tb + 2 * i, 2), rng('s', sC, 2)),
                  rd=regs('v', tb + 2 * i, 2), wr=regs('v', tb + 2 * i, 2))
            for i in range(4):
                e('v_cvt_pk_bf16_f32 %s, %s, %s' % (v(d + i), v(tb + 2 * i), v(tb + 2 * i + 1)),
                  rd=regs('v', tb + 2 * i, 2), wr=[v(d + i)])
            for i in range(4):
                e('v_accvgpr_write_b32 %s, %s' % (a(Q(b, st) + i), v(d + i)), rd=[v(d + i)],
                  wr=[(a(Q(b, st) + i), ('Q', 0, b, st, i))])
        e('s_barrier', 'bar')
        for u in range(2):
            for st in range(4):
                d = KF(u, st)
                e('ds_read_b128 %s, %s offset:%d' % (rng('a', d, 4), v(vK), 512 * u + 64 * st), 'ds',
                  rd=[v(vK)], wr=[(a(d + i), ('K', 0, u, st, i)) for i in range(4)])
        return o

    def early(self):
        cfg = self.cfg
        R, D = cfg.R, cfg.D
        firstop = {}
        chain = None
        qprev = None
        tiles = list(range(1, D))
        plan = {b_: cfg.tplan.get(b_, []) for b_ in range(1, 6)}
        assert sorted(sum(plan.values(), [])) == tiles
        doff = None
        self.m0chain = None
        for b in range(1, 6):
            first = None
            for st in range(4):
                dl = self.iQK[(b, 0, st)] - 2
                for i in range(4):
                    r = self.RAW + 16 * b + 4 * st + i
                    tb = T(5 + (i & 1))
                    key = (b, st, i)
                    c = self.add(V_('v_lshlrev_b32 %s, 16, %s' % (v(tb), v(r)), [(v(r), ('QA', b, st, i))],
                                    [(v(tb), ('qb', key))]), lo=0, deps=[chain])
                    if first is None:
                        first = c
                    c = self.add(V_('v_and_b32 %s, %s, %s' % (v(r), s(sMASK), v(r)), [(v(r), ('QA', b, st, i)), s(sMASK)],
                                    [(v(r), ('qc', key))]), lo=0, deps=[c])
                    c = self.add(V_('v_mul_f32 %s, %s, %s' % (v(tb), s(sC), v(tb)), [(v(tb), ('qb', key)), s(sC)],
                                    [(v(tb), ('qd', key))]), lo=0, deps=[c])
                    c = self.add(V_('v_mul_f32 %s, %s, %s' % (v(r), s(sC), v(r)), [(v(r), ('qc', key)), s(sC)],
                                    [(v(r), ('qe', key))]), lo=0, deps=[c])
                    c = self.add(V_('v_cvt_pk_bf16_f32 %s, %s, %s' % (v(r), v(tb), v(r)),
                                    [(v(r), ('qe', key)), (v(tb), ('qd', key))], [(v(r), ('qf', key))]), lo=0, deps=[c])
                    c = self.add(V_('v_accvgpr_write_b32 %s, %s' % (a(Q(b, st) + i), v(r)), [(v(r), ('qf', key))],
                                    [(a(Q(b, st) + i), ('Q', 0, b, st, i))]), lo=0, hi=dl, deps=[c])
                    chain = c
            firstop[b] = first
            if cfg.start_stamps:
                first.meta['stamp'] = True
            mark = len(self.flex)
            if b + cfg.qdepth <= 5:
                def addq(ins, dep, first=first):
                    nonlocal qprev
                    deps = [(first, 1)]
                    if dep is not None:
                        deps.append((dep, 1))
                    elif qprev is not None:
                        deps.append((qprev, 1))
                    self.add(ins, lo=0, hi=None, deps=deps, prio=3)
                    ins.hi = None
                    return ins
                ql = self.q_load(b + cfg.qdepth, addq)
                qprev = ql[-1]
            for J in plan[b]:
                doff = self.add(Ins('s_mov_b32 %s, %d' % (s(sDOFF), J * 8192), 'salu', [], [s(sDOFF)]), lo=0,
                                deps=[(first, 1)] + ([(self.m0chain, 1)] if self.m0chain else []))
                self.dma_group(J, 0, None, [(doff, 1)])
            for x in self.flex[mark:]:
                x.meta['asap'] = True
        self.qoff_last = qprev
        self.qc_chain = self.add(V_('v_add_u32 %s, s63, %s' % (v(T(5)), v(vDMA)), [v(vDMA)], [v(T(5))]), lo=0,
                                 hi=self.pstart[6 * cfg.loopA[0]] - 4, deps=[chain])
        self.doff_final = self.add(Ins('s_mov_b32 %s, %d' % (s(sDOFF), D * 8192), 'salu', [], [s(sDOFF)]), lo=0,
                                   hi=self.pstart[5] - 4, deps=[(self.m0chain, 1)])
        k = self.pstart[0] + 1
        w = Ins('s_waitcnt vmcnt(0)', 'wait')
        w.meta['vm_for_tile0'] = True
        self.add(w, lo=k, hi=k)
        self.bar_v0 = Ins('s_barrier', 'bar')
        self.add(self.bar_v0, lo=k + 1, hi=k + 1, deps=[(w, 1)])
        self.v0wait = w

    def slowpath(self):
        o = []
        e = o.append
        e('L_slow:')
        e('s_waitcnt vmcnt(0) lgkmcnt(0)')
        e('s_mul_i32 s52, %s, %d' % (s(sW), SLOT))
        e('v_and_b32 v1, 63, %s' % v(vDMA))
        e('v_lshrrev_b32 v162, 4, %s' % v(vDMA))
        e('v_and_b32 v162, 63, v162')
        e('v_and_b32 v2, 15, v162')
        e('v_lshrrev_b32 v3, 4, v162')
        e('v_and_b32 v4, 7, v2')
        e('v_mul_u32_u24 v160, %d, v4' % CH)
        e('v_lshrrev_b32 v4, 3, v2')
        e('v_lshl_add_u32 v160, v4, 8, v160')
        e('v_lshl_add_u32 v160, v3, 4, v160')
        e('v_add_u32 v160, s52, v160')
        e('v_bfe_u32 v4, v162, 2, 3')
        e('v_mul_u32_u24 v161, %d, v4' % CH)
        e('v_lshrrev_b32 v4, 5, v162')
        e('v_lshl_add_u32 v161, v4, 8, v161')
        e('v_and_b32 v4, 3, v162')
        e('v_lshl_add_u32 v161, v4, 3, v161')
        e('v_add_u32 v161, %d, v161' % VOFF)
        e('v_add_u32 v161, s52, v161')
        e('v_lshlrev_b32 v4, 4, v3')
        e('v_sub_u32 v163, %s, v4' % v(vQ))
        e('v_and_b32 v4, 1, v3')
        e('v_lshl_add_u32 v163, v4, 5, v163')
        e('v_lshrrev_b32 v4, 1, v3')
        e('v_lshl_add_u32 v163, v4, 4, v163')
        e('v_lshlrev_b32 v162, 4, v162')
        e('s_mov_b32 s53, 0')
        e('L_slow_head:')
        e('s_cmp_eq_u32 s53, 0')
        e('s_cselect_b64 s[54:55], %s, %s' % (rng('s', sFLAG[0], 2), rng('s', sFLAG[1], 2)))
        e('s_cmp_eq_u64 s[54:55], 0')
        e('s_cbranch_scc1 L_slow_next')
        e('s_mov_b32 s56, 0')
        e('L_slow_blk:')
        e('s_mul_i32 s57, s53, 98304')
        e('s_lshr_b32 s58, s56, 1')
        e('s_lshl_b32 s58, s58, 13')
        e('s_add_u32 s57, s57, s58')
        e('s_and_b32 s58, s56, 1')
        e('s_lshl_b32 s58, s58, 9')
        e('s_add_u32 s57, s57, s58')
        for st in range(4):
            e('buffer_load_dwordx4 v[%d:%d], %s, %s, s57 offen offset:%d' % (
                4 * st, 4 * st + 3, v(vQ), rng('s', sQ, 4), 64 * st))
        e('s_waitcnt vmcnt(0)')
        for i in range(16):
            e('v_lshlrev_b32 v42, 16, v%d' % i)
            e('v_and_b32 v43, %s, v%d' % (s(sMASK), i))
            e('v_mul_f32 v42, %s, v42' % s(sC))
            e('v_mul_f32 v43, %s, v43' % s(sC))
            e('v_cvt_pk_bf16_f32 v%d, v42, v43' % (16 + i))
        e('v_mov_b32 v32, 0xff800000')
        e('v_mov_b32 v33, 0')
        for i in range(32):
            e('v_mov_b32 v%d, 0' % (64 + i))
        e('s_mul_i32 s59, s53, 262144')
        e('s_mov_b32 s60, 0')
        e('L_slow_tile:')
        for c in range(8):
            for which, srd in ((0, sK), (VOFF, sV)):
                e('s_add_u32 m0, s52, %d' % (which + c * CH))
                e('s_add_u32 s61, s59, %d' % (c * 1024))
                e('buffer_load_dwordx4 v162, %s, s61 offen lds' % rng('s', srd, 4))
        e('s_waitcnt vmcnt(0)')
        for u in range(2):
            for st in range(4):
                d = 96 + 16 * u + 4 * st
                e('ds_read_b128 v[%d:%d], v160 offset:%d' % (d, d + 3, 512 * u + 64 * st))
        e('s_waitcnt lgkmcnt(0)')
        for t in range(8):
            for pp in range(2):
                d = 128 + 4 * t + 2 * pp
                e('ds_read_b64_tr_b16 v[%d:%d], v161 offset:%d' % (d, d + 1, 512 * pp + 32 * t))
            if t == 3:
                e('s_waitcnt lgkmcnt(0)')
        e('s_waitcnt lgkmcnt(0)')
        for u in range(2):
            for st in range(4):
                d = 34 + 4 * u
                k = 96 + 16 * u + 4 * st
                e('v_mfma_f32_16x16x32_bf16 v[%d:%d], v[%d:%d], v[%d:%d], %s' % (
                    d, d + 3, k, k + 3, 16 + 4 * st, 19 + 4 * st, '0' if st == 0 else 'v[%d:%d]' % (d, d + 3)))
        e('s_nop 15')
        e('v_max3_f32 v42, v34, v35, v36')
        e('v_max3_f32 v42, v42, v37, v38')
        e('v_max3_f32 v42, v42, v39, v40')
        e('v_max3_f32 v42, v42, v41, v32')
        e('v_mov_b32 v43, v42')
        e('s_nop 2')
        e('v_permlane16_swap_b32 v42, v43')
        e('s_nop 2')
        e('v_max_f32 v42, v42, v43')
        e('v_mov_b32 v43, v42')
        e('s_nop 2')
        e('v_permlane32_swap_b32 v42, v43')
        e('s_nop 2')
        e('v_max_f32 v42, v42, v43')
        e('v_sub_f32 v44, v32, v42')
        e('v_exp_f32 v44, v44')
        e('v_mov_b32 v32, v42')
        for r in range(8):
            e('v_sub_f32 v%d, v%d, v42' % (34 + r, 34 + r))
        for r in range(8):
            e('v_exp_f32 v%d, v%d' % (34 + r, 34 + r))
        e('s_nop 1')
        e('v_mul_f32 v33, v33, v44')
        for i in range(4):
            e('v_cvt_pk_bf16_f32 v%d, v%d, v%d' % (48 + i, 34 + 2 * i, 35 + 2 * i))
        for i in range(4):
            e('v_lshlrev_b32 v45, 16, v%d' % (48 + i))
            e('v_and_b32 v46, %s, v%d' % (s(sMASK), 48 + i))
            e('v_add_f32 v33, v33, v45')
            e('v_add_f32 v33, v33, v46')
        for i in range(32):
            e('v_mul_f32 v%d, v%d, v44' % (64 + i, 64 + i))
        e('s_nop 2')
        for t in range(8):
            d = 64 + 4 * t
            e('v_mfma_f32_16x16x32_bf16 v[%d:%d], v[%d:%d], v[48:51], v[%d:%d]' % (
                d, d + 3, 128 + 4 * t, 131 + 4 * t, d, d + 3))
        e('s_nop 15')
        e('s_add_u32 s59, s59, 8192')
        e('s_add_u32 s60, s60, 1')
        e('s_cmp_lt_u32 s60, 32')
        e('s_cbranch_scc1 L_slow_tile')
        e('v_mov_b32 v43, v33')
        e('s_nop 2')
        e('v_permlane16_swap_b32 v33, v43')
        e('s_nop 2')
        e('v_add_f32 v33, v33, v43')
        e('v_mov_b32 v43, v33')
        e('s_nop 2')
        e('v_permlane32_swap_b32 v33, v43')
        e('s_nop 2')
        e('v_add_f32 v33, v33, v43')
        e('v_rcp_f32 v33, v33')
        e('s_nop 1')
        for i in range(32):
            e('v_mul_f32 v%d, v%d, v33' % (64 + i, 64 + i))
        for tau in range(4):
            b0 = 64 + 8 * tau
            e('v_cvt_pk_bf16_f32 v%d, v%d, v%d' % (b0, b0, b0 + 1))
            e('v_cvt_pk_bf16_f32 v%d, v%d, v%d' % (b0 + 1, b0 + 2, b0 + 3))
            e('v_cvt_pk_bf16_f32 v%d, v%d, v%d' % (b0 + 2, b0 + 4, b0 + 5))
            e('v_cvt_pk_bf16_f32 v%d, v%d, v%d' % (b0 + 3, b0 + 6, b0 + 7))
            e('s_nop 2')
            e('v_permlane16_swap_b32 v%d, v%d' % (b0, b0 + 2))
            e('v_permlane16_swap_b32 v%d, v%d' % (b0 + 1, b0 + 3))
            e('s_nop 2')
            e('buffer_store_dwordx4 v[%d:%d], %s, %s, s57 offen offset:%d' % (
                b0, b0 + 3, 'v163', rng('s', sO, 4), 64 * tau))
        e('s_waitcnt vmcnt(0)')
        e('s_add_u32 s56, s56, 1')
        e('s_cmp_lt_u32 s56, 6')
        e('s_cbranch_scc1 L_slow_blk')
        e('L_slow_next:')
        e('s_add_u32 s53, s53, 1')
        e('s_cmp_lt_u32 s53, 2')
        e('s_cbranch_scc1 L_slow_head')
        e('s_endpgm')
        return o

    def build(self):
        cfg = self.cfg
        self.lastdma = {}
        self.qs_chain = self.od_chain = self.od_st = None
        self.build_backbone()
        self.reserve_wait_slots()
        pro = self.prologue()
        self.early()
        self.v0wait.meta['vm_for'] = self.lastdma[0]
        self.softmax()
        self.kv_stream()
        self.qb()
        self.epilogue(0)
        self.epilogue(1)
        for J, w in self.barwait.items():
            tw = w.meta['tile_wait']
            if cfg.no_dma and self.inloop(J):
                w.text = 's_nop 0'
                w.kind = 'nop'
            elif tw == 'all':
                w.meta['vm_for_last_dma'] = True
            elif tw in self.lastdma:
                w.meta['vm_for'] = self.lastdma[tw]
            else:
                assert cfg.no_dma
                w.text = 's_nop 0'
                w.kind = 'nop'
        gaps = schedule(self.bb, self.flex)
        body = linearize(self.bb, gaps)
        prog0 = pro + body
        lastd = None
        for ins in prog0:
            if ins.kind == 'dma':
                lastd = ins
            if ins.meta.get('vm_for_last_dma'):
                ins.meta['vm_for'] = lastd
        insert_waits(prog0)
        for l0, l1 in (cfg.loopA, cfg.loopB):
            for ph in range(cfg.U):
                ws = [self.barwait[J] for J in range(l0 + ph, l1, cfg.U) if self.barwait[J].kind == 'wait']
                if ws:
                    cap = min(w.meta['vm'] for w in ws)
                    for w in ws:
                        w.meta['vm_cap'] = cap
        if cfg.xp:
            def drop(i):
                t = i.text
                if 'd' in cfg.xp and i.kind == 'dma' and rng('s', sQ, 4) in t and s(sQT2) in t: return True
                if 'w' in cfg.xp and t.startswith('ds_write_b128 %s' % v(T(5))): return True
                if 'v' in cfg.xp and i.kind == 'valu' and any(r in (v(T(k)) for k in range(5)) for r in i.wrregs()) and i.gap is not None and i.gap > self.pstart[12] and i.gap < self.pstart[174]: return True
                if 's' in cfg.xp and i.kind == 'vstore' and s(sOSO) in t: return True
                if 'r' in cfg.xp and t.startswith('ds_read_b128 v') and v(T(8)) in t: return True
                return False
            prog0 = [i for i in prog0 if not drop(i)]
            insert_waits(prog0)
            for l0, l1 in (cfg.loopA, cfg.loopB):
                for ph in range(cfg.U):
                    ws = [self.barwait[J] for J in range(l0 + ph, l1, cfg.U) if self.barwait[J].kind == 'wait']
                    for w in ws:
                        w.meta.pop('vm_cap', None)
            insert_waits(prog0)
            for l0, l1 in (cfg.loopA, cfg.loopB):
                for ph in range(cfg.U):
                    ws = [self.barwait[J] for J in range(l0 + ph, l1, cfg.U) if self.barwait[J].kind == 'wait']
                    cap = min(w.meta['vm'] for w in ws)
                    for w in ws:
                        w.meta['vm_cap'] = cap
        prog = insert_waits(prog0)
        if cfg.pk_tail:
            prog = self.pack_tail_muls(prog)
        prog, nn = fix_hazards(prog, verbose=cfg.debug)
        errs = check_tags(prog) if not cfg.xp else 0
        assert errs == 0, errs
        self.check_m0(prog)
        self.gaps = gaps
        self.prog = prog
        self.nnops = nn
        return prog

    def pack_tail_muls(self, prog):
        import re
        last = max(i for i, x in enumerate(prog) if x.kind == 'mfma')
        out = prog[:last + 1]
        rest = prog[last + 1:]
        i = 0
        pat = re.compile(r'v_mul_f32 v(\d+), v(\d+), v(\d+)$')
        while i < len(rest):
            x = rest[i]
            m = pat.match(x.text)
            if m and i + 1 < len(rest):
                m2 = pat.match(rest[i + 1].text)
                d, r, sx = int(m.group(1)), int(m.group(2)), int(m.group(3))
                if m2 and d == sx and d % 2 == 0 and int(m2.group(1)) == d + 1 and int(m2.group(3)) == d + 1 \
                        and int(m2.group(2)) == r:
                    base = r & ~1
                    sel = 'op_sel_hi:[1,0]' if r % 2 == 0 else 'op_sel:[0,1] op_sel_hi:[1,1]'
                    y = rest[i + 1]
                    p = Ins('v_pk_mul_f32 v[%d:%d], v[%d:%d], v[%d:%d] %s' % (d, d + 1, d, d + 1, base, base + 1, sel),
                            'valu', x.rd + y.rd, x.wr + y.wr)
                    out.append(p)
                    i += 2
                    continue
            out.append(x)
            i += 1
        return out

    def check_m0(self, prog):
        lastm0 = None
        used = set()
        for ins in prog:
            if 'm0' in ins.wrregs():
                lastm0 = ins
            if ins.kind == 'dma':
                assert lastm0 is not None and lastm0.uid not in used, ('M0 reuse', ins.text)
                for d, _ in ins.deps:
                    if 'm0' in d.wrregs():
                        assert d is lastm0, ('M0 clobbered', ins.text)
                used.add(lastm0.uid)

    def roll(self):
        cfg = self.cfg
        prog = self.prog
        segs = []
        cur = []
        names = ['pre']
        for ins in prog:
            cur.append(ins)
            if ins.kind == 'mfma' and 'tile_start' in ins.meta:
                segs.append(cur)
                cur = []
                names.append(ins.meta['tile_start'])
        segs.append(cur)
        seg = dict(zip(names, segs))
        txt = lambda J: [i.text for i in seg[J]]
        U = cfg.U
        loops = [cfg.loopA, cfg.loopB]
        for l0, l1 in loops:
            assert (l1 - l0) % U == 0, (l0, l1)
            for J in range(l0, l1):
                ref = txt(l0 + (J - l0) % U)
                if txt(J) != ref:
                    x, y = txt(J), ref
                    for i in range(min(len(x), len(y))):
                        if x[i] != y[i]:
                            print('tile', J, 'differs at', i, x[i], '|', y[i])
                            break
                    raise Exception('tile %d not periodic' % J)
        out = []
        nst = [0]

        def stamp(real=False, late=False):
            if not cfg.stamps or (late and cfg.start_stamps):
                return
            k = 64 + 2 * nst[0]
            nst[0] += 1
            out.append('    s_waitcnt lgkmcnt(0)')
            out.append('    %s s[%d:%d]' % ('s_memrealtime' if real else 's_memtime', k, k + 1))
            out.append('    s_waitcnt lgkmcnt(0)')

        def fmt(i):
            if cfg.bar_stamps and i.meta.get('tile_wait') is not None and i.kind == 'wait':
                return ['    s_waitcnt lgkmcnt(0)', '    s_memtime s[96:97]', '    s_waitcnt lgkmcnt(0)', '    ' + i.text,
                        '    s_memtime s[98:99]', '    s_waitcnt lgkmcnt(0)',
                        '    s_sub_u32 s98, s98, s96', '    s_add_u32 s100, s100, s98']
            if cfg.bar_stamps and i.kind == 'bar' and 'assert_lg_done' in i.meta:
                return ['    s_memtime s[96:97]', '    s_waitcnt lgkmcnt(0)', '    s_barrier',
                        '    s_memtime s[98:99]', '    s_waitcnt lgkmcnt(0)',
                        '    s_sub_u32 s98, s98, s96', '    s_add_u32 s101, s101, s98']
            return ['    ' + i.text]

        def emit(J):
            for i in seg[J]:
                if cfg.stamps and i.meta.get('stamp'):
                    stamp()
                out.extend(fmt(i))
        stamp(True)
        stamp()
        if cfg.bar_stamps:
            out.append('    s_mov_b32 s100, 0')
            out.append('    s_mov_b32 s101, 0')
        emit('pre')
        J = 1
        for li, (l0, l1) in enumerate(loops):
            while J < l0:
                emit(J)
                J += 1
            stamp(late=li > 0)
            out.append('    s_mov_b32 %s, %d' % (s(sCNT), (l1 - l0) // U - 1))
            out.append('L_loop%d:' % li)
            for r in range(U):
                sg = seg[l0 + r]
                lines = [fmt(i) for i in sg]
                if r == U - 1:
                    idx = [k for k, i in enumerate(sg) if i.kind == 'mfma']
                    k = idx[-2]
                    for i in sg[k + 1:]:
                        assert 'scc' not in i.wrregs(), i.text
                    lines.insert(k + 1, ['    s_sub_u32 %s, %s, 1' % (s(sCNT), s(sCNT))])
                    lines.append(['    s_cbranch_scc0 L_loop%d' % li])
                for x in lines:
                    out.extend(x)
            stamp(late=True)
            J = l1
        while J < NT:
            emit(J)
            J += 1
        stamp()
        if cfg.stamps:
            out.append('    s_waitcnt vmcnt(0)')
            stamp()
            stamp(True)
            if cfg.dbg_wg is not None:
                n_ = nst[0]
                out.append('    s_cmp_lg_u32 s2, %d' % cfg.dbg_wg)
                out.append('    s_cbranch_scc1 L_nodbg')
                out.append('    s_cmp_lg_u32 %s, 0' % s(sW))
                out.append('    s_cbranch_scc1 L_nodbg')
                out.append('    s_load_dwordx2 s[44:45], s[0:1], 32')
                out.append('    s_waitcnt lgkmcnt(0)')
                out.append('    s_and_b32 s45, s45, 0xffff')
                out.append('    s_mov_b32 s46, 256')
                out.append('    s_mov_b32 s47, 0x20000')
                out.append('    s_mov_b64 s[32:33], exec')
                out.append('    s_mov_b64 exec, 1')
                out.append('    v_mov_b32 v1, 0')
                vals = [('s%d' % (64 + 2 * (n_ - 1)), 's64')] + [('s%d' % (64 + 2 * (n_ - 2)), 's66')]
                vals += [('s%d' % (64 + 2 * (k + 1)), 's%d' % (64 + 2 * k)) for k in range(1, n_ - 2)]
                for k, (x, y) in enumerate(vals):
                    out.append('    s_sub_u32 s3, %s, %s' % (x, y))
                    out.append('    v_mov_b32 v0, s3')
                    out.append('    buffer_store_dword v0, v1, s[44:47], 0 offen offset:%d' % (4 * k))
                    out.append('    s_waitcnt vmcnt(0)')
                out.append('    s_mov_b64 exec, s[32:33]')
                out.append('L_nodbg:')
            out.append('    s_load_dwordx2 s[44:45], s[0:1], 40')
            out.append('    s_waitcnt lgkmcnt(0)')
            out.append('    s_and_b32 s45, s45, 0xffff')
            out.append('    s_mov_b32 s46, 0x100000')
            out.append('    s_mov_b32 s47, 0x20000')
            out.append('    s_lshl_b32 s3, s2, 2')
            out.append('    s_add_u32 s3, s3, %s' % s(sW))
            out.append('    s_lshl_b32 s3, s3, 7')
            extra = [100, 101] if cfg.bar_stamps else []
            for k, sr in enumerate([64 + 2 * k for k in range(nst[0])] + extra):
                out.append('    v_mov_b32 v0, s%d' % sr)
                out.append('    v_mov_b32 v1, s3')
                out.append('    s_mov_b64 s[32:33], exec')
                out.append('    s_mov_b64 exec, 1')
                out.append('    buffer_store_dword v0, v1, s[44:47], 0 offen offset:%d' % (4 * k))
                out.append('    s_waitcnt vmcnt(0)')
                out.append('    s_mov_b64 exec, s[32:33]')
        out.append('    s_or_b64 s[54:55], %s, %s' % (rng('s', sFLAG[0], 2), rng('s', sFLAG[1], 2)))
        out.append('    s_cbranch_scc1 L_slow')
        out.append('L_done:')
        out.append('    s_endpgm')
        for l in self.slowpath():
            out.append(l if l.endswith(':') else '    ' + l)
        return out, seg


HEADER = """; Kernarg layout for this problem (48 bytes, ptrs only, base s[0:1]):
; @launch grid=(256,1,1) block=(256,1,1) lds=%d
.amdgcn_target "amdgcn-amd-amdhsa--gfx950"
.text
.globl NAME_kernel
.p2align 8
.type NAME_kernel,@function
NAME_kernel:
"""
FOOTER = """
.section .rodata,"a"
.p2align 6
.amdhsa_kernel NAME_kernel
  .amdhsa_next_free_vgpr 512
  .amdhsa_next_free_sgpr 102
  .amdhsa_accum_offset 256
  .amdhsa_group_segment_fixed_size 0
  .amdhsa_kernarg_size 48
  .amdhsa_user_sgpr_count 2
  .amdhsa_user_sgpr_kernarg_segment_ptr 1
  .amdhsa_system_sgpr_workgroup_id_x 1
.end_amdhsa_kernel
"""


def generate(cfg):
    g = Gen(cfg)
    g.build()
    lines, seg = g.roll()
    lds = LDS_BYTES
    src = (HEADER % lds).replace('NAME', NAME) + '\n'.join(lines) + '\n' + FOOTER.replace('NAME', NAME)
    return src, g, seg


if __name__ == '__main__':
    cfg = Cfg()
    out = sys.argv[1] if len(sys.argv) > 1 else 'cdna_kernels/%s.s' % NAME
    for kv in sys.argv[2:]:
        k, val = kv.split('=')
        setattr(cfg, k, eval(val))
    src, g, seg = generate(cfg)
    open(out, 'w').write(src)
    print('nops inserted', g.nnops, 'total est cycles', est_cycles(g.prog), 'lines', src.count('\n'))
    print(' '.join('%s:%d' % (J, est_cycles(seg[J])) for J in seg))
```

```python
import sys, os, struct
from sched import *

NAME = 'standalone__gqa_softmax__near_ridge'


class Cfg:
    R = 3
    D = 3
    U = 3
    LAT = 7
    loopA = (2, 29)
    loopB = (34, 61)
    thr = 0x4b800000
    debug = False
    stamps = False
    nt = ' nt'
    st_mod = ' nt sc1'
    st_mod2 = ' nt sc1'
    no_dma = False
    no_qb = False
    no_drain = False
    pair_cvt = True
    p2_early = False
    conv_asap = True
    qa_lds = True
    qa_init = 2
    qplan = {0: [], 1: [1], 2: [2]}
    pk_tail = True
    tail_lds = True
    fullline = True
    vmap = True
    exp_odd = True
    order = 'g44'
    qdepth = 2
    tplan = {1: [1], 4: [2]}
    v0_late = False
    start_stamps = False
    dbg_wg = None
    xp = ''
    bar_stamps = False
    dma_early = True
    qrd_lat = 8


SLOT = 16896
KOFF, VOFF = 0, 8448
CH = 1056
NT = 64
NS = NT * 6
DUMMY = 3 * SLOT
STAGE0 = DUMMY + 3 * CH
STAGEW = 24 * CH
LDS_BYTES = STAGE0 + 4 * STAGEW
C_SCALE = 1.4426950408889634 * (128 ** -0.5)


def f32bits(x):
    return struct.unpack('<I', struct.pack('<f', x))[0]


def O(b, t): return 32 * b + 4 * t
def S(buf, u): return 192 + 8 * buf + 4 * u
def P(buf): return 208 + 4 * buf
def CI(b): return 216 + 4 * b
vIDX, vK, vV, vDMA = 240, 241, 242, 243
def T(i): return 244 + i
vQ, vO = T(10), T(11)
def Q(b, s): return 16 * b + 4 * s
def KF(u, s): return 96 + 16 * u + 4 * s
def VF(t): return 128 + 4 * t
def L(k): return 160 + 4 * k
SA = 172
def QR(b, s): return 176 + 16 * b + 4 * s
def qoff(b): return 8192 * (b >> 1) + 512 * (b & 1)

sK, sV, sQ, sO = 4, 8, 12, 16
sDOFF, sDLDS, sSLOT, sDELTA, sWPART, sTMP, sW, sIDX = 20, 21, 22, 23, 24, 25, 26, 27
sC, sTHR, sMASK = 28, 30, 31
sFLAG = [34, 36]
sCNT, sPHASE, sQOFF, sOOFF = 38, 39, 40, 41
sWPARTV = 21
sSTG, sQI, sQREL, sQM, sQSO, sQT, sQT2 = 42, 44, 45, 46, 47, 48, 49
sOI, sOSO, sOT, sOT2, sOINC = 50, 51, 32, 33, 62


def v(n): return 'v%d' % n
def a(n): return 'a%d' % n
def s(n): return 's%d' % n


def V_(text, rd=(), wr=(), kind='valu'):
    return Ins(text, kind, rd, wr)


def S_(text, rd=(), wr=()):
    return Ins(text, 'salu', rd, list(wr) + ['scc'])


class Gen:
    def __init__(self, cfg):
        self.cfg = cfg
        self.bb = []
        self.flex = []
        self.iQK = {}
        self.iPV = {}
        self.iZ = {}
        self.pos = {}
        self.pstart = {}
        self.pend_ = {}

    def mk_qk(self, n, u, st):
        j, b = (n % 192) // 6, n % 6
        J = n // 6
        d = S(n & 1, u)
        h = n // 192
        rd = [(a(KF(u, st) + i), ('K', J, u, st, i)) for i in range(4)]
        rd += [(a(Q(b, st) + i), ('Q', h, b, st, i)) for i in range(4)]
        if st == 0:
            if j == 0:
                c = '0'
                srcc = []
            else:
                c = rng('v', CI(b), 4)
                srcc = regs('v', CI(b), 4)
                rd += [(r, ('CI', h, b)) for r in srcc]
        else:
            c = rng('v', d, 4)
            srcc = regs('v', d, 4)
            rd += [(v(d + i), ('Sp', n, u, st - 1, i)) for i in range(4)]
        tag = 'Sp' if st < 3 else 'S'
        wr = [(v(d + i), (tag, n, u, st, i) if st < 3 else ('S', n, u, i)) for i in range(4)]
        m = Ins('v_mfma_f32_16x16x32_bf16 %s, %s, %s, %s' % (rng('v', d, 4), rng('a', KF(u, st), 4),
                                                          rng('a', Q(b, st), 4), c),
                'mfma', rd, wr, srcc=srcc)
        m.meta['cls'] = 'xdl'
        return m

    def mk_pv(self, n, t):
        j, b = (n % 192) // 6, n % 6
        J = n // 6
        h = n // 192
        d = O(b, t)
        rd = [(a(VF(t) + i), ('V', J, t, i)) for i in range(4)]
        rd += [(v(P(n & 1) + i), ('P', n, i)) for i in range(4)]
        if j == 0:
            c = '0'
            srcc = []
        else:
            c = rng('v', d, 4)
            srcc = regs('v', d, 4)
            rd += [(v(d + i), ('O', h, b, t, j - 1, i)) for i in range(4)]
        wr = [(v(d + i), ('O', h, b, t, j, i)) for i in range(4)]
        m = Ins('v_mfma_f32_16x16x32_bf16 %s, %s, %s, %s' % (rng('v', d, 4), rng('a', VF(t), 4),
                                                          rng('v', P(n & 1), 4), c),
                'mfma', rd, wr, srcc=srcc)
        m.meta['cls'] = 'xdl'
        return m

    def mk_z(self, p):
        n0 = p - 2
        h, j, k = n0 // 192, (n0 % 192) // 6, (n0 % 6) // 2
        d = L(k)
        rd = [(v(P(0) + i), ('P', n0, i)) for i in range(4)] + [(v(P(1) + i), ('P', n0 + 1, i)) for i in range(4)]
        rd += [(a(SA + i), 'SA') for i in range(4)] + [(v(vIDX), 'IDX')]
        rd += [(a(d + i), ('L', h, k, j - 1, i)) for i in range(4)]
        wr = [(a(d + i), ('L', h, k, j, i)) for i in range(4)]
        m = Ins('v_smfmac_f32_16x16x64_bf16 %s, %s, %s, %s' % (rng('a', d, 4), rng('a', SA, 4),
                                                            rng('v', P(0), 8), v(vIDX)),
                'mfma', rd, wr, srcc=regs('a', d, 4))
        m.meta['cls'] = 'smf'
        return m

    def build_backbone(self):
        bb = self.bb
        for p in range(-1, NS + 1):
            qk = p + 1 if p + 1 < NS else None
            pv = p - 1 if 0 <= p - 1 < NS else None
            z = p >= 2 and p % 2 == 0
            self.pstart[p] = len(bb)
            seq = []
            qs = [('q', i >> 2, i & 3) for i in range(8)] if qk is not None else []
            ps = [('p', i) for i in range(8)] if pv is not None else []
            if self.cfg.order == 'alt' or not qs or not ps:
                for i in range(8):
                    seq += qs[i:i + 1] + ps[i:i + 1]
            elif self.cfg.order == 'g44':
                seq = qs[:4] + ps[:4] + qs[4:] + ps[4:]
            elif self.cfg.order == 'g88':
                seq = qs + ps
            zfirst = self.cfg.order != 'alt'
            zdone = not z
            npos = 0
            for it in seq:
                if it[0] == 'p' and not zdone and zfirst and qs:
                    self.iZ[p] = len(bb)
                    bb.append(self.mk_z(p))
                    zdone = True
                if it[0] == 'q':
                    m = self.mk_qk(qk, it[1], it[2])
                    self.iQK[(qk, it[1], it[2])] = len(bb)
                else:
                    m = self.mk_pv(pv, it[1])
                    self.iPV[(pv, it[1])] = len(bb)
                self.pos[(p, npos)] = len(bb)
                npos += 1
                bb.append(m)
                if it[0] == 'p' and not zdone:
                    self.iZ[p] = len(bb)
                    bb.append(self.mk_z(p))
                    zdone = True
            self.pend_[p] = len(bb) - 1
        for J in range(1, NT):
            k = self.pstart[6 * J]
            bb[k].meta['tile_start'] = J
            bb[k].meta['reserve_scal'] = True
            bb[k - 1].meta['reserve_scal'] = True

    def reserve_wait_slots(self):
        for J in range(1, NT):
            for u in range(2):
                for st in range(4):
                    self.bb[self.iQK[(6 * J, u, st)] - 1].meta['reserve_scal'] = True
        for J in range(0, NT):
            for t in range(8):
                self.bb[self.iPV[(6 * J, t)] - 1].meta['reserve_scal'] = True

    def add(self, ins, lo=None, hi=None, deps=(), prio=0):
        ins.lo, ins.hi, ins.prio = lo, hi, prio
        ins.deps = [d if isinstance(d, tuple) else (d, 0) for d in deps if d is not None]
        self.flex.append(ins)
        return ins

    def softmax(self):
        lastcvt = {}
        for n in range(NS):
            j, b, h = (n % 192) // 6, n % 6, n // 192
            buf = n & 1
            sr = [S(buf, u) + i for u in range(2) for i in range(4)]
            firstpv = self.iPV[(n, 0)]
            normal = j != 0 and (n, 15) in self.pos and n + 2 < NS
            stag = [('S', n, r >> 2, r & 3) for r in range(8)]
            pre = None
            if j == 0:
                t0, t1 = T(0), T(1)
                lo0 = self.iQK[(n, 0, 3)] + 4
                lo1 = self.iQK[(n, 1, 3)] + 4
                prevuse = self.t0_last if hasattr(self, 't0_last') else None
                c = self.add(V_('v_max3_f32 %s, %s, %s, %s' % (v(t0), v(sr[0]), v(sr[1]), v(sr[2])),
                                [(v(sr[i]), stag[i]) for i in range(3)], [(v(t0), ('m0', n))]), lo=lo0,
                             deps=[prevuse])
                c = self.add(V_('v_max_f32 %s, %s, %s' % (v(t0), v(t0), v(sr[3])),
                                [(v(t0), ('m0', n)), (v(sr[3]), stag[3])], [(v(t0), ('m1', n))]), lo=lo0, deps=[c])
                c = self.add(V_('v_max3_f32 %s, %s, %s, %s' % (v(t0), v(t0), v(sr[4]), v(sr[5])),
                                [(v(t0), ('m1', n)), (v(sr[4]), stag[4]), (v(sr[5]), stag[5])],
                                [(v(t0), ('m2', n))]), lo=lo1, deps=[c])
                c = self.add(V_('v_max3_f32 %s, %s, %s, %s' % (v(t0), v(t0), v(sr[6]), v(sr[7])),
                                [(v(t0), ('m2', n)), (v(sr[6]), stag[6]), (v(sr[7]), stag[7])],
                                [(v(t0), ('m3', n))]), lo=lo1, deps=[c])
                c = self.add(V_('v_mov_b32 %s, %s' % (v(t1), v(t0)), [(v(t0), ('m3', n))], [(v(t1), ('m3c', n))]),
                             deps=[c], lo=lo1)
                c = self.add(V_('v_permlane16_swap_b32 %s, %s' % (v(t0), v(t1)),
                                [(v(t0), ('m3', n)), (v(t1), ('m3c', n))],
                                [(v(t0), ('m4a', n)), (v(t1), ('m4b', n))], kind='perm'), deps=[(c, 1)], lo=lo1)
                c = self.add(V_('v_max_f32 %s, %s, %s' % (v(t0), v(t0), v(t1)),
                                [(v(t0), ('m4a', n)), (v(t1), ('m4b', n))], [(v(t0), ('m5', n))]), deps=[c], lo=lo1)
                c = self.add(V_('v_mov_b32 %s, %s' % (v(t1), v(t0)), [(v(t0), ('m5', n))], [(v(t1), ('m5c', n))]),
                             deps=[c], lo=lo1)
                c = self.add(V_('v_permlane32_swap_b32 %s, %s' % (v(t0), v(t1)),
                                [(v(t0), ('m5', n)), (v(t1), ('m5c', n))],
                                [(v(t0), ('m6a', n)), (v(t1), ('m6b', n))], kind='perm'), deps=[(c, 1)], lo=lo1)
                cis = []
                for i in range(4):
                    c = self.add(V_('v_min_f32 %s, -%s, -%s' % (v(CI(b) + i), v(t0), v(t1)),
                                    [(v(t0), ('m6a', n)), (v(t1), ('m6b', n))], [(v(CI(b) + i), ('CI', h, b))]),
                                 deps=[c], lo=lo1)
                    cis.append(c)
                self.t0_last = cis[-1]
                for cc in cis:
                    cc.hi = self.iQK[(n + 6, 0, 0)] - 2
                pre = []
                for r in range(8):
                    c = self.add(V_('v_add_f32 %s, %s, %s' % (v(sr[r]), v(CI(b)), v(sr[r])),
                                    [(v(CI(b)), ('CI', h, b)), (v(sr[r]), stag[r])], [(v(sr[r]), ('Ss', n, r))]),
                                 deps=[cis[0]], lo=lo1)
                    pre.append(c)
                stag = [('Ss', n, r) for r in range(8)]
            exps = []
            for r in range(8):
                e = V_('v_exp_f32 %s, %s' % (v(sr[r]), v(sr[r])), [(v(sr[r]), stag[r])],
                       [(v(sr[r]), ('E', n, r))], kind='trans')
                if normal:
                    g = self.pos[(n, 2 * r + (1 if self.cfg.exp_odd else 0))]
                    self.add(e, lo=g, hi=g, prio=5)
                else:
                    lo = self.iQK[(n, r >> 2, 3)] + 4
                    self.add(e, lo=lo, deps=[pre[r]] if pre else [])
                exps.append(e)
            for i in range(4):
                c = V_('v_cvt_pk_bf16_f32 %s, %s, %s' % (v(P(buf) + i), v(sr[2 * i]), v(sr[2 * i + 1])),
                       [(v(sr[2 * i]), ('E', n, 2 * i)), (v(sr[2 * i + 1]), ('E', n, 2 * i + 1))],
                       [(v(P(buf) + i), ('P', n, i))])
                lo = 0
                if n >= 2:
                    lo = self.iPV[(n - 2, 7)]
                    zp = n if n % 2 == 0 else n - 1
                    zp = (n - 2) - ((n - 2) % 2) + 2
                    lo = max(lo, self.iZ[zp])
                if normal:
                    if self.cfg.exp_odd:
                        g = self.pos[(n, 8)] if i < 2 else self.pstart[n + 1]
                    else:
                        g = self.pos[(n, (8 * (i >> 1) + 7) if self.cfg.pair_cvt else 4 * i + 3)]
                    assert g >= lo
                    self.add(c, lo=g, hi=g, deps=[(exps[2 * i], 1), (exps[2 * i + 1], 1)], prio=5)
                else:
                    hi = firstpv - 2
                    if n + 2 < NS:
                        hi = min(hi, self.iQK[(n + 2, i >> 1, 0)] - 1)
                    self.add(c, lo=lo, hi=hi, deps=[(exps[2 * i], 1), (exps[2 * i + 1], 1)])

    def inloop(self, J):
        return any(a_ <= J < b_ for a_, b_ in (self.cfg.loopA, self.cfg.loopB))

    def dma_group(self, JJ, lo, hi, deps, which=(0, 1, 2, 3)):
        cfg = self.cfg
        prev = self.m0chain
        base = (JJ % cfg.R) * SLOT
        for i in which:
            off = (0, 32, VOFF, VOFF + (8 if cfg.vmap else 32))[i]
            wp = sWPART
            m = S_('s_add_u32 m0, %s, %d' % (s(wp), base + off), [s(wp)], ['m0'])
            self.add(m, lo=lo, hi=hi, deps=list(deps) + ([(prev, 1)] if prev else []))
            srd = sK if i < 2 else sV
            dma = Ins('buffer_load_dwordx4 %s, %s, %s offen%s%s lds' % (
                v(vDMA), rng('s', srd, 4), s(sDOFF), ' offset:1024' if i & 1 else '', cfg.nt), 'dma',
                [v(vDMA), 'm0', s(sDOFF)] + regs('s', srd, 4), [])
            dma.meta['tile'] = JJ
            self.add(dma, lo=lo, hi=hi, deps=[(m, 1)] + list(deps))
            prev = dma
        self.m0chain = prev
        self.lastdma[JJ] = prev
        return prev

    def kv_stream(self):
        cfg = self.cfg
        R, D = cfg.R, cfg.D
        self.bar = {}
        self.barwait = {}
        kreads = {}
        chain = None
        for J in range(0, NT):
            p3 = 6 * J + 3
            last = J == NT - 1
            if cfg.loopA[0] - 1 <= J < cfg.loopA[1] and not cfg.no_qb:
                self.q_stage_tile(J, dma_only=J < cfg.loopA[0])
            if cfg.loopB[0] <= J < cfg.loopB[1] and not cfg.no_drain:
                self.o_drain_tile(J)
            vr = []
            for t in range(8):
                for pp in range(2):
                    d = VF(t) + 2 * pp
                    ins = Ins('ds_read_b64_tr_b16 %s, %s offset:%d' % (
                        rng('a', d, 2), v(vV), (J % R) * SLOT + 512 * pp +
                        ((64 * (t >> 1) + 8 * (t & 1)) if cfg.vmap else 32 * t)),
                        'ds', [v(vV)], [(a(d + i), ('V', J, t, 2 * pp + i)) for i in range(2)])
                    lo_ = self.iPV[(6 * J - 1, t)] if J > 0 else 0
                    hi_ = self.iPV[(6 * J, t)] - cfg.LAT
                    if J > 0:
                        deps = [(self.bar[J - 1], 0)]
                    else:
                        deps = [(self.bar_v0, 0)]
                        lo_ = max(lo_, self.bar_v0.lo)
                    self.add(ins, lo=lo_, hi=max(hi_, lo_), deps=deps)
                    vr.append(ins)
            e = self.pend_[p3]
            w = Ins('s_waitcnt vmcnt(0)', 'wait')
            w.meta['tile_wait'] = J + 1 if not last else 'all'
            self.add(w, lo=e - 2, hi=e - 1)
            bar = Ins('s_barrier', 'bar')
            bar.meta['assert_lg_done'] = set(vr) | set(kreads.get(J, []))
            self.add(bar, lo=e - 1, hi=e, deps=[(w, 1)])
            self.bar[J] = bar
            self.barwait[J] = w
            if cfg.start_stamps and J < 2:
                bar.meta['stamp'] = True
            if last:
                break
            kr = []
            for u in range(2):
                for st in range(4):
                    d = KF(u, st)
                    ins = Ins('ds_read_b128 %s, %s offset:%d' % (
                        rng('a', d, 4), v(vK), ((J + 1) % R) * SLOT + 512 * u + 64 * st), 'ds',
                        [v(vK)], [(a(d + i), ('K', J + 1, u, st, i)) for i in range(4)])
                    lo_ = self.iQK[(6 * J + 5, u, st)]
                    hi_ = self.iQK[(6 * J + 6, u, st)] - cfg.LAT
                    self.add(ins, lo=lo_, hi=max(hi_, lo_), deps=[(bar, 0)])
                    kr.append(ins)
            kreads[J + 1] = kr
            JJ = J + D
            if JJ < NT and not (cfg.no_dma and self.inloop(J)):
                lo_ = self.pstart[6 * J + 5] - 2
                hi_ = self.pend_[6 * J + 5] - 1
                if cfg.dma_early:
                    lo_ = self.pend_[6 * J + 3]
                    hi_ = self.pstart[6 * J + 5] + 2
                if J == 0:
                    inc = self.doff_final
                else:
                    inc = self.add(S_('s_add_u32 %s, %s, 8192' % (s(sDOFF), s(sDOFF)), [s(sDOFF)], [s(sDOFF)]),
                                   lo=self.pstart[6 * J + 2] + 1, hi=self.pend_[6 * J + 3] - 3, deps=[(chain, 1)])
                chain = self.dma_group(JJ, lo_, hi_, [(bar, 1), (inc, 1)])

    def q_stage_tile(self, J, dma_only=False):
        cfg = self.cfg
        lo, hi = self.pstart[6 * J + 1] + 2, self.pend_[6 * J + 3] - 3
        prev = self.qs_chain

        def sc(ins, h=hi):
            nonlocal prev
            prev = self.add(ins, lo=lo, hi=h, deps=[(prev, 1)] if prev else [])
            return prev
        sc(S_('s_add_u32 %s, %s, 1' % (s(sQI), s(sQI)), [s(sQI)], [s(sQI)]))
        sc(S_('s_add_u32 %s, %s, %d' % (s(sQREL), s(sQREL), CH), [s(sQREL)], [s(sQREL)]))
        sc(S_('s_add_u32 %s, %s, 1024' % (s(sQSO), s(sQSO)), [s(sQSO)], [s(sQSO)]))
        sc(S_('s_sub_u32 %s, %s, 24' % (s(sQM), s(sQI)), [s(sQI)], [s(sQM)]))
        sc(S_('s_ashr_i32 %s, %s, 31' % (s(sQM), s(sQM)), [s(sQM)], [s(sQM)]))
        sc(S_('s_and_b32 %s, %s, %s' % (s(sQT), s(sQREL), s(sQM)), [s(sQREL), s(sQM)], [s(sQT)]))
        sc(S_('s_andn2_b32 %s, 0x40000000, %s' % (s(sQT2), s(sQM)), [s(sQM)], [s(sQT2)]))
        so = sc(S_('s_or_b32 %s, %s, %s' % (s(sQT2), s(sQT2), s(sQSO)), [s(sQT2), s(sQSO)], [s(sQT2)]))
        wlo, whi = self.pstart[6 * J + 5] - 3, self.pstart[6 * J + 5] + 3
        if cfg.dma_early:
            wlo, whi = self.pend_[6 * J + 3] - 4, self.pend_[6 * J + 3] + 2
        m = S_('s_add_u32 m0, %s, %d' % (s(sQT), DUMMY), [s(sQT)], ['m0'])
        self.add(m, lo=wlo, hi=whi, deps=[(so, 1)] + ([(self.m0chain, 1)] if self.m0chain else []))
        dma = Ins('buffer_load_dwordx4 %s, %s, %s offen%s lds' % (v(vDMA), rng('s', sQ, 4), s(sQT2), cfg.nt), 'dma',
                  [v(vDMA), 'm0', s(sQT2)] + regs('s', sQ, 4), [])
        self.add(dma, lo=wlo, hi=whi, deps=[(m, 1)])
        self.m0chain = dma
        self.qs_chain = dma
        if dma_only:
            return
        t0, tb, ad = T(0), T(4), T(5)
        key = ('qc', J)
        lo = self.pstart[6 * J + 1] + 8
        hi = self.pend_[6 * J + 3] - 3
        rd = Ins('ds_read_b128 %s, %s' % (rng('v', t0, 4), v(ad)), 'ds', [v(ad)],
                 [(v(t0 + i), (key, 'raw', i)) for i in range(4)])
        self.add(rd, lo=lo, hi=self.pstart[6 * J + 2] - 2, deps=[(self.qc_chain, 1)] if self.qc_chain else [])
        c = None
        lo2 = self.pstart[6 * J + 2] + 1
        for i in range(4):
            r = t0 + i
            c = self.add(V_('v_lshlrev_b32 %s, 16, %s' % (v(tb), v(r)), [(v(r), (key, 'raw', i))], [(v(tb), (key, 'b', i))]),
                         lo=lo2, deps=[(rd, cfg.qrd_lat), c] if c else [(rd, cfg.qrd_lat)])
            c = self.add(V_('v_and_b32 %s, %s, %s' % (v(r), s(sMASK), v(r)), [(v(r), (key, 'raw', i)), s(sMASK)],
                            [(v(r), (key, 'c', i))]), lo=lo2, deps=[c])
            c = self.add(V_('v_mul_f32 %s, %s, %s' % (v(tb), s(sC), v(tb)), [(v(tb), (key, 'b', i)), s(sC)],
                            [(v(tb), (key, 'd', i))]), lo=lo2, deps=[c])
            c = self.add(V_('v_mul_f32 %s, %s, %s' % (v(r), s(sC), v(r)), [(v(r), (key, 'c', i)), s(sC)],
                            [(v(r), (key, 'e', i))]), lo=lo2, deps=[c])
            c = self.add(V_('v_cvt_pk_bf16_f32 %s, %s, %s' % (v(r), v(tb), v(r)),
                            [(v(r), (key, 'e', i)), (v(tb), (key, 'd', i))], [(v(r), (key, 'f', i))]), lo=lo2, deps=[c])
        wr = Ins('ds_write_b128 %s, %s' % (v(ad), rng('v', t0, 4)), 'dsw',
                 [v(ad)] + [(v(t0 + i), (key, 'f', i)) for i in range(4)], [])
        self.add(wr, lo=lo2, hi=hi + 20, deps=[(c, 1)])
        up = self.add(V_('v_add_u32 %s, %d, %s' % (v(ad), CH, v(ad)), [v(ad)], [v(ad)]), lo=lo2, hi=hi + 24,
                      deps=[(wr, 0)])
        self.qc_chain = up
        self.qc_lastwrite = wr

    def o_drain_tile(self, J):
        cfg = self.cfg
        ph = (J - cfg.loopB[0]) % cfg.U
        if ph == 0:
            lo, hi = self.pstart[6 * J] + 2, self.pend_[6 * J + 1]
            prev = self.od_chain

            def sc(ins):
                nonlocal prev
                prev = self.add(ins, lo=lo, hi=hi, deps=[(prev, 1)] if prev else [])
                return prev
            sc(S_('s_lshr_b32 %s, %s, 1' % (s(sOT), s(sOI)), [s(sOI)], [s(sOT)]))
            sc(S_('s_lshl_b32 %s, %s, 13' % (s(sOT), s(sOT)), [s(sOT)], [s(sOT)]))
            sc(S_('s_and_b32 %s, %s, 1' % (s(sOT2), s(sOI)), [s(sOI)], [s(sOT2)]))
            sc(S_('s_lshl_b32 %s, %s, 9' % (s(sOT2), s(sOT2)), [s(sOT2)], [s(sOT2)]))
            sc(S_('s_add_u32 %s, %s, %s' % (s(sOSO), s(sOT), s(sOT2)), [s(sOT), s(sOT2)], [s(sOSO)]))
            sc(S_('s_sub_u32 %s, %s, 6' % (s(sOT), s(sOI)), [s(sOI)], [s(sOT)]))
            sc(S_('s_ashr_i32 %s, %s, 31' % (s(sOT), s(sOT)), [s(sOT)], [s(sOT)]))
            sc(S_('s_andn2_b32 %s, 0x40000000, %s' % (s(sOT2), s(sOT)), [s(sOT)], [s(sOT2)]))
            sc(S_('s_or_b32 %s, %s, %s' % (s(sOSO), s(sOSO), s(sOT2)), [s(sOSO), s(sOT2)], [s(sOSO)]))
            sc(S_('s_and_b32 %s, %d, %s' % (s(sOINC), 2 * CH, s(sOT)), [s(sOT)], [s(sOINC)]))
            sc(S_('s_add_u32 %s, %s, 1' % (s(sOI), s(sOI)), [s(sOI)], [s(sOI)]))
            self.od_scal = prev
            self.od_chain = prev
        if ph > 1:
            return
        ad = T(8)
        key = ('od', J)
        lo = self.pstart[6 * J + 2] + 1
        rds = []
        for q in range(2):
            t0 = T(4 * q)
            rd = Ins('ds_read_b128 %s, %s offset:%d' % (rng('v', t0, 4), v(ad), (128 if cfg.fullline else CH) * q),
                     'ds', [v(ad)],
                     [(v(t0 + i), (key, q, i)) for i in range(4)])
            self.add(rd, lo=lo, hi=lo + 6, deps=[(self.od_st, 1)] if self.od_st else [])
            rds.append(rd)
        up = self.add(V_('v_add_u32 %s, %s, %s' % (v(ad), s(sOINC), v(ad)), [v(ad), s(sOINC)], [v(ad)]),
                      lo=lo, hi=self.pend_[6 * J + 3], deps=[(rds[0], 0), (rds[1], 0), (self.od_scal, 1)])
        for q in range(2):
            t0 = T(4 * q)
            st = Ins('buffer_store_dwordx4 %s, %s, %s, %s offen offset:%d%s' % (
                rng('v', t0, 4), v(vO), rng('s', sO, 4), s(sOSO),
                128 * ph + (256 if cfg.fullline else 64) * q, cfg.st_mod), 'vstore',
                [(v(t0 + i), (key, q, i)) for i in range(4)] + [v(vO), s(sOSO)] + regs('s', sO, 4), [])
            self.add(st, lo=lo + 10, hi=self.pend_[6 * J + 3] - 3, deps=[(rds[q], cfg.qrd_lat + 1), (self.od_scal, 1)])
            self.od_st = st
        self.od_chain = self.od_st if ph == 1 else self.od_chain

    def epilogue(self, h):
        cfg = self.cfg
        self.st_last = None
        if h == 1 and cfg.tail_lds:
            assert cfg.vmap and cfg.fullline
            lo_ = self.pstart[6 * cfg.loopB[1]] + 2
            hi_ = self.pstart[6 * 62]
            t0_ = T(0)
            c = self.add(V_('v_bfe_u32 %s, %s, 4, 3' % (v(t0_), v(vDMA)), [v(vDMA)], [v(t0_)]), lo=lo_, hi=hi_)
            c = self.add(V_('v_lshrrev_b32 %s, 2, %s' % (v(T(9)), v(t0_)), [v(t0_)], [v(T(9))]), lo=lo_, hi=hi_, deps=[c])
            c = self.add(V_('v_mul_u32_u24 %s, %d, %s' % (v(T(9)), CH, v(T(9))), [v(T(9))], [v(T(9))]), lo=lo_, hi=hi_, deps=[c])
            c = self.add(V_('v_and_b32 %s, 3, %s' % (v(t0_), v(t0_)), [v(t0_)], [v(t0_)]), lo=lo_, hi=hi_, deps=[c])
            c = self.add(V_('v_lshl_add_u32 %s, %s, 8, %s' % (v(T(9)), v(t0_), v(T(9))), [v(t0_), v(T(9))], [v(T(9))]), lo=lo_, hi=hi_, deps=[c])
            c = self.add(V_('v_bfe_u32 %s, %s, 7, 3' % (v(t0_), v(vDMA)), [v(vDMA)], [v(t0_)]), lo=lo_, hi=hi_, deps=[c])
            c = self.add(V_('v_lshl_add_u32 %s, %s, 4, %s' % (v(T(9)), v(t0_), v(T(9))), [v(t0_), v(T(9))], [v(T(9))]), lo=lo_, hi=hi_, deps=[c])
            self.tr_addr = self.add(V_('v_add_u32 %s, %s, %s' % (v(T(9)), s(sSTG), v(T(9))), [s(sSTG), v(T(9))],
                                       [(v(T(9)), 'traddr')]), lo=lo_, hi=hi_, deps=[c])
            self.tw_addr = self.add(V_('v_add_u32 %s, %s, %s' % (v(T(8)), s(43), v(vDMA)), [s(43), v(vDMA)],
                                       [(v(T(8)), 'twaddr')]), lo=lo_, hi=hi_)
        prev_wr = None
        prevchain = getattr(self, 'sq_chain', None)
        lread = {}
        for b in range(6):
            n = 192 * h + 186 + b
            k, e = b >> 1, b & 1
            zi = self.iZ[192 * h + 188 + 2 * k]
            x = T(2 + (b & 1))
            y = T(4)
            nxt = n + 6 if h == 0 else None
            jl = 31
            prevx = getattr(self, 'xlast', {}).get(b & 1)
            r0 = self.add(V_('v_accvgpr_read_b32 %s, %s' % (v(x), a(L(k) + 2 * e)),
                             [(a(L(k) + 2 * e), ('L', h, k, jl, 2 * e))], [(v(x), ('l0', h, b))]),
                          lo=zi + 5, deps=[prevx])
            r1 = self.add(V_('v_accvgpr_read_b32 %s, %s' % (v(y), a(L(k) + 2 * e + 1)),
                             [(a(L(k) + 2 * e + 1), ('L', h, k, jl, 2 * e + 1))], [(v(y), ('l1', h, b))]),
                          lo=zi + 5, deps=[getattr(self, 'ylast', None)])
            lread[b] = (r0, r1)
            ad = self.add(V_('v_add_f32 %s, %s, %s' % (v(x), v(x), v(y)),
                             [(v(x), ('l0', h, b)), (v(y), ('l1', h, b))], [(v(x), ('l', h, b))]), deps=[r0, r1],
                          lo=zi + 5)
            self.ylast = ad
            cmp_ = self.add(V_('v_cmp_nge_f32 vcc, %s, %s' % (s(sTHR), v(x)), [s(sTHR), (v(x), ('l', h, b))],
                               [('vcc', ('chk', h, b))]), deps=[ad, getattr(self, 'vcc_last', None)], lo=zi + 5)
            fl = self.add(S_('s_or_b64 %s, %s, vcc' % (rng('s', sFLAG[h], 2), rng('s', sFLAG[h], 2)),
                             [('vcc', ('chk', h, b))] + regs('s', sFLAG[h], 2), regs('s', sFLAG[h], 2)),
                          deps=[(cmp_, 1)], lo=zi + 5)
            self.vcc_last = (fl, 1)
            rc = self.add(V_('v_rcp_f32 %s, %s' % (v(x), v(x)), [(v(x), ('l', h, b))], [(v(x), ('r', h, b))],
                             kind='trans'), deps=[cmp_], lo=zi + 5)
            fl.hi = None
            so = None
            if h == 1:
                so = self.add(Ins('s_mov_b32 %s, %d' % (s(sOOFF), h * 98304 + qoff(b)), 'salu', [], [s(sOOFF)]),
                              deps=[(self.st_last, 1)] if self.st_last is not None and b > 0 else [], lo=zi)
            last_in_block = None
            for tau in range(4):
                t0, t1 = 2 * tau, 2 * tau + 1
                muls = {}
                lo = self.iPV[(n, t1)] + 5
                for t in (t0, t1):
                    for i in range(4):
                        r = O(b, t) + i
                        muls[(t, i)] = self.add(V_('v_mul_f32 %s, %s, %s' % (v(r), v(x), v(r)),
                                                   [(v(x), ('r', h, b)), (v(r), ('O', h, b, t, jl, i))],
                                                   [(v(r), ('On', h, b, t, i))]), lo=lo, deps=[(rc, 1)])
                base = O(b, t0)
                cv = []
                src = [(t0, 0), (t0, 2), (t1, 0), (t1, 2)]
                for q, (t, i) in enumerate(src):
                    d = base + q
                    deps = [muls[(t, i)], muls[(t, i + 1)]]
                    if q == 1:
                        deps.append(cv[0])
                    if q == 2:
                        deps += [cv[1]]
                    if q == 3:
                        deps += [cv[1], cv[2]]
                    c = self.add(V_('v_cvt_pk_bf16_f32 %s, %s, %s' % (v(d), v(O(b, t) + i), v(O(b, t) + i + 1)),
                                    [(v(O(b, t) + i), ('On', h, b, t, i)), (v(O(b, t) + i + 1), ('On', h, b, t, i + 1))],
                                    [(v(d), ('Oc', h, b, tau, q))]), lo=lo, deps=deps)
                    cv.append(c)
                    if (tau & 1) == 0 and q == 0:
                        cvall = {}
                    cvall[(tau, q)] = c
                if cfg.vmap:
                    tagn = 'Oc'
                    pre_st = [(x, 1) for x in cv]
                else:
                    tagn = 'Os'
                    s0 = self.add(V_('v_permlane16_swap_b32 %s, %s' % (v(base), v(base + 2)),
                                     [(v(base), ('Oc', h, b, tau, 0)), (v(base + 2), ('Oc', h, b, tau, 2))],
                                     [(v(base), ('Os', h, b, tau, 0)), (v(base + 2), ('Os', h, b, tau, 2))], kind='perm'),
                                  deps=[(cv[0], 1), (cv[2], 1)], lo=lo)
                    s1 = self.add(V_('v_permlane16_swap_b32 %s, %s' % (v(base + 1), v(base + 3)),
                                     [(v(base + 1), ('Oc', h, b, tau, 1)), (v(base + 3), ('Oc', h, b, tau, 3))],
                                     [(v(base + 1), ('Os', h, b, tau, 1)), (v(base + 3), ('Os', h, b, tau, 3))],
                                     kind='perm'), deps=[(cv[1], 1), (cv[3], 1)], lo=lo)
                    pre_st = [(s0, 1), (s1, 1)]
                hi = None
                if h == 0:
                    st = Ins('ds_write_b128 %s, %s offset:%d' % (v(T(8)), rng('v', base, 4), CH * (4 * b + tau)), 'dsw',
                             [(v(base + q), (tagn, h, b, tau, q)) for q in range(4)] + [(v(T(8)), 'ostage')], [])
                    st.meta['cost'] = 8
                    hi = self.iPV[(nxt, t0)] - 2
                    deps = pre_st + [(self.ostage_addr, 1)]
                    deps += [(x, 0) for x in self.qb_reads[2 * (b >> 1)] + self.qb_reads[2 * (b >> 1) + 1]]
                    self.add(st, lo=lo, hi=hi, deps=deps)
                elif cfg.tail_lds:
                    wr = Ins('ds_write_b128 %s, %s offset:%d' % (v(T(8)), rng('v', base, 4), CH * (4 * b + tau)), 'dsw',
                             [(v(base + q), (tagn, h, b, tau, q)) for q in range(4)] + [(v(T(8)), 'twaddr')], [])
                    self.add(wr, lo=lo, deps=pre_st + [(self.tw_addr, 1)])
                    st = wr
                    if tau & 1:
                        hh = tau >> 1
                        for q in range(2):
                            dst = O(b, 4 * hh + 2 * q + 1)
                            rdep = [(wr, 0), (self.tr_addr, 1), (prev_wr, 0)]
                            rd = Ins('ds_read_b128 %s, %s offset:%d' % (
                                rng('v', dst, 4), v(T(9)), CH * (4 * b + 2 * hh) + 128 * q), 'ds',
                                [(v(T(9)), 'traddr')], [(v(dst + i), ('Ot', b, hh, q, i)) for i in range(4)])
                            self.add(rd, lo=lo, deps=rdep + [(cvall[k_], 0) for k_ in cvall])
                            st = Ins('buffer_store_dwordx4 %s, %s, %s, %s offen offset:%d%s' % (
                                rng('v', dst, 4), v(vO), rng('s', sO, 4), s(sOOFF), 128 * hh + 256 * q, cfg.st_mod2),
                                'vstore', [(v(dst + i), ('Ot', b, hh, q, i)) for i in range(4)] +
                                [v(vO), s(sOOFF)] + regs('s', sO, 4), [])
                            self.add(st, lo=lo, deps=[(rd, cfg.qrd_lat), (so, 1)])
                    prev_wr = wr
                else:
                    st = Ins('buffer_store_dwordx4 %s, %s, %s, %s offen offset:%d%s' % (
                        rng('v', base, 4), v(vQ if cfg.vmap else vO), rng('s', sO, 4), s(sOOFF), 64 * tau,
                        cfg.st_mod2), 'vstore',
                        [(v(base + q), (tagn, h, b, tau, q)) for q in range(4)] + [v(vO), s(sOOFF)] + regs('s', sO, 4), [])
                    self.add(st, lo=lo, hi=hi, deps=pre_st + [(so, 1)])
                if nxt is not None:
                    for q in (2, 3):
                        cv[q].hi = min(self.iPV[(nxt, t1)] - 2, cv[q].hi if cv[q].hi is not None else 10 ** 9)
                self.st_last = st
                last_in_block = muls[(t1, 3)]
            self.xlast = getattr(self, 'xlast', {})
            self.xlast[b & 1] = last_in_block
        if h == 0 and cfg.fullline:
            assert cfg.vmap
            t9 = T(9)
            lo_ = self.pstart[6 * cfg.loopB[0] - 6]
            hi_ = self.pstart[6 * cfg.loopB[0]] - 3
            dep = self.st_last
            c = self.add(V_('v_bfe_u32 %s, %s, 4, 3' % (v(t9), v(vDMA)), [v(vDMA)], [v(t9)]), lo=lo_, hi=hi_, deps=[(dep, 1)])
            c = self.add(V_('v_lshrrev_b32 %s, 2, %s' % (v(T(8)), v(t9)), [v(t9)], [v(T(8))]), lo=lo_, hi=hi_, deps=[c])
            c = self.add(V_('v_mul_u32_u24 %s, %d, %s' % (v(T(8)), CH, v(T(8))), [v(T(8))], [v(T(8))]), lo=lo_, hi=hi_, deps=[c])
            c = self.add(V_('v_and_b32 %s, 3, %s' % (v(t9), v(t9)), [v(t9)], [v(t9)]), lo=lo_, hi=hi_, deps=[c])
            c = self.add(V_('v_lshl_add_u32 %s, %s, 8, %s' % (v(T(8)), v(t9), v(T(8))), [v(t9), v(T(8))], [v(T(8))]), lo=lo_, hi=hi_, deps=[c])
            c = self.add(V_('v_bfe_u32 %s, %s, 7, 3' % (v(t9), v(vDMA)), [v(vDMA)], [v(t9)]), lo=lo_, hi=hi_, deps=[c])
            c = self.add(V_('v_lshl_add_u32 %s, %s, 4, %s' % (v(T(8)), v(t9), v(T(8))), [v(t9), v(T(8))], [v(T(8))]), lo=lo_, hi=hi_, deps=[c])
            c = self.add(V_('v_add_u32 %s, %s, %s' % (v(T(8)), s(sSTG), v(T(8))), [s(sSTG), v(T(8))], [v(T(8))]), lo=lo_, hi=hi_, deps=[c])
            self.od_addr = c
        if h == 0:
            for k in range(3):
                zi_next = self.iZ[192 + 2 + 2 * k]
                for i in range(4):
                    bb_ = 2 * k + (i >> 1)
                    self.add(V_('v_accvgpr_write_b32 %s, 0' % a(L(k) + i), [],
                                [(a(L(k) + i), ('L', 1, k, -1, i))]),
                             deps=[lread[bb_][i & 1]], hi=zi_next - 2, lo=0)

    def qb(self):
        cfg = self.cfg
        lo = self.pstart[6 * cfg.loopA[1]] + 2
        ad = self.add(V_('v_add_u32 %s, %s, %s' % (v(T(5)), s(sSTG), v(vK)), [s(sSTG), v(vK)], [(v(T(5)), 'qsaddr')]),
                      lo=lo, hi=self.pstart[184], deps=[(self.qc_chain, 1)] if self.qc_chain else [])
        self.qb_reads = {}
        for b in range(6):
            nlast, nfirst = 186 + b, 192 + b
            lst = []
            for st in range(4):
                d = Q(b, st)
                ins = Ins('ds_read_b128 %s, %s offset:%d' % (
                    rng('a', d, 4), v(T(5)), (b >> 1) * 8 * CH + 512 * (b & 1) + 64 * st), 'ds',
                    [(v(T(5)), 'qsaddr')], [(a(d + i), ('Q', 1, b, st, i)) for i in range(4)])
                lo_ = max(self.iQK[(nlast, 0, st)], self.iQK[(nlast, 1, st)])
                self.add(ins, lo=lo_, hi=self.iQK[(nfirst, 0, st)] - cfg.LAT, deps=[(ad, 1)])
                lst.append(ins)
            self.qb_reads[b] = lst
        self.ostage_addr = self.add(V_('v_add_u32 %s, %s, %s' % (v(T(8)), s(43), v(vDMA)), [s(43), v(vDMA)],
                                       [(v(T(8)), 'ostage')]), lo=lo, hi=self.pstart[184])

    RAW = 96

    def q_load(self, b, add):
        cfg = self.cfg
        out = []
        so = add(Ins('s_mov_b32 %s, %d' % (s(sQOFF), qoff(b)), 'salu', [], [s(sQOFF)]), None)
        for st in range(4):
            d = self.RAW + 16 * b + 4 * st
            out.append(add(Ins('buffer_load_dwordx4 %s, %s, %s, %s offen offset:%d%s' % (
                rng('v', d, 4), v(vQ), rng('s', sQ, 4), s(sQOFF), 64 * st, cfg.nt), 'vload',
                [v(vQ), s(sQOFF)] + regs('s', sQ, 4), [(v(d + i), ('QA', b, st, i)) for i in range(4)]), so))
        return out

    def prologue(self):
        cfg = self.cfg
        R = cfg.R
        o = []

        def e(text, kind='valu', rd=(), wr=()):
            i = Ins(text, kind, rd, wr)
            o.append(i)
            return i

        def srd_setup(srd, ptr, per):
            e('s_mul_i32 s3, s2, %d' % per, 'salu')
            e('s_add_u32 %s, %s, s3' % (s(srd), s(ptr)), 'salu')
            e('s_addc_u32 %s, %s, 0' % (s(srd + 1), s(ptr + 1)), 'salu')
            e('s_and_b32 %s, %s, 0xffff' % (s(srd + 1), s(srd + 1)), 'salu')
            e('s_mov_b32 %s, %d' % (s(srd + 2), per), 'salu')
            e('s_mov_b32 %s, 0x20000' % s(srd + 3), 'salu')

        def dma(J, which):
            last = None
            for i in which:
                off = (0, 32, VOFF, VOFF + (8 if cfg.vmap else 32))[i]
                wp = sWPART
                e('s_add_u32 m0, %s, %d' % (s(wp), (J % R) * SLOT + off), 'salu', wr=['m0'])
                srd = sK if i < 2 else sV
                e('s_nop 0', 'nop')
                last = e('buffer_load_dwordx4 %s, %s, %s offen%s%s lds' % (
                    v(vDMA), rng('s', srd, 4), s(sDOFF), ' offset:1024' if i & 1 else '', cfg.nt), 'dma', rd=['m0'])
                last.meta['tile'] = J
            return last

        def addq(ins, dep):
            o.append(ins)
            return ins
        e('s_cmp_ge_u32 s2, 256', 'salu')
        e('s_cbranch_scc1 L_done', 'branch')
        e('s_load_dwordx4 s[44:47], s[0:1], 0', 'salu')
        e('s_load_dwordx4 s[48:51], s[0:1], 16', 'salu')
        t = [T(i) for i in range(10)]
        e('v_lshrrev_b32 %s, 6, v0' % v(t[0]), wr=[v(t[0])])
        e('v_and_b32 %s, 63, v0' % v(t[1]), wr=[v(t[1])])
        e('v_readfirstlane_b32 %s, %s' % (s(sW), v(t[0])), rd=[v(t[0])], wr=[s(sW)])
        e('v_and_b32 %s, 15, %s' % (v(t[2]), v(t[1])))
        e('v_lshrrev_b32 %s, 4, %s' % (v(t[3]), v(t[1])))
        e('v_lshlrev_b32 %s, 4, %s' % (v(vDMA), v(t[1])))
        e('v_lshl_add_u32 %s, %s, 11, %s' % (v(vDMA), v(t[0]), v(vDMA)), wr=[v(vDMA)])
        e('v_mul_u32_u24 %s, %d, %s' % (v(t[4]), 24576, v(t[0])))
        e('v_and_b32 %s, 7, %s' % (v(t[5]), v(t[2])))
        e('v_lshl_add_u32 %s, %s, 10, %s' % (v(t[4]), v(t[5]), v(t[4])))
        e('v_lshrrev_b32 %s, 3, %s' % (v(t[5]), v(t[2])))
        e('v_lshl_add_u32 %s, %s, 8, %s' % (v(t[4]), v(t[5]), v(t[4])))
        e('v_lshl_add_u32 %s, %s, 4, %s' % (v(vQ), v(t[3]), v(t[4])), wr=[v(vQ)])
        e('s_mul_i32 %s, %s, %d' % (s(sWPART), s(sW), 2 * CH), 'salu', rd=[s(sW)], wr=[s(sWPART)])
        e('s_mov_b32 %s, 0' % s(sDOFF), 'salu')
        e('s_waitcnt lgkmcnt(0)', 'wait')
        if cfg.start_stamps:
            e('s_nop 0', 'nop').meta['stamp'] = True
        srd_setup(sK, 46, 524288)
        srd_setup(sQ, 44, 196608)
        def qa_pair(k):
            last = None
            for c in range(8 * k, 8 * k + 8):
                if c % 4 == 0:
                    e('s_add_u32 s61, s60, %d' % (4096 * (c >> 2)), 'salu')
                imm = 1024 * (c & 3)
                e('s_add_u32 m0, %s, %d' % (s(sSTG), CH * c - imm), 'salu', wr=['m0'])
                e('s_nop 0', 'nop')
                last = e('buffer_load_dwordx4 %s, %s, s61 offen offset:%d%s lds' % (
                    v(vDMA), rng('s', sQ, 4), imm, cfg.nt), 'dma', rd=['m0'])
            return last
        if cfg.qa_lds:
            e('s_mul_i32 %s, %s, %d' % (s(sSTG), s(sW), STAGEW), 'salu')
            e('s_add_u32 %s, %s, %d' % (s(sSTG), s(sSTG), STAGE0), 'salu')
            e('s_mul_i32 s60, %s, %d' % (s(sW), 24576 - 2048), 'salu')
        k0 = dma(0, (0, 1))
        if cfg.qa_lds:
            self.qa_last = {0: qa_pair(0)}
            for k_ in range(1, cfg.qa_init):
                self.qa_last[k_] = qa_pair(k_)
        else:
            q0 = self.q_load(0, addq)
            for b_ in range(1, cfg.qdepth):
                self.q_load(b_, addq)
        srd_setup(sV, 48, 524288)
        v0 = dma(0, (2, 3))
        self.lastdma[0] = v0
        srd_setup(sO, 50, 196608)
        if cfg.vmap and cfg.fullline:
            e('v_mul_u32_u24 %s, %d, %s' % (v(vO), 24576, v(t[0])))
            e('v_lshrrev_b32 %s, 3, %s' % (v(t[5]), v(t[1])))
            e('v_lshl_add_u32 %s, %s, 10, %s' % (v(vO), v(t[5]), v(vO)))
            e('v_and_b32 %s, 7, %s' % (v(t[5]), v(t[1])))
            e('v_lshl_add_u32 %s, %s, 4, %s' % (v(vO), v(t[5]), v(vO)), wr=[v(vO)])
        elif cfg.vmap:
            e('v_mov_b32 %s, %s' % (v(vO), v(vQ)), wr=[v(vO)])
        else:
            e('v_and_b32 %s, 1, %s' % (v(t[5]), v(t[3])))
            e('v_lshl_add_u32 %s, %s, 5, %s' % (v(t[4]), v(t[5]), v(t[4])))
            e('v_lshrrev_b32 %s, 1, %s' % (v(t[5]), v(t[3])))
            e('v_lshl_add_u32 %s, %s, 4, %s' % (v(vO), v(t[5]), v(t[4])), wr=[v(vO)])
        e('v_and_b32 %s, 7, %s' % (v(t[4]), v(t[2])))
        e('v_mul_u32_u24 %s, %d, %s' % (v(vK), CH, v(t[4])))
        e('v_lshrrev_b32 %s, 3, %s' % (v(t[4]), v(t[2])))
        e('v_lshl_add_u32 %s, %s, 8, %s' % (v(vK), v(t[4]), v(vK)))
        e('v_lshl_add_u32 %s, %s, 4, %s' % (v(vK), v(t[3]), v(vK)), wr=[v(vK)])
        e('v_bfe_u32 %s, %s, 2, 3' % (v(t[4]), v(t[1])))
        if cfg.vmap:
            e('v_lshrrev_b32 %s, 1, %s' % (v(t[5]), v(t[4])))
            e('v_mul_u32_u24 %s, %d, %s' % (v(vV), 2 * CH, v(t[5])))
            e('v_and_b32 %s, 1, %s' % (v(t[5]), v(t[4])))
            e('v_mul_u32_u24 %s, 1032, %s' % (v(t[5]), v(t[5])))
            e('v_add_u32 %s, %s, %s' % (v(vV), v(t[5]), v(vV)))
        else:
            e('v_mul_u32_u24 %s, %d, %s' % (v(vV), CH, v(t[4])))
        e('v_lshrrev_b32 %s, 5, %s' % (v(t[4]), v(t[1])))
        e('v_lshl_add_u32 %s, %s, 8, %s' % (v(vV), v(t[4]), v(vV)))
        e('v_and_b32 %s, 3, %s' % (v(t[4]), v(t[1])))
        e('v_lshl_add_u32 %s, %s, %d, %s' % (v(vV), v(t[4]), 4 if cfg.vmap else 3, v(vV)))
        e('v_add_u32 %s, %d, %s' % (v(vV), VOFF, v(vV)), wr=[v(vV)])
        e('s_mov_b32 %s, 0x%08x' % (s(sC), f32bits(C_SCALE)), 'salu')
        e('s_mov_b32 %s, 0x%08x' % (s(sC + 1), f32bits(C_SCALE)), 'salu')
        e('s_mov_b32 %s, 0x%08x' % (s(sTHR), cfg.thr), 'salu')
        e('s_mov_b32 %s, 0xffff0000' % s(sMASK), 'salu')
        e('s_mov_b64 %s, 0' % rng('s', sFLAG[0], 2), 'salu')
        e('s_mov_b64 %s, 0' % rng('s', sFLAG[1], 2), 'salu')
        if not cfg.qa_lds:
            e('s_mul_i32 %s, %s, %d' % (s(sSTG), s(sW), STAGEW), 'salu')
            e('s_add_u32 %s, %s, %d' % (s(sSTG), s(sSTG), STAGE0), 'salu')
        e('s_sub_u32 %s, %s, %d' % (s(sQREL), s(sSTG), DUMMY), 'salu')
        e('s_lshl_b32 s3, %s, 11' % s(sW), 'salu')
        e('s_sub_u32 s43, %s, s3' % s(sSTG), 'salu')
        e('s_sub_u32 s63, s43, %d' % (3 * CH), 'salu')
        e('s_mov_b32 %s, -2' % s(sQI), 'salu')
        e('s_sub_u32 %s, %s, %d' % (s(sQREL), s(sQREL), 2 * CH), 'salu')
        e('s_mul_i32 %s, %s, %d' % (s(sQSO), s(sW), 24576 - 2048), 'salu')
        e('s_add_u32 %s, %s, %d' % (s(sQSO), s(sQSO), 98304 - 2048), 'salu')
        e('s_mov_b32 %s, 0' % s(sOI), 'salu')
        e('v_and_b32 %s, 1, %s' % (v(t[4]), v(t[2])))
        e('v_mov_b32 %s, 0x4444' % v(t[5]))
        e('v_mov_b32 %s, 0xeeee' % v(t[6]))
        e('v_cmp_eq_u32 vcc, 0, %s' % v(t[4]), wr=['vcc'])
        e('v_cndmask_b32 %s, %s, %s, vcc' % (v(vIDX), v(t[6]), v(t[5])), rd=['vcc'], wr=[(v(vIDX), 'IDX')])
        e('v_bfe_u32 %s, %s, 1, 1' % (v(t[4]), v(t[2])))
        e('v_lshrrev_b32 %s, 1, %s' % (v(t[5]), v(t[3])))
        e('v_cmp_eq_u32 vcc, %s, %s' % (v(t[4]), v(t[5])), wr=['vcc'])
        e('v_mov_b32 %s, 0x3f803f80' % v(t[6]))
        e('v_cndmask_b32 %s, 0, %s, vcc' % (v(t[4]), v(t[6])), rd=['vcc'], wr=[v(t[4])])
        for i in range(4):
            e('v_accvgpr_write_b32 %s, %s' % (a(SA + i), v(t[4])), rd=[v(t[4])], wr=[(a(SA + i), 'SA')])
        for k in range(3):
            for i in range(4):
                e('v_accvgpr_write_b32 %s, 0' % a(L(k) + i), wr=[(a(L(k) + i), ('L', 0, k, -1, i))])
        w = e('s_waitcnt vmcnt(0)', 'wait')
        w.meta['stamp'] = True
        if cfg.qa_lds:
            w.meta['vm_for'] = self.qa_last[0]
            if cfg.qa_init == 1:
                self.qa_last[1] = qa_pair(1)
            if cfg.qa_init == 2 and cfg.p2_early:
                self.qa_last[2] = qa_pair(2)
            for J in cfg.qplan[0]:
                e('s_mov_b32 %s, %d' % (s(sDOFF), J * 8192), 'salu')
                self.lastdma[J] = dma(J, (0, 1, 2, 3))
            e('v_add_u32 %s, %s, %s' % (v(T(7)), s(sSTG), v(vK)), wr=[v(T(7))])
            for b_ in range(2):
                for st in range(4):
                    d = self.RAW + 16 * b_ + 4 * st
                    e('ds_read_b128 %s, %s offset:%d' % (rng('v', d, 4), v(T(7)), 512 * b_ + 64 * st), 'ds',
                      rd=[v(T(7))], wr=[(v(d + i), ('QA', b_, st, i)) for i in range(4)])
        else:
            w.meta['vm_for'] = q0[-1]
            if cfg.qdepth < 6:
                self.q_load(cfg.qdepth, addq)
        b = 0
        for st in range(4):
            d = self.RAW + 16 * b + 4 * st
            tb = 8 * (st & 1)
            for i in range(4):
                e('v_lshlrev_b32 %s, 16, %s' % (v(tb + 2 * i), v(d + i)), rd=[(v(d + i), ('QA', b, st, i))],
                  wr=[v(tb + 2 * i)])
                e('v_and_b32 %s, %s, %s' % (v(tb + 2 * i + 1), s(sMASK), v(d + i)), rd=[v(d + i)],
                  wr=[v(tb + 2 * i + 1)])
            for i in range(4):
                e('v_pk_mul_f32 %s, %s, %s' % (rng('v', tb + 2 * i, 2), rng('v', tb + 2 * i, 2), rng('s', sC, 2)),
                  rd=regs('v', tb + 2 * i, 2), wr=regs('v', tb + 2 * i, 2))
            for i in range(4):
                e('v_cvt_pk_bf16_f32 %s, %s, %s' % (v(d + i), v(tb + 2 * i), v(tb + 2 * i + 1)),
                  rd=regs('v', tb + 2 * i, 2), wr=[v(d + i)])
            for i in range(4):
                e('v_accvgpr_write_b32 %s, %s' % (a(Q(b, st) + i), v(d + i)), rd=[v(d + i)],
                  wr=[(a(Q(b, st) + i), ('Q', 0, b, st, i))])
        e('s_barrier', 'bar')
        for u in range(2):
            for st in range(4):
                d = KF(u, st)
                e('ds_read_b128 %s, %s offset:%d' % (rng('a', d, 4), v(vK), 512 * u + 64 * st), 'ds',
                  rd=[v(vK)], wr=[(a(d + i), ('K', 0, u, st, i)) for i in range(4)])
        return o

    def early(self):
        cfg = self.cfg
        R, D = cfg.R, cfg.D
        firstop = {}
        chain = None
        qprev = None
        tiles = list(range(1, D))
        plan = {b_: cfg.tplan.get(b_, []) for b_ in range(1, 6)}
        if cfg.qa_lds:
            assert sorted(sum(cfg.qplan.values(), [])) == tiles
        else:
            assert sorted(sum(plan.values(), [])) == tiles
        doff = None
        self.m0chain = None
        rawrd = {}
        for b in range(1, 6):
            if cfg.qa_lds and b % 2 == 0:
                k = b // 2
                wq = Ins('s_waitcnt vmcnt(0)', 'wait')
                wq.meta['vm_for'] = self.qa_last[k]
                if cfg.start_stamps:
                    wq.meta['stamp'] = True
                lo_w = self.iQK[(b - 1, 0, 0)] - 1
                self.add(wq, lo=lo_w, hi=lo_w + 2,
                         deps=([(self.qa_last[k], 1)] if self.qa_last[k].deps else []))
                mark = len(self.flex)
                if k + 1 <= 2 and (k + 1) not in self.qa_last:
                    prev = None
                    for c in range(8 * (k + 1), 8 * (k + 1) + 8):
                        imm = 1024 * (c & 3)
                        txt = ''
                        if c % 4 == 0:
                            txt += 's_add_u32 s61, s60, %d\n    ' % (4096 * (c >> 2))
                        txt += 's_add_u32 m0, %s, %d\n    s_nop 0\n    ' % (s(sSTG), CH * c - imm)
                        txt += 'buffer_load_dwordx4 %s, %s, s61 offen offset:%d%s lds' % (
                            v(vDMA), rng('s', sQ, 4), imm, cfg.nt)
                        dm = Ins(txt, 'dma', [v(vDMA)], ['scc'])
                        dm.meta['composite'] = True
                        self.add(dm, lo=0, deps=[(wq, 0)] + ([(prev, 0)] if prev else []) +
                                 ([(self.m0chain, 1)] if self.m0chain else []))
                        prev = dm
                    self.m0chain = prev
                    self.qa_last[k + 1] = prev
                for J in cfg.qplan.get(k, []):
                    prev = None
                    for i in range(4):
                        off = (0, 32, VOFF, VOFF + (8 if cfg.vmap else 32))[i]
                        txt = 's_mov_b32 %s, %d\n    ' % (s(sDOFF), J * 8192) if i == 0 else ''
                        txt += 's_add_u32 m0, %s, %d\n    s_nop 0\n    ' % (s(sWPART), (J % R) * SLOT + off)
                        txt += 'buffer_load_dwordx4 %s, %s, %s offen%s%s lds' % (
                            v(vDMA), rng('s', sK if i < 2 else sV, 4), s(sDOFF), ' offset:1024' if i & 1 else '', cfg.nt)
                        dm = Ins(txt, 'dma', [v(vDMA)], ['scc'])
                        dm.meta['composite'] = True
                        dm.meta['tile'] = J
                        self.add(dm, lo=0, deps=[(wq, 0)] + ([(prev, 0)] if prev else []) +
                                 ([(self.m0chain, 0)] if self.m0chain else []))
                        prev = dm
                    self.m0chain = prev
                    self.lastdma[J] = prev
                for x in self.flex[mark:]:
                    x.meta['asap'] = True
                for b_ in (b, b + 1):
                    for st in range(4):
                        d = self.RAW + 16 * b_ + 4 * st
                        rd = Ins('ds_read_b128 %s, %s offset:%d' % (
                            rng('v', d, 4), v(T(7)), k * 8 * CH + 512 * (b_ & 1) + 64 * st), 'ds',
                            [v(T(7))], [(v(d + i), ('QA', b_, st, i)) for i in range(4)])
                        self.add(rd, lo=0, deps=[(wq, 0)])
                        rd.meta['asap'] = True
                        rawrd[(b_, st)] = rd
            first = None
            cmark = len(self.flex)
            for st in range(4):
                dl = self.iQK[(b, 0, st)] - 2
                for i in range(4):
                    r = self.RAW + 16 * b + 4 * st + i
                    tb = T(5 + (i & 1))
                    key = (b, st, i)
                    c = self.add(V_('v_lshlrev_b32 %s, 16, %s' % (v(tb), v(r)), [(v(r), ('QA', b, st, i))],
                                    [(v(tb), ('qb', key))]), lo=0,
                                 deps=[chain] + ([(rawrd[(b, st)], 4)] if (b, st) in rawrd else []))
                    if first is None:
                        first = c
                        chain0 = c
                    c = self.add(V_('v_and_b32 %s, %s, %s' % (v(r), s(sMASK), v(r)), [(v(r), ('QA', b, st, i)), s(sMASK)],
                                    [(v(r), ('qc', key))]), lo=0, deps=[c])
                    c = self.add(V_('v_mul_f32 %s, %s, %s' % (v(tb), s(sC), v(tb)), [(v(tb), ('qb', key)), s(sC)],
                                    [(v(tb), ('qd', key))]), lo=0, deps=[c])
                    c = self.add(V_('v_mul_f32 %s, %s, %s' % (v(r), s(sC), v(r)), [(v(r), ('qc', key)), s(sC)],
                                    [(v(r), ('qe', key))]), lo=0, deps=[c])
                    c = self.add(V_('v_cvt_pk_bf16_f32 %s, %s, %s' % (v(r), v(tb), v(r)),
                                    [(v(r), ('qe', key)), (v(tb), ('qd', key))], [(v(r), ('qf', key))]), lo=0, deps=[c])
                    c = self.add(V_('v_accvgpr_write_b32 %s, %s' % (a(Q(b, st) + i), v(r)), [(v(r), ('qf', key))],
                                    [(a(Q(b, st) + i), ('Q', 0, b, st, i))]), lo=0, hi=dl, deps=[c])
                    chain = c
            firstop[b] = first
            if cfg.qa_lds and cfg.conv_asap:
                for x in self.flex[cmark:]:
                    x.meta['asap'] = True
            if cfg.start_stamps and not cfg.qa_lds:
                first.meta['stamp'] = True
            mark = len(self.flex)
            if cfg.qa_lds:
                continue
            if b + cfg.qdepth <= 5:
                def addq(ins, dep, first=first):
                    nonlocal qprev
                    deps = [(first, 1)]
                    if dep is not None:
                        deps.append((dep, 1))
                    elif qprev is not None:
                        deps.append((qprev, 1))
                    self.add(ins, lo=0, hi=None, deps=deps, prio=3)
                    ins.hi = None
                    return ins
                ql = self.q_load(b + cfg.qdepth, addq)
                qprev = ql[-1]
            for J in plan[b]:
                doff = self.add(Ins('s_mov_b32 %s, %d' % (s(sDOFF), J * 8192), 'salu', [], [s(sDOFF)]), lo=0,
                                deps=[(first, 1)] + ([(self.m0chain, 1)] if self.m0chain else []))
                self.dma_group(J, 0, None, [(doff, 1)])
            for x in self.flex[mark:]:
                x.meta['asap'] = True
        self.qoff_last = qprev
        self.qc_chain = self.add(V_('v_add_u32 %s, s63, %s' % (v(T(5)), v(vDMA)), [v(vDMA)], [v(T(5))]), lo=0,
                                 hi=self.pstart[6 * cfg.loopA[0]] - 4, deps=[chain])
        hi_final = (self.pend_[3] - 2) if cfg.dma_early else (self.pstart[5] - 4)
        self.doff_final = self.add(Ins('s_mov_b32 %s, %d' % (s(sDOFF), D * 8192), 'salu', [], [s(sDOFF)]), lo=0,
                                   hi=hi_final, deps=[(self.m0chain, 1)] if self.m0chain else [])
        k = self.pstart[0] + 1
        w = Ins('s_waitcnt vmcnt(0)', 'wait')
        w.meta['vm_for_tile0'] = True
        self.add(w, lo=k, hi=k)
        self.bar_v0 = Ins('s_barrier', 'bar')
        self.add(self.bar_v0, lo=k + 1, hi=k + 1, deps=[(w, 1)])
        self.v0wait = w

    def slowpath(self):
        o = []
        e = o.append
        e('L_slow:')
        e('s_waitcnt vmcnt(0) lgkmcnt(0)')
        e('s_mul_i32 s52, %s, %d' % (s(sW), SLOT))
        e('v_and_b32 v1, 63, %s' % v(vDMA))
        e('v_lshrrev_b32 v162, 4, %s' % v(vDMA))
        e('v_and_b32 v162, 63, v162')
        e('v_and_b32 v2, 15, v162')
        e('v_lshrrev_b32 v3, 4, v162')
        e('v_and_b32 v4, 7, v2')
        e('v_mul_u32_u24 v160, %d, v4' % CH)
        e('v_lshrrev_b32 v4, 3, v2')
        e('v_lshl_add_u32 v160, v4, 8, v160')
        e('v_lshl_add_u32 v160, v3, 4, v160')
        e('v_add_u32 v160, s52, v160')
        e('v_bfe_u32 v4, v162, 2, 3')
        e('v_mul_u32_u24 v161, %d, v4' % CH)
        e('v_lshrrev_b32 v4, 5, v162')
        e('v_lshl_add_u32 v161, v4, 8, v161')
        e('v_and_b32 v4, 3, v162')
        e('v_lshl_add_u32 v161, v4, 3, v161')
        e('v_add_u32 v161, %d, v161' % VOFF)
        e('v_add_u32 v161, s52, v161')
        e('v_lshlrev_b32 v4, 4, v3')
        e('v_sub_u32 v163, %s, v4' % v(vQ))
        e('v_and_b32 v4, 1, v3')
        e('v_lshl_add_u32 v163, v4, 5, v163')
        e('v_lshrrev_b32 v4, 1, v3')
        e('v_lshl_add_u32 v163, v4, 4, v163')
        e('v_lshlrev_b32 v162, 4, v162')
        e('s_mov_b32 s53, 0')
        e('L_slow_head:')
        e('s_cmp_eq_u32 s53, 0')
        e('s_cselect_b64 s[54:55], %s, %s' % (rng('s', sFLAG[0], 2), rng('s', sFLAG[1], 2)))
        e('s_cmp_eq_u64 s[54:55], 0')
        e('s_cbranch_scc1 L_slow_next')
        e('s_mov_b32 s56, 0')
        e('L_slow_blk:')
        e('s_mul_i32 s57, s53, 98304')
        e('s_lshr_b32 s58, s56, 1')
        e('s_lshl_b32 s58, s58, 13')
        e('s_add_u32 s57, s57, s58')
        e('s_and_b32 s58, s56, 1')
        e('s_lshl_b32 s58, s58, 9')
        e('s_add_u32 s57, s57, s58')
        for st in range(4):
            e('buffer_load_dwordx4 v[%d:%d], %s, %s, s57 offen offset:%d' % (
                4 * st, 4 * st + 3, v(vQ), rng('s', sQ, 4), 64 * st))
        e('s_waitcnt vmcnt(0)')
        for i in range(16):
            e('v_lshlrev_b32 v42, 16, v%d' % i)
            e('v_and_b32 v43, %s, v%d' % (s(sMASK), i))
            e('v_mul_f32 v42, %s, v42' % s(sC))
            e('v_mul_f32 v43, %s, v43' % s(sC))
            e('v_cvt_pk_bf16_f32 v%d, v42, v43' % (16 + i))
        e('v_mov_b32 v32, 0xff800000')
        e('v_mov_b32 v33, 0')
        for i in range(32):
            e('v_mov_b32 v%d, 0' % (64 + i))
        e('s_mul_i32 s59, s53, 262144')
        e('s_mov_b32 s60, 0')
        e('L_slow_tile:')
        for c in range(8):
            for which, srd in ((0, sK), (VOFF, sV)):
                e('s_add_u32 m0, s52, %d' % (which + c * CH))
                e('s_add_u32 s61, s59, %d' % (c * 1024))
                e('buffer_load_dwordx4 v162, %s, s61 offen lds' % rng('s', srd, 4))
        e('s_waitcnt vmcnt(0)')
        for u in range(2):
            for st in range(4):
                d = 96 + 16 * u + 4 * st
                e('ds_read_b128 v[%d:%d], v160 offset:%d' % (d, d + 3, 512 * u + 64 * st))
        e('s_waitcnt lgkmcnt(0)')
        for t in range(8):
            for pp in range(2):
                d = 128 + 4 * t + 2 * pp
                e('ds_read_b64_tr_b16 v[%d:%d], v161 offset:%d' % (d, d + 1, 512 * pp + 32 * t))
            if t == 3:
                e('s_waitcnt lgkmcnt(0)')
        e('s_waitcnt lgkmcnt(0)')
        for u in range(2):
            for st in range(4):
                d = 34 + 4 * u
                k = 96 + 16 * u + 4 * st
                e('v_mfma_f32_16x16x32_bf16 v[%d:%d], v[%d:%d], v[%d:%d], %s' % (
                    d, d + 3, k, k + 3, 16 + 4 * st, 19 + 4 * st, '0' if st == 0 else 'v[%d:%d]' % (d, d + 3)))
        e('s_nop 15')
        e('v_max3_f32 v42, v34, v35, v36')
        e('v_max3_f32 v42, v42, v37, v38')
        e('v_max3_f32 v42, v42, v39, v40')
        e('v_max3_f32 v42, v42, v41, v32')
        e('v_mov_b32 v43, v42')
        e('s_nop 2')
        e('v_permlane16_swap_b32 v42, v43')
        e('s_nop 2')
        e('v_max_f32 v42, v42, v43')
        e('v_mov_b32 v43, v42')
        e('s_nop 2')
        e('v_permlane32_swap_b32 v42, v43')
        e('s_nop 2')
        e('v_max_f32 v42, v42, v43')
        e('v_sub_f32 v44, v32, v42')
        e('v_exp_f32 v44, v44')
        e('v_mov_b32 v32, v42')
        for r in range(8):
            e('v_sub_f32 v%d, v%d, v42' % (34 + r, 34 + r))
        for r in range(8):
            e('v_exp_f32 v%d, v%d' % (34 + r, 34 + r))
        e('s_nop 1')
        e('v_mul_f32 v33, v33, v44')
        for i in range(4):
            e('v_cvt_pk_bf16_f32 v%d, v%d, v%d' % (48 + i, 34 + 2 * i, 35 + 2 * i))
        for i in range(4):
            e('v_lshlrev_b32 v45, 16, v%d' % (48 + i))
            e('v_and_b32 v46, %s, v%d' % (s(sMASK), 48 + i))
            e('v_add_f32 v33, v33, v45')
            e('v_add_f32 v33, v33, v46')
        for i in range(32):
            e('v_mul_f32 v%d, v%d, v44' % (64 + i, 64 + i))
        e('s_nop 2')
        for t in range(8):
            d = 64 + 4 * t
            e('v_mfma_f32_16x16x32_bf16 v[%d:%d], v[%d:%d], v[48:51], v[%d:%d]' % (
                d, d + 3, 128 + 4 * t, 131 + 4 * t, d, d + 3))
        e('s_nop 15')
        e('s_add_u32 s59, s59, 8192')
        e('s_add_u32 s60, s60, 1')
        e('s_cmp_lt_u32 s60, 32')
        e('s_cbranch_scc1 L_slow_tile')
        e('v_mov_b32 v43, v33')
        e('s_nop 2')
        e('v_permlane16_swap_b32 v33, v43')
        e('s_nop 2')
        e('v_add_f32 v33, v33, v43')
        e('v_mov_b32 v43, v33')
        e('s_nop 2')
        e('v_permlane32_swap_b32 v33, v43')
        e('s_nop 2')
        e('v_add_f32 v33, v33, v43')
        e('v_rcp_f32 v33, v33')
        e('s_nop 1')
        for i in range(32):
            e('v_mul_f32 v%d, v%d, v33' % (64 + i, 64 + i))
        for tau in range(4):
            b0 = 64 + 8 * tau
            e('v_cvt_pk_bf16_f32 v%d, v%d, v%d' % (b0, b0, b0 + 1))
            e('v_cvt_pk_bf16_f32 v%d, v%d, v%d' % (b0 + 1, b0 + 2, b0 + 3))
            e('v_cvt_pk_bf16_f32 v%d, v%d, v%d' % (b0 + 2, b0 + 4, b0 + 5))
            e('v_cvt_pk_bf16_f32 v%d, v%d, v%d' % (b0 + 3, b0 + 6, b0 + 7))
            e('s_nop 2')
            e('v_permlane16_swap_b32 v%d, v%d' % (b0, b0 + 2))
            e('v_permlane16_swap_b32 v%d, v%d' % (b0 + 1, b0 + 3))
            e('s_nop 2')
            e('buffer_store_dwordx4 v[%d:%d], %s, %s, s57 offen offset:%d' % (
                b0, b0 + 3, 'v163', rng('s', sO, 4), 64 * tau))
        e('s_waitcnt vmcnt(0)')
        e('s_add_u32 s56, s56, 1')
        e('s_cmp_lt_u32 s56, 6')
        e('s_cbranch_scc1 L_slow_blk')
        e('L_slow_next:')
        e('s_add_u32 s53, s53, 1')
        e('s_cmp_lt_u32 s53, 2')
        e('s_cbranch_scc1 L_slow_head')
        e('s_endpgm')
        return o

    def build(self):
        cfg = self.cfg
        self.lastdma = {}
        self.qs_chain = self.od_chain = self.od_st = None
        self.build_backbone()
        self.reserve_wait_slots()
        pro = self.prologue()
        self.early()
        self.v0wait.meta['vm_for'] = self.lastdma[0]
        self.softmax()
        self.kv_stream()
        self.qb()
        self.epilogue(0)
        self.epilogue(1)
        for J, w in self.barwait.items():
            tw = w.meta['tile_wait']
            if cfg.no_dma and self.inloop(J):
                w.text = 's_nop 0'
                w.kind = 'nop'
            elif tw == 'all':
                w.meta['vm_for_last_dma'] = True
            elif tw in self.lastdma:
                w.meta['vm_for'] = self.lastdma[tw]
            else:
                assert cfg.no_dma
                w.text = 's_nop 0'
                w.kind = 'nop'
        gaps = schedule(self.bb, self.flex)
        body = linearize(self.bb, gaps)
        prog0 = pro + body
        lastd = None
        for ins in prog0:
            if ins.kind == 'dma':
                lastd = ins
            if ins.meta.get('vm_for_last_dma'):
                ins.meta['vm_for'] = lastd
        insert_waits(prog0)
        for l0, l1 in (cfg.loopA, cfg.loopB):
            for ph in range(cfg.U):
                ws = [self.barwait[J] for J in range(l0 + ph, l1, cfg.U) if self.barwait[J].kind == 'wait']
                if ws:
                    cap = min(w.meta['vm'] for w in ws)
                    for w in ws:
                        w.meta['vm_cap'] = cap
        if cfg.xp:
            def drop(i):
                t = i.text
                if 'd' in cfg.xp and i.kind == 'dma' and rng('s', sQ, 4) in t and s(sQT2) in t: return True
                if 'w' in cfg.xp and t.startswith('ds_write_b128 %s' % v(T(5))): return True
                if 'v' in cfg.xp and i.kind == 'valu' and any(r in (v(T(k)) for k in range(5)) for r in i.wrregs()) and i.gap is not None and i.gap > self.pstart[12] and i.gap < self.pstart[174]: return True
                if 's' in cfg.xp and i.kind == 'vstore' and s(sOSO) in t: return True
                if 'r' in cfg.xp and t.startswith('ds_read_b128 v') and v(T(8)) in t: return True
                return False
            prog0 = [i for i in prog0 if not drop(i)]
            insert_waits(prog0)
            for l0, l1 in (cfg.loopA, cfg.loopB):
                for ph in range(cfg.U):
                    ws = [self.barwait[J] for J in range(l0 + ph, l1, cfg.U) if self.barwait[J].kind == 'wait']
                    for w in ws:
                        w.meta.pop('vm_cap', None)
            insert_waits(prog0)
            for l0, l1 in (cfg.loopA, cfg.loopB):
                for ph in range(cfg.U):
                    ws = [self.barwait[J] for J in range(l0 + ph, l1, cfg.U) if self.barwait[J].kind == 'wait']
                    cap = min(w.meta['vm'] for w in ws)
                    for w in ws:
                        w.meta['vm_cap'] = cap
        prog = insert_waits(prog0)
        if cfg.pk_tail:
            prog = self.pack_tail_muls(prog)
        prog, nn = fix_hazards(prog, verbose=cfg.debug)
        errs = check_tags(prog) if not cfg.xp else 0
        assert errs == 0, errs
        self.check_m0(prog)
        self.gaps = gaps
        self.prog = prog
        self.nnops = nn
        return prog

    def pack_tail_muls(self, prog):
        import re
        last = max(i for i, x in enumerate(prog) if x.kind == 'mfma')
        out = prog[:last + 1]
        rest = prog[last + 1:]
        i = 0
        pat = re.compile(r'v_mul_f32 v(\d+), v(\d+), v(\d+)$')
        while i < len(rest):
            x = rest[i]
            m = pat.match(x.text)
            if m and i + 1 < len(rest):
                m2 = pat.match(rest[i + 1].text)
                d, r, sx = int(m.group(1)), int(m.group(2)), int(m.group(3))
                if m2 and d == sx and d % 2 == 0 and int(m2.group(1)) == d + 1 and int(m2.group(3)) == d + 1 \
                        and int(m2.group(2)) == r:
                    base = r & ~1
                    sel = 'op_sel_hi:[1,0]' if r % 2 == 0 else 'op_sel:[0,1] op_sel_hi:[1,1]'
                    y = rest[i + 1]
                    p = Ins('v_pk_mul_f32 v[%d:%d], v[%d:%d], v[%d:%d] %s' % (d, d + 1, d, d + 1, base, base + 1, sel),
                            'valu', x.rd + y.rd, x.wr + y.wr)
                    out.append(p)
                    i += 2
                    continue
            out.append(x)
            i += 1
        return out

    def check_m0(self, prog):
        lastm0 = None
        used = set()
        for ins in prog:
            if 'm0' in ins.wrregs():
                lastm0 = ins
            if ins.meta.get('composite'):
                lastm0 = None
                continue
            if ins.kind == 'dma':
                assert lastm0 is not None and lastm0.uid not in used, ('M0 reuse', ins.text)
                for d, _ in ins.deps:
                    if 'm0' in d.wrregs():
                        assert d is lastm0, ('M0 clobbered', ins.text)
                used.add(lastm0.uid)

    def roll(self):
        cfg = self.cfg
        prog = self.prog
        segs = []
        cur = []
        names = ['pre']
        for ins in prog:
            cur.append(ins)
            if ins.kind == 'mfma' and 'tile_start' in ins.meta:
                segs.append(cur)
                cur = []
                names.append(ins.meta['tile_start'])
        segs.append(cur)
        seg = dict(zip(names, segs))
        txt = lambda J: [i.text for i in seg[J]]
        U = cfg.U
        loops = [cfg.loopA, cfg.loopB]
        for l0, l1 in loops:
            assert (l1 - l0) % U == 0, (l0, l1)
            for J in range(l0, l1):
                ref = txt(l0 + (J - l0) % U)
                if txt(J) != ref:
                    x, y = txt(J), ref
                    for i in range(min(len(x), len(y))):
                        if x[i] != y[i]:
                            print('tile', J, 'differs at', i, x[i], '|', y[i])
                            break
                    raise Exception('tile %d not periodic' % J)
        out = []
        nst = [0]

        def stamp(real=False, late=False):
            if not cfg.stamps or (late and cfg.start_stamps):
                return
            k = 64 + 2 * nst[0]
            nst[0] += 1
            out.append('    s_waitcnt lgkmcnt(0)')
            out.append('    %s s[%d:%d]' % ('s_memrealtime' if real else 's_memtime', k, k + 1))
            out.append('    s_waitcnt lgkmcnt(0)')

        def fmt(i):
            if cfg.bar_stamps and i.meta.get('tile_wait') is not None and i.kind == 'wait':
                return ['    s_waitcnt lgkmcnt(0)', '    s_memtime s[96:97]', '    s_waitcnt lgkmcnt(0)', '    ' + i.text,
                        '    s_memtime s[98:99]', '    s_waitcnt lgkmcnt(0)',
                        '    s_sub_u32 s98, s98, s96', '    s_add_u32 s100, s100, s98']
            if cfg.bar_stamps and i.kind == 'bar' and 'assert_lg_done' in i.meta:
                return ['    s_memtime s[96:97]', '    s_waitcnt lgkmcnt(0)', '    s_barrier',
                        '    s_memtime s[98:99]', '    s_waitcnt lgkmcnt(0)',
                        '    s_sub_u32 s98, s98, s96', '    s_add_u32 s101, s101, s98']
            return ['    ' + i.text]

        def emit(J):
            for i in seg[J]:
                if cfg.stamps and i.meta.get('stamp'):
                    stamp()
                out.extend(fmt(i))
        stamp(True)
        stamp()
        if cfg.bar_stamps:
            out.append('    s_mov_b32 s100, 0')
            out.append('    s_mov_b32 s101, 0')
        emit('pre')
        J = 1
        for li, (l0, l1) in enumerate(loops):
            while J < l0:
                emit(J)
                J += 1
            stamp(late=li > 0)
            out.append('    s_mov_b32 %s, %d' % (s(sCNT), (l1 - l0) // U - 1))
            out.append('L_loop%d:' % li)
            for r in range(U):
                sg = seg[l0 + r]
                lines = [fmt(i) for i in sg]
                if r == U - 1:
                    idx = [k for k, i in enumerate(sg) if i.kind == 'mfma']
                    k = idx[-2]
                    for i in sg[k + 1:]:
                        assert 'scc' not in i.wrregs(), i.text
                    lines.insert(k + 1, ['    s_sub_u32 %s, %s, 1' % (s(sCNT), s(sCNT))])
                    lines.append(['    s_cbranch_scc0 L_loop%d' % li])
                for x in lines:
                    out.extend(x)
            stamp(late=True)
            J = l1
        while J < NT:
            emit(J)
            J += 1
        stamp()
        if cfg.stamps:
            out.append('    s_waitcnt vmcnt(0)')
            stamp()
            stamp(True)
            if cfg.dbg_wg is not None:
                n_ = nst[0]
                out.append('    s_cmp_lg_u32 s2, %d' % cfg.dbg_wg)
                out.append('    s_cbranch_scc1 L_nodbg')
                out.append('    s_cmp_lg_u32 %s, 0' % s(sW))
                out.append('    s_cbranch_scc1 L_nodbg')
                out.append('    s_load_dwordx2 s[44:45], s[0:1], 32')
                out.append('    s_waitcnt lgkmcnt(0)')
                out.append('    s_and_b32 s45, s45, 0xffff')
                out.append('    s_mov_b32 s46, 256')
                out.append('    s_mov_b32 s47, 0x20000')
                out.append('    s_mov_b64 s[32:33], exec')
                out.append('    s_mov_b64 exec, 1')
                out.append('    v_mov_b32 v1, 0')
                vals = [('s%d' % (64 + 2 * (n_ - 1)), 's64')] + [('s%d' % (64 + 2 * (n_ - 2)), 's66')]
                vals += [('s%d' % (64 + 2 * (k + 1)), 's%d' % (64 + 2 * k)) for k in range(1, n_ - 2)]
                for k, (x, y) in enumerate(vals):
                    out.append('    s_sub_u32 s3, %s, %s' % (x, y))
                    out.append('    v_mov_b32 v0, s3')
                    out.append('    buffer_store_dword v0, v1, s[44:47], 0 offen offset:%d' % (4 * k))
                    out.append('    s_waitcnt vmcnt(0)')
                out.append('    s_mov_b64 exec, s[32:33]')
                out.append('L_nodbg:')
            out.append('    s_load_dwordx2 s[44:45], s[0:1], 40')
            out.append('    s_waitcnt lgkmcnt(0)')
            out.append('    s_and_b32 s45, s45, 0xffff')
            out.append('    s_mov_b32 s46, 0x100000')
            out.append('    s_mov_b32 s47, 0x20000')
            out.append('    s_lshl_b32 s3, s2, 2')
            out.append('    s_add_u32 s3, s3, %s' % s(sW))
            out.append('    s_lshl_b32 s3, s3, 7')
            extra = [100, 101] if cfg.bar_stamps else []
            for k, sr in enumerate([64 + 2 * k for k in range(nst[0])] + extra):
                out.append('    v_mov_b32 v0, s%d' % sr)
                out.append('    v_mov_b32 v1, s3')
                out.append('    s_mov_b64 s[32:33], exec')
                out.append('    s_mov_b64 exec, 1')
                out.append('    buffer_store_dword v0, v1, s[44:47], 0 offen offset:%d' % (4 * k))
                out.append('    s_waitcnt vmcnt(0)')
                out.append('    s_mov_b64 exec, s[32:33]')
        out.append('    s_or_b64 s[54:55], %s, %s' % (rng('s', sFLAG[0], 2), rng('s', sFLAG[1], 2)))
        out.append('    s_cbranch_scc1 L_slow')
        out.append('L_done:')
        out.append('    s_endpgm')
        for l in self.slowpath():
            out.append(l if l.endswith(':') else '    ' + l)
        return out, seg


HEADER = """; Kernarg layout for this problem (48 bytes, ptrs only, base s[0:1]):
; @launch grid=(256,1,1) block=(256,1,1) lds=%d
.amdgcn_target "amdgcn-amd-amdhsa--gfx950"
.text
.globl NAME_kernel
.p2align 8
.type NAME_kernel,@function
NAME_kernel:
"""
FOOTER = """
.section .rodata,"a"
.p2align 6
.amdhsa_kernel NAME_kernel
  .amdhsa_next_free_vgpr 512
  .amdhsa_next_free_sgpr 102
  .amdhsa_accum_offset 256
  .amdhsa_group_segment_fixed_size 0
  .amdhsa_kernarg_size 48
  .amdhsa_user_sgpr_count 2
  .amdhsa_user_sgpr_kernarg_segment_ptr 1
  .amdhsa_system_sgpr_workgroup_id_x 1
.end_amdhsa_kernel
"""


def generate(cfg):
    g = Gen(cfg)
    g.build()
    lines, seg = g.roll()
    lds = LDS_BYTES
    src = (HEADER % lds).replace('NAME', NAME) + '\n'.join(lines) + '\n' + FOOTER.replace('NAME', NAME)
    return src, g, seg


if __name__ == '__main__':
    cfg = Cfg()
    out = sys.argv[1] if len(sys.argv) > 1 else 'cdna_kernels/%s.s' % NAME
    for kv in sys.argv[2:]:
        k, val = kv.split('=')
        setattr(cfg, k, eval(val))
    src, g, seg = generate(cfg)
    open(out, 'w').write(src)
    print('nops inserted', g.nnops, 'total est cycles', est_cycles(g.prog), 'lines', src.count('\n'))
    print(' '.join('%s:%d' % (J, est_cycles(seg[J])) for J in seg))
```

```python
import sys, os, struct
from sched import *

NAME = 'standalone__gqa_softmax__near_ridge'


class Cfg:
    R = 3
    D = 3
    U = 3
    LAT = 7
    loopA = (2, 29)
    loopB = (34, 61)
    thr = 0x4b800000
    debug = False
    stamps = False
    nt = ' nt'
    st_mod = ' nt sc1'
    st_mod2 = ' nt sc1'
    no_dma = False
    no_qb = False
    no_drain = False
    pair_cvt = True
    code_pf = False
    p2_early = False
    conv_asap = True
    qa_lds = False
    qa_init = 2
    qplan = {0: [], 1: [1], 2: [2]}
    pk_tail = True
    tail_lds = True
    fullline = True
    vmap = True
    exp_odd = True
    order = 'g44'
    qdepth = 2
    tplan = {1: [1], 4: [2]}
    v0_late = False
    start_stamps = False
    dbg_wg = None
    xp = ''
    bar_stamps = False
    dma_early = True
    qrd_lat = 8


SLOT = 16896
KOFF, VOFF = 0, 8448
CH = 1056
NT = 64
NS = NT * 6
DUMMY = 3 * SLOT
STAGE0 = DUMMY + 3 * CH
STAGEW = 24 * CH
LDS_BYTES = STAGE0 + 4 * STAGEW
C_SCALE = 1.4426950408889634 * (128 ** -0.5)


def f32bits(x):
    return struct.unpack('<I', struct.pack('<f', x))[0]


def O(b, t): return 32 * b + 4 * t
def S(buf, u): return 192 + 8 * buf + 4 * u
def P(buf): return 208 + 4 * buf
def CI(b): return 216 + 4 * b
vIDX, vK, vV, vDMA = 240, 241, 242, 243
def T(i): return 244 + i
vQ, vO = T(10), T(11)
def Q(b, s): return 16 * b + 4 * s
def KF(u, s): return 96 + 16 * u + 4 * s
def VF(t): return 128 + 4 * t
def L(k): return 160 + 4 * k
SA = 172
def QR(b, s): return 176 + 16 * b + 4 * s
def qoff(b): return 8192 * (b >> 1) + 512 * (b & 1)

sK, sV, sQ, sO = 4, 8, 12, 16
sDOFF, sDLDS, sSLOT, sDELTA, sWPART, sTMP, sW, sIDX = 20, 21, 22, 23, 24, 25, 26, 27
sC, sTHR, sMASK = 28, 30, 31
sFLAG = [34, 36]
sCNT, sPHASE, sQOFF, sOOFF = 38, 39, 40, 41
sWPARTV = 21
sSTG, sQI, sQREL, sQM, sQSO, sQT, sQT2 = 42, 44, 45, 46, 47, 48, 49
sOI, sOSO, sOT, sOT2, sOINC = 50, 51, 32, 33, 62


def v(n): return 'v%d' % n
def a(n): return 'a%d' % n
def s(n): return 's%d' % n


def V_(text, rd=(), wr=(), kind='valu'):
    return Ins(text, kind, rd, wr)


def S_(text, rd=(), wr=()):
    return Ins(text, 'salu', rd, list(wr) + ['scc'])


class Gen:
    def __init__(self, cfg):
        self.cfg = cfg
        self.bb = []
        self.flex = []
        self.iQK = {}
        self.iPV = {}
        self.iZ = {}
        self.pos = {}
        self.pstart = {}
        self.pend_ = {}

    def mk_qk(self, n, u, st):
        j, b = (n % 192) // 6, n % 6
        J = n // 6
        d = S(n & 1, u)
        h = n // 192
        rd = [(a(KF(u, st) + i), ('K', J, u, st, i)) for i in range(4)]
        rd += [(a(Q(b, st) + i), ('Q', h, b, st, i)) for i in range(4)]
        if st == 0:
            if j == 0:
                c = '0'
                srcc = []
            else:
                c = rng('v', CI(b), 4)
                srcc = regs('v', CI(b), 4)
                rd += [(r, ('CI', h, b)) for r in srcc]
        else:
            c = rng('v', d, 4)
            srcc = regs('v', d, 4)
            rd += [(v(d + i), ('Sp', n, u, st - 1, i)) for i in range(4)]
        tag = 'Sp' if st < 3 else 'S'
        wr = [(v(d + i), (tag, n, u, st, i) if st < 3 else ('S', n, u, i)) for i in range(4)]
        m = Ins('v_mfma_f32_16x16x32_bf16 %s, %s, %s, %s' % (rng('v', d, 4), rng('a', KF(u, st), 4),
                                                          rng('a', Q(b, st), 4), c),
                'mfma', rd, wr, srcc=srcc)
        m.meta['cls'] = 'xdl'
        return m

    def mk_pv(self, n, t):
        j, b = (n % 192) // 6, n % 6
        J = n // 6
        h = n // 192
        d = O(b, t)
        rd = [(a(VF(t) + i), ('V', J, t, i)) for i in range(4)]
        rd += [(v(P(n & 1) + i), ('P', n, i)) for i in range(4)]
        if j == 0:
            c = '0'
            srcc = []
        else:
            c = rng('v', d, 4)
            srcc = regs('v', d, 4)
            rd += [(v(d + i), ('O', h, b, t, j - 1, i)) for i in range(4)]
        wr = [(v(d + i), ('O', h, b, t, j, i)) for i in range(4)]
        m = Ins('v_mfma_f32_16x16x32_bf16 %s, %s, %s, %s' % (rng('v', d, 4), rng('a', VF(t), 4),
                                                          rng('v', P(n & 1), 4), c),
                'mfma', rd, wr, srcc=srcc)
        m.meta['cls'] = 'xdl'
        return m

    def mk_z(self, p):
        n0 = p - 2
        h, j, k = n0 // 192, (n0 % 192) // 6, (n0 % 6) // 2
        d = L(k)
        rd = [(v(P(0) + i), ('P', n0, i)) for i in range(4)] + [(v(P(1) + i), ('P', n0 + 1, i)) for i in range(4)]
        rd += [(a(SA + i), 'SA') for i in range(4)] + [(v(vIDX), 'IDX')]
        rd += [(a(d + i), ('L', h, k, j - 1, i)) for i in range(4)]
        wr = [(a(d + i), ('L', h, k, j, i)) for i in range(4)]
        m = Ins('v_smfmac_f32_16x16x64_bf16 %s, %s, %s, %s' % (rng('a', d, 4), rng('a', SA, 4),
                                                            rng('v', P(0), 8), v(vIDX)),
                'mfma', rd, wr, srcc=regs('a', d, 4))
        m.meta['cls'] = 'smf'
        return m

    def build_backbone(self):
        bb = self.bb
        for p in range(-1, NS + 1):
            qk = p + 1 if p + 1 < NS else None
            pv = p - 1 if 0 <= p - 1 < NS else None
            z = p >= 2 and p % 2 == 0
            self.pstart[p] = len(bb)
            seq = []
            qs = [('q', i >> 2, i & 3) for i in range(8)] if qk is not None else []
            ps = [('p', i) for i in range(8)] if pv is not None else []
            if self.cfg.order == 'alt' or not qs or not ps:
                for i in range(8):
                    seq += qs[i:i + 1] + ps[i:i + 1]
            elif self.cfg.order == 'g44':
                seq = qs[:4] + ps[:4] + qs[4:] + ps[4:]
            elif self.cfg.order == 'g88':
                seq = qs + ps
            zfirst = self.cfg.order != 'alt'
            zdone = not z
            npos = 0
            for it in seq:
                if it[0] == 'p' and not zdone and zfirst and qs:
                    self.iZ[p] = len(bb)
                    bb.append(self.mk_z(p))
                    zdone = True
                if it[0] == 'q':
                    m = self.mk_qk(qk, it[1], it[2])
                    self.iQK[(qk, it[1], it[2])] = len(bb)
                else:
                    m = self.mk_pv(pv, it[1])
                    self.iPV[(pv, it[1])] = len(bb)
                self.pos[(p, npos)] = len(bb)
                npos += 1
                bb.append(m)
                if it[0] == 'p' and not zdone:
                    self.iZ[p] = len(bb)
                    bb.append(self.mk_z(p))
                    zdone = True
            self.pend_[p] = len(bb) - 1
        for J in range(1, NT):
            k = self.pstart[6 * J]
            bb[k].meta['tile_start'] = J
            bb[k].meta['reserve_scal'] = True
            bb[k - 1].meta['reserve_scal'] = True

    def reserve_wait_slots(self):
        for J in range(1, NT):
            for u in range(2):
                for st in range(4):
                    self.bb[self.iQK[(6 * J, u, st)] - 1].meta['reserve_scal'] = True
        for J in range(0, NT):
            for t in range(8):
                self.bb[self.iPV[(6 * J, t)] - 1].meta['reserve_scal'] = True

    def add(self, ins, lo=None, hi=None, deps=(), prio=0):
        ins.lo, ins.hi, ins.prio = lo, hi, prio
        ins.deps = [d if isinstance(d, tuple) else (d, 0) for d in deps if d is not None]
        self.flex.append(ins)
        return ins

    def softmax(self):
        lastcvt = {}
        for n in range(NS):
            j, b, h = (n % 192) // 6, n % 6, n // 192
            buf = n & 1
            sr = [S(buf, u) + i for u in range(2) for i in range(4)]
            firstpv = self.iPV[(n, 0)]
            normal = j != 0 and (n, 15) in self.pos and n + 2 < NS
            stag = [('S', n, r >> 2, r & 3) for r in range(8)]
            pre = None
            if j == 0:
                t0, t1 = T(0), T(1)
                lo0 = self.iQK[(n, 0, 3)] + 4
                lo1 = self.iQK[(n, 1, 3)] + 4
                prevuse = self.t0_last if hasattr(self, 't0_last') else None
                c = self.add(V_('v_max3_f32 %s, %s, %s, %s' % (v(t0), v(sr[0]), v(sr[1]), v(sr[2])),
                                [(v(sr[i]), stag[i]) for i in range(3)], [(v(t0), ('m0', n))]), lo=lo0,
                             deps=[prevuse])
                c = self.add(V_('v_max_f32 %s, %s, %s' % (v(t0), v(t0), v(sr[3])),
                                [(v(t0), ('m0', n)), (v(sr[3]), stag[3])], [(v(t0), ('m1', n))]), lo=lo0, deps=[c])
                c = self.add(V_('v_max3_f32 %s, %s, %s, %s' % (v(t0), v(t0), v(sr[4]), v(sr[5])),
                                [(v(t0), ('m1', n)), (v(sr[4]), stag[4]), (v(sr[5]), stag[5])],
                                [(v(t0), ('m2', n))]), lo=lo1, deps=[c])
                c = self.add(V_('v_max3_f32 %s, %s, %s, %s' % (v(t0), v(t0), v(sr[6]), v(sr[7])),
                                [(v(t0), ('m2', n)), (v(sr[6]), stag[6]), (v(sr[7]), stag[7])],
                                [(v(t0), ('m3', n))]), lo=lo1, deps=[c])
                c = self.add(V_('v_mov_b32 %s, %s' % (v(t1), v(t0)), [(v(t0), ('m3', n))], [(v(t1), ('m3c', n))]),
                             deps=[c], lo=lo1)
                c = self.add(V_('v_permlane16_swap_b32 %s, %s' % (v(t0), v(t1)),
                                [(v(t0), ('m3', n)), (v(t1), ('m3c', n))],
                                [(v(t0), ('m4a', n)), (v(t1), ('m4b', n))], kind='perm'), deps=[(c, 1)], lo=lo1)
                c = self.add(V_('v_max_f32 %s, %s, %s' % (v(t0), v(t0), v(t1)),
                                [(v(t0), ('m4a', n)), (v(t1), ('m4b', n))], [(v(t0), ('m5', n))]), deps=[c], lo=lo1)
                c = self.add(V_('v_mov_b32 %s, %s' % (v(t1), v(t0)), [(v(t0), ('m5', n))], [(v(t1), ('m5c', n))]),
                             deps=[c], lo=lo1)
                c = self.add(V_('v_permlane32_swap_b32 %s, %s' % (v(t0), v(t1)),
                                [(v(t0), ('m5', n)), (v(t1), ('m5c', n))],
                                [(v(t0), ('m6a', n)), (v(t1), ('m6b', n))], kind='perm'), deps=[(c, 1)], lo=lo1)
                cis = []
                for i in range(4):
                    c = self.add(V_('v_min_f32 %s, -%s, -%s' % (v(CI(b) + i), v(t0), v(t1)),
                                    [(v(t0), ('m6a', n)), (v(t1), ('m6b', n))], [(v(CI(b) + i), ('CI', h, b))]),
                                 deps=[c], lo=lo1)
                    cis.append(c)
                self.t0_last = cis[-1]
                for cc in cis:
                    cc.hi = self.iQK[(n + 6, 0, 0)] - 2
                pre = []
                for r in range(8):
                    c = self.add(V_('v_add_f32 %s, %s, %s' % (v(sr[r]), v(CI(b)), v(sr[r])),
                                    [(v(CI(b)), ('CI', h, b)), (v(sr[r]), stag[r])], [(v(sr[r]), ('Ss', n, r))]),
                                 deps=[cis[0]], lo=lo1)
                    pre.append(c)
                stag = [('Ss', n, r) for r in range(8)]
            exps = []
            for r in range(8):
                e = V_('v_exp_f32 %s, %s' % (v(sr[r]), v(sr[r])), [(v(sr[r]), stag[r])],
                       [(v(sr[r]), ('E', n, r))], kind='trans')
                if normal:
                    g = self.pos[(n, 2 * r + (1 if self.cfg.exp_odd else 0))]
                    self.add(e, lo=g, hi=g, prio=5)
                else:
                    lo = self.iQK[(n, r >> 2, 3)] + 4
                    self.add(e, lo=lo, deps=[pre[r]] if pre else [])
                exps.append(e)
            for i in range(4):
                c = V_('v_cvt_pk_bf16_f32 %s, %s, %s' % (v(P(buf) + i), v(sr[2 * i]), v(sr[2 * i + 1])),
                       [(v(sr[2 * i]), ('E', n, 2 * i)), (v(sr[2 * i + 1]), ('E', n, 2 * i + 1))],
                       [(v(P(buf) + i), ('P', n, i))])
                lo = 0
                if n >= 2:
                    lo = self.iPV[(n - 2, 7)]
                    zp = n if n % 2 == 0 else n - 1
                    zp = (n - 2) - ((n - 2) % 2) + 2
                    lo = max(lo, self.iZ[zp])
                if normal:
                    if self.cfg.exp_odd:
                        g = self.pos[(n, 8)] if i < 2 else self.pstart[n + 1]
                    else:
                        g = self.pos[(n, (8 * (i >> 1) + 7) if self.cfg.pair_cvt else 4 * i + 3)]
                    assert g >= lo
                    self.add(c, lo=g, hi=g, deps=[(exps[2 * i], 1), (exps[2 * i + 1], 1)], prio=5)
                else:
                    hi = firstpv - 2
                    if n + 2 < NS:
                        hi = min(hi, self.iQK[(n + 2, i >> 1, 0)] - 1)
                    self.add(c, lo=lo, hi=hi, deps=[(exps[2 * i], 1), (exps[2 * i + 1], 1)])

    def inloop(self, J):
        return any(a_ <= J < b_ for a_, b_ in (self.cfg.loopA, self.cfg.loopB))

    def dma_group(self, JJ, lo, hi, deps, which=(0, 1, 2, 3)):
        cfg = self.cfg
        prev = self.m0chain
        base = (JJ % cfg.R) * SLOT
        for i in which:
            off = (0, 32, VOFF, VOFF + (8 if cfg.vmap else 32))[i]
            wp = sWPART
            m = S_('s_add_u32 m0, %s, %d' % (s(wp), base + off), [s(wp)], ['m0'])
            self.add(m, lo=lo, hi=hi, deps=list(deps) + ([(prev, 1)] if prev else []))
            srd = sK if i < 2 else sV
            dma = Ins('buffer_load_dwordx4 %s, %s, %s offen%s%s lds' % (
                v(vDMA), rng('s', srd, 4), s(sDOFF), ' offset:1024' if i & 1 else '', cfg.nt), 'dma',
                [v(vDMA), 'm0', s(sDOFF)] + regs('s', srd, 4), [])
            dma.meta['tile'] = JJ
            self.add(dma, lo=lo, hi=hi, deps=[(m, 1)] + list(deps))
            prev = dma
        self.m0chain = prev
        self.lastdma[JJ] = prev
        return prev

    def kv_stream(self):
        cfg = self.cfg
        R, D = cfg.R, cfg.D
        self.bar = {}
        self.barwait = {}
        kreads = {}
        chain = None
        for J in range(0, NT):
            p3 = 6 * J + 3
            last = J == NT - 1
            if cfg.loopA[0] - 1 <= J < cfg.loopA[1] and not cfg.no_qb:
                self.q_stage_tile(J, dma_only=J < cfg.loopA[0])
            if cfg.loopB[0] <= J < cfg.loopB[1] and not cfg.no_drain:
                self.o_drain_tile(J)
            vr = []
            for t in range(8):
                for pp in range(2):
                    d = VF(t) + 2 * pp
                    ins = Ins('ds_read_b64_tr_b16 %s, %s offset:%d' % (
                        rng('a', d, 2), v(vV), (J % R) * SLOT + 512 * pp +
                        ((64 * (t >> 1) + 8 * (t & 1)) if cfg.vmap else 32 * t)),
                        'ds', [v(vV)], [(a(d + i), ('V', J, t, 2 * pp + i)) for i in range(2)])
                    lo_ = self.iPV[(6 * J - 1, t)] if J > 0 else 0
                    hi_ = self.iPV[(6 * J, t)] - cfg.LAT
                    if J > 0:
                        deps = [(self.bar[J - 1], 0)]
                    else:
                        deps = [(self.bar_v0, 0)]
                        lo_ = max(lo_, self.bar_v0.lo)
                    self.add(ins, lo=lo_, hi=max(hi_, lo_), deps=deps)
                    vr.append(ins)
            e = self.pend_[p3]
            w = Ins('s_waitcnt vmcnt(0)', 'wait')
            w.meta['tile_wait'] = J + 1 if not last else 'all'
            self.add(w, lo=e - 2, hi=e - 1)
            bar = Ins('s_barrier', 'bar')
            bar.meta['assert_lg_done'] = set(vr) | set(kreads.get(J, []))
            self.add(bar, lo=e - 1, hi=e, deps=[(w, 1)])
            self.bar[J] = bar
            self.barwait[J] = w
            if cfg.start_stamps and J < 2:
                bar.meta['stamp'] = True
            if last:
                break
            kr = []
            for u in range(2):
                for st in range(4):
                    d = KF(u, st)
                    ins = Ins('ds_read_b128 %s, %s offset:%d' % (
                        rng('a', d, 4), v(vK), ((J + 1) % R) * SLOT + 512 * u + 64 * st), 'ds',
                        [v(vK)], [(a(d + i), ('K', J + 1, u, st, i)) for i in range(4)])
                    lo_ = self.iQK[(6 * J + 5, u, st)]
                    hi_ = self.iQK[(6 * J + 6, u, st)] - cfg.LAT
                    self.add(ins, lo=lo_, hi=max(hi_, lo_), deps=[(bar, 0)])
                    kr.append(ins)
            kreads[J + 1] = kr
            JJ = J + D
            if JJ < NT and not (cfg.no_dma and self.inloop(J)):
                lo_ = self.pstart[6 * J + 5] - 2
                hi_ = self.pend_[6 * J + 5] - 1
                if cfg.dma_early:
                    lo_ = self.pend_[6 * J + 3]
                    hi_ = self.pstart[6 * J + 5] + 2
                if J == 0:
                    inc = self.doff_final
                else:
                    inc = self.add(S_('s_add_u32 %s, %s, 8192' % (s(sDOFF), s(sDOFF)), [s(sDOFF)], [s(sDOFF)]),
                                   lo=self.pstart[6 * J + 2] + 1, hi=self.pend_[6 * J + 3] - 3, deps=[(chain, 1)])
                chain = self.dma_group(JJ, lo_, hi_, [(bar, 1), (inc, 1)])

    def q_stage_tile(self, J, dma_only=False):
        cfg = self.cfg
        lo, hi = self.pstart[6 * J + 1] + 2, self.pend_[6 * J + 3] - 3
        prev = self.qs_chain

        def sc(ins, h=hi):
            nonlocal prev
            prev = self.add(ins, lo=lo, hi=h, deps=[(prev, 1)] if prev else [])
            return prev
        sc(S_('s_add_u32 %s, %s, 1' % (s(sQI), s(sQI)), [s(sQI)], [s(sQI)]))
        sc(S_('s_add_u32 %s, %s, %d' % (s(sQREL), s(sQREL), CH), [s(sQREL)], [s(sQREL)]))
        sc(S_('s_add_u32 %s, %s, 1024' % (s(sQSO), s(sQSO)), [s(sQSO)], [s(sQSO)]))
        sc(S_('s_sub_u32 %s, %s, 24' % (s(sQM), s(sQI)), [s(sQI)], [s(sQM)]))
        sc(S_('s_ashr_i32 %s, %s, 31' % (s(sQM), s(sQM)), [s(sQM)], [s(sQM)]))
        sc(S_('s_and_b32 %s, %s, %s' % (s(sQT), s(sQREL), s(sQM)), [s(sQREL), s(sQM)], [s(sQT)]))
        sc(S_('s_andn2_b32 %s, 0x40000000, %s' % (s(sQT2), s(sQM)), [s(sQM)], [s(sQT2)]))
        so = sc(S_('s_or_b32 %s, %s, %s' % (s(sQT2), s(sQT2), s(sQSO)), [s(sQT2), s(sQSO)], [s(sQT2)]))
        wlo, whi = self.pstart[6 * J + 5] - 3, self.pstart[6 * J + 5] + 3
        if cfg.dma_early:
            wlo, whi = self.pend_[6 * J + 3] - 4, self.pend_[6 * J + 3] + 2
        m = S_('s_add_u32 m0, %s, %d' % (s(sQT), DUMMY), [s(sQT)], ['m0'])
        self.add(m, lo=wlo, hi=whi, deps=[(so, 1)] + ([(self.m0chain, 1)] if self.m0chain else []))
        dma = Ins('buffer_load_dwordx4 %s, %s, %s offen%s lds' % (v(vDMA), rng('s', sQ, 4), s(sQT2), cfg.nt), 'dma',
                  [v(vDMA), 'm0', s(sQT2)] + regs('s', sQ, 4), [])
        self.add(dma, lo=wlo, hi=whi, deps=[(m, 1)])
        self.m0chain = dma
        self.qs_chain = dma
        if dma_only:
            return
        t0, tb, ad = T(0), T(4), T(5)
        key = ('qc', J)
        lo = self.pstart[6 * J + 1] + 8
        hi = self.pend_[6 * J + 3] - 3
        rd = Ins('ds_read_b128 %s, %s' % (rng('v', t0, 4), v(ad)), 'ds', [v(ad)],
                 [(v(t0 + i), (key, 'raw', i)) for i in range(4)])
        self.add(rd, lo=lo, hi=self.pstart[6 * J + 2] - 2, deps=[(self.qc_chain, 1)] if self.qc_chain else [])
        c = None
        lo2 = self.pstart[6 * J + 2] + 1
        for i in range(4):
            r = t0 + i
            c = self.add(V_('v_lshlrev_b32 %s, 16, %s' % (v(tb), v(r)), [(v(r), (key, 'raw', i))], [(v(tb), (key, 'b', i))]),
                         lo=lo2, deps=[(rd, cfg.qrd_lat), c] if c else [(rd, cfg.qrd_lat)])
            c = self.add(V_('v_and_b32 %s, %s, %s' % (v(r), s(sMASK), v(r)), [(v(r), (key, 'raw', i)), s(sMASK)],
                            [(v(r), (key, 'c', i))]), lo=lo2, deps=[c])
            c = self.add(V_('v_mul_f32 %s, %s, %s' % (v(tb), s(sC), v(tb)), [(v(tb), (key, 'b', i)), s(sC)],
                            [(v(tb), (key, 'd', i))]), lo=lo2, deps=[c])
            c = self.add(V_('v_mul_f32 %s, %s, %s' % (v(r), s(sC), v(r)), [(v(r), (key, 'c', i)), s(sC)],
                            [(v(r), (key, 'e', i))]), lo=lo2, deps=[c])
            c = self.add(V_('v_cvt_pk_bf16_f32 %s, %s, %s' % (v(r), v(tb), v(r)),
                            [(v(r), (key, 'e', i)), (v(tb), (key, 'd', i))], [(v(r), (key, 'f', i))]), lo=lo2, deps=[c])
        wr = Ins('ds_write_b128 %s, %s' % (v(ad), rng('v', t0, 4)), 'dsw',
                 [v(ad)] + [(v(t0 + i), (key, 'f', i)) for i in range(4)], [])
        self.add(wr, lo=lo2, hi=hi + 20, deps=[(c, 1)])
        up = self.add(V_('v_add_u32 %s, %d, %s' % (v(ad), CH, v(ad)), [v(ad)], [v(ad)]), lo=lo2, hi=hi + 24,
                      deps=[(wr, 0)])
        self.qc_chain = up
        self.qc_lastwrite = wr

    def o_drain_tile(self, J):
        cfg = self.cfg
        ph = (J - cfg.loopB[0]) % cfg.U
        if ph == 0:
            lo, hi = self.pstart[6 * J] + 2, self.pend_[6 * J + 1]
            prev = self.od_chain

            def sc(ins):
                nonlocal prev
                prev = self.add(ins, lo=lo, hi=hi, deps=[(prev, 1)] if prev else [])
                return prev
            sc(S_('s_lshr_b32 %s, %s, 1' % (s(sOT), s(sOI)), [s(sOI)], [s(sOT)]))
            sc(S_('s_lshl_b32 %s, %s, 13' % (s(sOT), s(sOT)), [s(sOT)], [s(sOT)]))
            sc(S_('s_and_b32 %s, %s, 1' % (s(sOT2), s(sOI)), [s(sOI)], [s(sOT2)]))
            sc(S_('s_lshl_b32 %s, %s, 9' % (s(sOT2), s(sOT2)), [s(sOT2)], [s(sOT2)]))
            sc(S_('s_add_u32 %s, %s, %s' % (s(sOSO), s(sOT), s(sOT2)), [s(sOT), s(sOT2)], [s(sOSO)]))
            sc(S_('s_sub_u32 %s, %s, 6' % (s(sOT), s(sOI)), [s(sOI)], [s(sOT)]))
            sc(S_('s_ashr_i32 %s, %s, 31' % (s(sOT), s(sOT)), [s(sOT)], [s(sOT)]))
            sc(S_('s_andn2_b32 %s, 0x40000000, %s' % (s(sOT2), s(sOT)), [s(sOT)], [s(sOT2)]))
            sc(S_('s_or_b32 %s, %s, %s' % (s(sOSO), s(sOSO), s(sOT2)), [s(sOSO), s(sOT2)], [s(sOSO)]))
            sc(S_('s_and_b32 %s, %d, %s' % (s(sOINC), 2 * CH, s(sOT)), [s(sOT)], [s(sOINC)]))
            sc(S_('s_add_u32 %s, %s, 1' % (s(sOI), s(sOI)), [s(sOI)], [s(sOI)]))
            self.od_scal = prev
            self.od_chain = prev
        if ph > 1:
            return
        ad = T(8)
        key = ('od', J)
        lo = self.pstart[6 * J + 2] + 1
        rds = []
        for q in range(2):
            t0 = T(4 * q)
            rd = Ins('ds_read_b128 %s, %s offset:%d' % (rng('v', t0, 4), v(ad), (128 if cfg.fullline else CH) * q),
                     'ds', [v(ad)],
                     [(v(t0 + i), (key, q, i)) for i in range(4)])
            self.add(rd, lo=lo, hi=lo + 6, deps=[(self.od_st, 1)] if self.od_st else [])
            rds.append(rd)
        up = self.add(V_('v_add_u32 %s, %s, %s' % (v(ad), s(sOINC), v(ad)), [v(ad), s(sOINC)], [v(ad)]),
                      lo=lo, hi=self.pend_[6 * J + 3], deps=[(rds[0], 0), (rds[1], 0), (self.od_scal, 1)])
        for q in range(2):
            t0 = T(4 * q)
            st = Ins('buffer_store_dwordx4 %s, %s, %s, %s offen offset:%d%s' % (
                rng('v', t0, 4), v(vO), rng('s', sO, 4), s(sOSO),
                128 * ph + (256 if cfg.fullline else 64) * q, cfg.st_mod), 'vstore',
                [(v(t0 + i), (key, q, i)) for i in range(4)] + [v(vO), s(sOSO)] + regs('s', sO, 4), [])
            self.add(st, lo=lo + 10, hi=self.pend_[6 * J + 3] - 3, deps=[(rds[q], cfg.qrd_lat + 1), (self.od_scal, 1)])
            self.od_st = st
        self.od_chain = self.od_st if ph == 1 else self.od_chain

    def epilogue(self, h):
        cfg = self.cfg
        self.st_last = None
        if h == 1 and cfg.tail_lds:
            assert cfg.vmap and cfg.fullline
            lo_ = self.pstart[6 * cfg.loopB[1]] + 2
            hi_ = self.pstart[6 * 62]
            t0_ = T(0)
            c = self.add(V_('v_bfe_u32 %s, %s, 4, 3' % (v(t0_), v(vDMA)), [v(vDMA)], [v(t0_)]), lo=lo_, hi=hi_)
            c = self.add(V_('v_lshrrev_b32 %s, 2, %s' % (v(T(9)), v(t0_)), [v(t0_)], [v(T(9))]), lo=lo_, hi=hi_, deps=[c])
            c = self.add(V_('v_mul_u32_u24 %s, %d, %s' % (v(T(9)), CH, v(T(9))), [v(T(9))], [v(T(9))]), lo=lo_, hi=hi_, deps=[c])
            c = self.add(V_('v_and_b32 %s, 3, %s' % (v(t0_), v(t0_)), [v(t0_)], [v(t0_)]), lo=lo_, hi=hi_, deps=[c])
            c = self.add(V_('v_lshl_add_u32 %s, %s, 8, %s' % (v(T(9)), v(t0_), v(T(9))), [v(t0_), v(T(9))], [v(T(9))]), lo=lo_, hi=hi_, deps=[c])
            c = self.add(V_('v_bfe_u32 %s, %s, 7, 3' % (v(t0_), v(vDMA)), [v(vDMA)], [v(t0_)]), lo=lo_, hi=hi_, deps=[c])
            c = self.add(V_('v_lshl_add_u32 %s, %s, 4, %s' % (v(T(9)), v(t0_), v(T(9))), [v(t0_), v(T(9))], [v(T(9))]), lo=lo_, hi=hi_, deps=[c])
            self.tr_addr = self.add(V_('v_add_u32 %s, %s, %s' % (v(T(9)), s(sSTG), v(T(9))), [s(sSTG), v(T(9))],
                                       [(v(T(9)), 'traddr')]), lo=lo_, hi=hi_, deps=[c])
            self.tw_addr = self.add(V_('v_add_u32 %s, %s, %s' % (v(T(8)), s(43), v(vDMA)), [s(43), v(vDMA)],
                                       [(v(T(8)), 'twaddr')]), lo=lo_, hi=hi_)
        prev_wr = None
        prevchain = getattr(self, 'sq_chain', None)
        lread = {}
        for b in range(6):
            n = 192 * h + 186 + b
            k, e = b >> 1, b & 1
            zi = self.iZ[192 * h + 188 + 2 * k]
            x = T(2 + (b & 1))
            y = T(4)
            nxt = n + 6 if h == 0 else None
            jl = 31
            prevx = getattr(self, 'xlast', {}).get(b & 1)
            r0 = self.add(V_('v_accvgpr_read_b32 %s, %s' % (v(x), a(L(k) + 2 * e)),
                             [(a(L(k) + 2 * e), ('L', h, k, jl, 2 * e))], [(v(x), ('l0', h, b))]),
                          lo=zi + 5, deps=[prevx])
            r1 = self.add(V_('v_accvgpr_read_b32 %s, %s' % (v(y), a(L(k) + 2 * e + 1)),
                             [(a(L(k) + 2 * e + 1), ('L', h, k, jl, 2 * e + 1))], [(v(y), ('l1', h, b))]),
                          lo=zi + 5, deps=[getattr(self, 'ylast', None)])
            lread[b] = (r0, r1)
            ad = self.add(V_('v_add_f32 %s, %s, %s' % (v(x), v(x), v(y)),
                             [(v(x), ('l0', h, b)), (v(y), ('l1', h, b))], [(v(x), ('l', h, b))]), deps=[r0, r1],
                          lo=zi + 5)
            self.ylast = ad
            cmp_ = self.add(V_('v_cmp_nge_f32 vcc, %s, %s' % (s(sTHR), v(x)), [s(sTHR), (v(x), ('l', h, b))],
                               [('vcc', ('chk', h, b))]), deps=[ad, getattr(self, 'vcc_last', None)], lo=zi + 5)
            fl = self.add(S_('s_or_b64 %s, %s, vcc' % (rng('s', sFLAG[h], 2), rng('s', sFLAG[h], 2)),
                             [('vcc', ('chk', h, b))] + regs('s', sFLAG[h], 2), regs('s', sFLAG[h], 2)),
                          deps=[(cmp_, 1)], lo=zi + 5)
            self.vcc_last = (fl, 1)
            rc = self.add(V_('v_rcp_f32 %s, %s' % (v(x), v(x)), [(v(x), ('l', h, b))], [(v(x), ('r', h, b))],
                             kind='trans'), deps=[cmp_], lo=zi + 5)
            fl.hi = None
            so = None
            if h == 1:
                so = self.add(Ins('s_mov_b32 %s, %d' % (s(sOOFF), h * 98304 + qoff(b)), 'salu', [], [s(sOOFF)]),
                              deps=[(self.st_last, 1)] if self.st_last is not None and b > 0 else [], lo=zi)
            last_in_block = None
            for tau in range(4):
                t0, t1 = 2 * tau, 2 * tau + 1
                muls = {}
                lo = self.iPV[(n, t1)] + 5
                for t in (t0, t1):
                    for i in range(4):
                        r = O(b, t) + i
                        muls[(t, i)] = self.add(V_('v_mul_f32 %s, %s, %s' % (v(r), v(x), v(r)),
                                                   [(v(x), ('r', h, b)), (v(r), ('O', h, b, t, jl, i))],
                                                   [(v(r), ('On', h, b, t, i))]), lo=lo, deps=[(rc, 1)])
                base = O(b, t0)
                cv = []
                src = [(t0, 0), (t0, 2), (t1, 0), (t1, 2)]
                for q, (t, i) in enumerate(src):
                    d = base + q
                    deps = [muls[(t, i)], muls[(t, i + 1)]]
                    if q == 1:
                        deps.append(cv[0])
                    if q == 2:
                        deps += [cv[1]]
                    if q == 3:
                        deps += [cv[1], cv[2]]
                    c = self.add(V_('v_cvt_pk_bf16_f32 %s, %s, %s' % (v(d), v(O(b, t) + i), v(O(b, t) + i + 1)),
                                    [(v(O(b, t) + i), ('On', h, b, t, i)), (v(O(b, t) + i + 1), ('On', h, b, t, i + 1))],
                                    [(v(d), ('Oc', h, b, tau, q))]), lo=lo, deps=deps)
                    cv.append(c)
                    if (tau & 1) == 0 and q == 0:
                        cvall = {}
                    cvall[(tau, q)] = c
                if cfg.vmap:
                    tagn = 'Oc'
                    pre_st = [(x, 1) for x in cv]
                else:
                    tagn = 'Os'
                    s0 = self.add(V_('v_permlane16_swap_b32 %s, %s' % (v(base), v(base + 2)),
                                     [(v(base), ('Oc', h, b, tau, 0)), (v(base + 2), ('Oc', h, b, tau, 2))],
                                     [(v(base), ('Os', h, b, tau, 0)), (v(base + 2), ('Os', h, b, tau, 2))], kind='perm'),
                                  deps=[(cv[0], 1), (cv[2], 1)], lo=lo)
                    s1 = self.add(V_('v_permlane16_swap_b32 %s, %s' % (v(base + 1), v(base + 3)),
                                     [(v(base + 1), ('Oc', h, b, tau, 1)), (v(base + 3), ('Oc', h, b, tau, 3))],
                                     [(v(base + 1), ('Os', h, b, tau, 1)), (v(base + 3), ('Os', h, b, tau, 3))],
                                     kind='perm'), deps=[(cv[1], 1), (cv[3], 1)], lo=lo)
                    pre_st = [(s0, 1), (s1, 1)]
                hi = None
                if h == 0:
                    st = Ins('ds_write_b128 %s, %s offset:%d' % (v(T(8)), rng('v', base, 4), CH * (4 * b + tau)), 'dsw',
                             [(v(base + q), (tagn, h, b, tau, q)) for q in range(4)] + [(v(T(8)), 'ostage')], [])
                    st.meta['cost'] = 8
                    hi = self.iPV[(nxt, t0)] - 2
                    deps = pre_st + [(self.ostage_addr, 1)]
                    deps += [(x, 0) for x in self.qb_reads[2 * (b >> 1)] + self.qb_reads[2 * (b >> 1) + 1]]
                    self.add(st, lo=lo, hi=hi, deps=deps)
                elif cfg.tail_lds:
                    wr = Ins('ds_write_b128 %s, %s offset:%d' % (v(T(8)), rng('v', base, 4), CH * (4 * b + tau)), 'dsw',
                             [(v(base + q), (tagn, h, b, tau, q)) for q in range(4)] + [(v(T(8)), 'twaddr')], [])
                    self.add(wr, lo=lo, deps=pre_st + [(self.tw_addr, 1)])
                    st = wr
                    if tau & 1:
                        hh = tau >> 1
                        for q in range(2):
                            dst = O(b, 4 * hh + 2 * q + 1)
                            rdep = [(wr, 0), (self.tr_addr, 1), (prev_wr, 0)]
                            rd = Ins('ds_read_b128 %s, %s offset:%d' % (
                                rng('v', dst, 4), v(T(9)), CH * (4 * b + 2 * hh) + 128 * q), 'ds',
                                [(v(T(9)), 'traddr')], [(v(dst + i), ('Ot', b, hh, q, i)) for i in range(4)])
                            self.add(rd, lo=lo, deps=rdep + [(cvall[k_], 0) for k_ in cvall])
                            st = Ins('buffer_store_dwordx4 %s, %s, %s, %s offen offset:%d%s' % (
                                rng('v', dst, 4), v(vO), rng('s', sO, 4), s(sOOFF), 128 * hh + 256 * q, cfg.st_mod2),
                                'vstore', [(v(dst + i), ('Ot', b, hh, q, i)) for i in range(4)] +
                                [v(vO), s(sOOFF)] + regs('s', sO, 4), [])
                            self.add(st, lo=lo, deps=[(rd, cfg.qrd_lat), (so, 1)])
                    prev_wr = wr
                else:
                    st = Ins('buffer_store_dwordx4 %s, %s, %s, %s offen offset:%d%s' % (
                        rng('v', base, 4), v(vQ if cfg.vmap else vO), rng('s', sO, 4), s(sOOFF), 64 * tau,
                        cfg.st_mod2), 'vstore',
                        [(v(base + q), (tagn, h, b, tau, q)) for q in range(4)] + [v(vO), s(sOOFF)] + regs('s', sO, 4), [])
                    self.add(st, lo=lo, hi=hi, deps=pre_st + [(so, 1)])
                if nxt is not None:
                    for q in (2, 3):
                        cv[q].hi = min(self.iPV[(nxt, t1)] - 2, cv[q].hi if cv[q].hi is not None else 10 ** 9)
                self.st_last = st
                last_in_block = muls[(t1, 3)]
            self.xlast = getattr(self, 'xlast', {})
            self.xlast[b & 1] = last_in_block
        if h == 0 and cfg.fullline:
            assert cfg.vmap
            t9 = T(9)
            lo_ = self.pstart[6 * cfg.loopB[0] - 6]
            hi_ = self.pstart[6 * cfg.loopB[0]] - 3
            dep = self.st_last
            c = self.add(V_('v_bfe_u32 %s, %s, 4, 3' % (v(t9), v(vDMA)), [v(vDMA)], [v(t9)]), lo=lo_, hi=hi_, deps=[(dep, 1)])
            c = self.add(V_('v_lshrrev_b32 %s, 2, %s' % (v(T(8)), v(t9)), [v(t9)], [v(T(8))]), lo=lo_, hi=hi_, deps=[c])
            c = self.add(V_('v_mul_u32_u24 %s, %d, %s' % (v(T(8)), CH, v(T(8))), [v(T(8))], [v(T(8))]), lo=lo_, hi=hi_, deps=[c])
            c = self.add(V_('v_and_b32 %s, 3, %s' % (v(t9), v(t9)), [v(t9)], [v(t9)]), lo=lo_, hi=hi_, deps=[c])
            c = self.add(V_('v_lshl_add_u32 %s, %s, 8, %s' % (v(T(8)), v(t9), v(T(8))), [v(t9), v(T(8))], [v(T(8))]), lo=lo_, hi=hi_, deps=[c])
            c = self.add(V_('v_bfe_u32 %s, %s, 7, 3' % (v(t9), v(vDMA)), [v(vDMA)], [v(t9)]), lo=lo_, hi=hi_, deps=[c])
            c = self.add(V_('v_lshl_add_u32 %s, %s, 4, %s' % (v(T(8)), v(t9), v(T(8))), [v(t9), v(T(8))], [v(T(8))]), lo=lo_, hi=hi_, deps=[c])
            c = self.add(V_('v_add_u32 %s, %s, %s' % (v(T(8)), s(sSTG), v(T(8))), [s(sSTG), v(T(8))], [v(T(8))]), lo=lo_, hi=hi_, deps=[c])
            self.od_addr = c
        if h == 0:
            for k in range(3):
                zi_next = self.iZ[192 + 2 + 2 * k]
                for i in range(4):
                    bb_ = 2 * k + (i >> 1)
                    self.add(V_('v_accvgpr_write_b32 %s, 0' % a(L(k) + i), [],
                                [(a(L(k) + i), ('L', 1, k, -1, i))]),
                             deps=[lread[bb_][i & 1]], hi=zi_next - 2, lo=0)

    def qb(self):
        cfg = self.cfg
        lo = self.pstart[6 * cfg.loopA[1]] + 2
        ad = self.add(V_('v_add_u32 %s, %s, %s' % (v(T(5)), s(sSTG), v(vK)), [s(sSTG), v(vK)], [(v(T(5)), 'qsaddr')]),
                      lo=lo, hi=self.pstart[184], deps=[(self.qc_chain, 1)] if self.qc_chain else [])
        self.qb_reads = {}
        for b in range(6):
            nlast, nfirst = 186 + b, 192 + b
            lst = []
            for st in range(4):
                d = Q(b, st)
                ins = Ins('ds_read_b128 %s, %s offset:%d' % (
                    rng('a', d, 4), v(T(5)), (b >> 1) * 8 * CH + 512 * (b & 1) + 64 * st), 'ds',
                    [(v(T(5)), 'qsaddr')], [(a(d + i), ('Q', 1, b, st, i)) for i in range(4)])
                lo_ = max(self.iQK[(nlast, 0, st)], self.iQK[(nlast, 1, st)])
                self.add(ins, lo=lo_, hi=self.iQK[(nfirst, 0, st)] - cfg.LAT, deps=[(ad, 1)])
                lst.append(ins)
            self.qb_reads[b] = lst
        self.ostage_addr = self.add(V_('v_add_u32 %s, %s, %s' % (v(T(8)), s(43), v(vDMA)), [s(43), v(vDMA)],
                                       [(v(T(8)), 'ostage')]), lo=lo, hi=self.pstart[184])

    RAW = 96

    def q_load(self, b, add):
        cfg = self.cfg
        out = []
        so = add(Ins('s_mov_b32 %s, %d' % (s(sQOFF), qoff(b)), 'salu', [], [s(sQOFF)]), None)
        for st in range(4):
            d = self.RAW + 16 * b + 4 * st
            out.append(add(Ins('buffer_load_dwordx4 %s, %s, %s, %s offen offset:%d%s' % (
                rng('v', d, 4), v(vQ), rng('s', sQ, 4), s(sQOFF), 64 * st, cfg.nt), 'vload',
                [v(vQ), s(sQOFF)] + regs('s', sQ, 4), [(v(d + i), ('QA', b, st, i)) for i in range(4)]), so))
        return out

    def prologue(self):
        cfg = self.cfg
        R = cfg.R
        o = []

        def e(text, kind='valu', rd=(), wr=()):
            i = Ins(text, kind, rd, wr)
            o.append(i)
            return i

        def srd_setup(srd, ptr, per):
            e('s_mul_i32 s3, s2, %d' % per, 'salu')
            e('s_add_u32 %s, %s, s3' % (s(srd), s(ptr)), 'salu')
            e('s_addc_u32 %s, %s, 0' % (s(srd + 1), s(ptr + 1)), 'salu')
            e('s_and_b32 %s, %s, 0xffff' % (s(srd + 1), s(srd + 1)), 'salu')
            e('s_mov_b32 %s, %d' % (s(srd + 2), per), 'salu')
            e('s_mov_b32 %s, 0x20000' % s(srd + 3), 'salu')

        def dma(J, which):
            last = None
            for i in which:
                off = (0, 32, VOFF, VOFF + (8 if cfg.vmap else 32))[i]
                wp = sWPART
                e('s_add_u32 m0, %s, %d' % (s(wp), (J % R) * SLOT + off), 'salu', wr=['m0'])
                srd = sK if i < 2 else sV
                e('s_nop 0', 'nop')
                last = e('buffer_load_dwordx4 %s, %s, %s offen%s%s lds' % (
                    v(vDMA), rng('s', srd, 4), s(sDOFF), ' offset:1024' if i & 1 else '', cfg.nt), 'dma', rd=['m0'])
                last.meta['tile'] = J
            return last

        def addq(ins, dep):
            o.append(ins)
            return ins
        e('s_cmp_ge_u32 s2, 256', 'salu')
        e('s_cbranch_scc1 L_done', 'branch')
        e('s_load_dwordx4 s[44:47], s[0:1], 0', 'salu')
        e('s_load_dwordx4 s[48:51], s[0:1], 16', 'salu')
        t = [T(i) for i in range(10)]
        e('v_lshrrev_b32 %s, 6, v0' % v(t[0]), wr=[v(t[0])])
        e('v_and_b32 %s, 63, v0' % v(t[1]), wr=[v(t[1])])
        e('v_readfirstlane_b32 %s, %s' % (s(sW), v(t[0])), rd=[v(t[0])], wr=[s(sW)])
        e('v_and_b32 %s, 15, %s' % (v(t[2]), v(t[1])))
        e('v_lshrrev_b32 %s, 4, %s' % (v(t[3]), v(t[1])))
        e('v_lshlrev_b32 %s, 4, %s' % (v(vDMA), v(t[1])))
        e('v_lshl_add_u32 %s, %s, 11, %s' % (v(vDMA), v(t[0]), v(vDMA)), wr=[v(vDMA)])
        e('v_mul_u32_u24 %s, %d, %s' % (v(t[4]), 24576, v(t[0])))
        e('v_and_b32 %s, 7, %s' % (v(t[5]), v(t[2])))
        e('v_lshl_add_u32 %s, %s, 10, %s' % (v(t[4]), v(t[5]), v(t[4])))
        e('v_lshrrev_b32 %s, 3, %s' % (v(t[5]), v(t[2])))
        e('v_lshl_add_u32 %s, %s, 8, %s' % (v(t[4]), v(t[5]), v(t[4])))
        e('v_lshl_add_u32 %s, %s, 4, %s' % (v(vQ), v(t[3]), v(t[4])), wr=[v(vQ)])
        e('s_mul_i32 %s, %s, %d' % (s(sWPART), s(sW), 2 * CH), 'salu', rd=[s(sW)], wr=[s(sWPART)])
        e('s_mov_b32 %s, 0' % s(sDOFF), 'salu')
        e('s_waitcnt lgkmcnt(0)', 'wait')
        if cfg.start_stamps:
            e('s_nop 0', 'nop').meta['stamp'] = True
        srd_setup(sK, 46, 524288)
        srd_setup(sQ, 44, 196608)
        def qa_pair(k):
            last = None
            for c in range(8 * k, 8 * k + 8):
                if c % 4 == 0:
                    e('s_add_u32 s61, s60, %d' % (4096 * (c >> 2)), 'salu')
                imm = 1024 * (c & 3)
                e('s_add_u32 m0, %s, %d' % (s(sSTG), CH * c - imm), 'salu', wr=['m0'])
                e('s_nop 0', 'nop')
                last = e('buffer_load_dwordx4 %s, %s, s61 offen offset:%d%s lds' % (
                    v(vDMA), rng('s', sQ, 4), imm, cfg.nt), 'dma', rd=['m0'])
            return last
        if cfg.qa_lds:
            e('s_mul_i32 %s, %s, %d' % (s(sSTG), s(sW), STAGEW), 'salu')
            e('s_add_u32 %s, %s, %d' % (s(sSTG), s(sSTG), STAGE0), 'salu')
            e('s_mul_i32 s60, %s, %d' % (s(sW), 24576 - 2048), 'salu')
        k0 = dma(0, (0, 1))
        if cfg.qa_lds:
            self.qa_last = {0: qa_pair(0)}
            for k_ in range(1, cfg.qa_init):
                self.qa_last[k_] = qa_pair(k_)
        else:
            q0 = self.q_load(0, addq)
            for b_ in range(1, cfg.qdepth):
                self.q_load(b_, addq)
        srd_setup(sV, 48, 524288)
        v0 = dma(0, (2, 3))
        if cfg.code_pf:
            e('s_getpc_b64 s[56:57]', 'salu')
            x = e('L_pc:', 'label')
            e('v_lshlrev_b32 %s, 7, %s' % (v(t[6]), v(t[1])))
            e('v_lshl_add_u32 %s, %s, 13, %s' % (v(t[6]), v(t[0]), v(t[6])))
            for rep in range(2):
                e('v_min_u32 %s, L_code_end-L_pc-4, %s' % (v(t[7]), v(t[6])))
                e('v_mov_b32 %s, s57' % v(t[9]))
                e('v_add_co_u32 %s, vcc, s56, %s' % (v(t[8]), v(t[7])), wr=['vcc'])
                e('v_addc_co_u32 %s, vcc, 0, %s, vcc' % (v(t[9]), v(t[9])), rd=['vcc'])
                e('global_load_dword v%d, %s, off' % (16 + rep, rng('v', t[8], 2)), 'vload', wr=[v(16 + rep)])
                if rep == 0:
                    e('v_add_u32 %s, 32768, %s' % (v(t[6]), v(t[6])))
        self.lastdma[0] = v0
        srd_setup(sO, 50, 196608)
        if cfg.vmap and cfg.fullline:
            e('v_mul_u32_u24 %s, %d, %s' % (v(vO), 24576, v(t[0])))
            e('v_lshrrev_b32 %s, 3, %s' % (v(t[5]), v(t[1])))
            e('v_lshl_add_u32 %s, %s, 10, %s' % (v(vO), v(t[5]), v(vO)))
            e('v_and_b32 %s, 7, %s' % (v(t[5]), v(t[1])))
            e('v_lshl_add_u32 %s, %s, 4, %s' % (v(vO), v(t[5]), v(vO)), wr=[v(vO)])
        elif cfg.vmap:
            e('v_mov_b32 %s, %s' % (v(vO), v(vQ)), wr=[v(vO)])
        else:
            e('v_and_b32 %s, 1, %s' % (v(t[5]), v(t[3])))
            e('v_lshl_add_u32 %s, %s, 5, %s' % (v(t[4]), v(t[5]), v(t[4])))
            e('v_lshrrev_b32 %s, 1, %s' % (v(t[5]), v(t[3])))
            e('v_lshl_add_u32 %s, %s, 4, %s' % (v(vO), v(t[5]), v(t[4])), wr=[v(vO)])
        e('v_and_b32 %s, 7, %s' % (v(t[4]), v(t[2])))
        e('v_mul_u32_u24 %s, %d, %s' % (v(vK), CH, v(t[4])))
        e('v_lshrrev_b32 %s, 3, %s' % (v(t[4]), v(t[2])))
        e('v_lshl_add_u32 %s, %s, 8, %s' % (v(vK), v(t[4]), v(vK)))
        e('v_lshl_add_u32 %s, %s, 4, %s' % (v(vK), v(t[3]), v(vK)), wr=[v(vK)])
        e('v_bfe_u32 %s, %s, 2, 3' % (v(t[4]), v(t[1])))
        if cfg.vmap:
            e('v_lshrrev_b32 %s, 1, %s' % (v(t[5]), v(t[4])))
            e('v_mul_u32_u24 %s, %d, %s' % (v(vV), 2 * CH, v(t[5])))
            e('v_and_b32 %s, 1, %s' % (v(t[5]), v(t[4])))
            e('v_mul_u32_u24 %s, 1032, %s' % (v(t[5]), v(t[5])))
            e('v_add_u32 %s, %s, %s' % (v(vV), v(t[5]), v(vV)))
        else:
            e('v_mul_u32_u24 %s, %d, %s' % (v(vV), CH, v(t[4])))
        e('v_lshrrev_b32 %s, 5, %s' % (v(t[4]), v(t[1])))
        e('v_lshl_add_u32 %s, %s, 8, %s' % (v(vV), v(t[4]), v(vV)))
        e('v_and_b32 %s, 3, %s' % (v(t[4]), v(t[1])))
        e('v_lshl_add_u32 %s, %s, %d, %s' % (v(vV), v(t[4]), 4 if cfg.vmap else 3, v(vV)))
        e('v_add_u32 %s, %d, %s' % (v(vV), VOFF, v(vV)), wr=[v(vV)])
        e('s_mov_b32 %s, 0x%08x' % (s(sC), f32bits(C_SCALE)), 'salu')
        e('s_mov_b32 %s, 0x%08x' % (s(sC + 1), f32bits(C_SCALE)), 'salu')
        e('s_mov_b32 %s, 0x%08x' % (s(sTHR), cfg.thr), 'salu')
        e('s_mov_b32 %s, 0xffff0000' % s(sMASK), 'salu')
        e('s_mov_b64 %s, 0' % rng('s', sFLAG[0], 2), 'salu')
        e('s_mov_b64 %s, 0' % rng('s', sFLAG[1], 2), 'salu')
        if not cfg.qa_lds:
            e('s_mul_i32 %s, %s, %d' % (s(sSTG), s(sW), STAGEW), 'salu')
            e('s_add_u32 %s, %s, %d' % (s(sSTG), s(sSTG), STAGE0), 'salu')
        e('s_sub_u32 %s, %s, %d' % (s(sQREL), s(sSTG), DUMMY), 'salu')
        e('s_lshl_b32 s3, %s, 11' % s(sW), 'salu')
        e('s_sub_u32 s43, %s, s3' % s(sSTG), 'salu')
        e('s_sub_u32 s63, s43, %d' % (3 * CH), 'salu')
        e('s_mov_b32 %s, -2' % s(sQI), 'salu')
        e('s_sub_u32 %s, %s, %d' % (s(sQREL), s(sQREL), 2 * CH), 'salu')
        e('s_mul_i32 %s, %s, %d' % (s(sQSO), s(sW), 24576 - 2048), 'salu')
        e('s_add_u32 %s, %s, %d' % (s(sQSO), s(sQSO), 98304 - 2048), 'salu')
        e('s_mov_b32 %s, 0' % s(sOI), 'salu')
        e('v_and_b32 %s, 1, %s' % (v(t[4]), v(t[2])))
        e('v_mov_b32 %s, 0x4444' % v(t[5]))
        e('v_mov_b32 %s, 0xeeee' % v(t[6]))
        e('v_cmp_eq_u32 vcc, 0, %s' % v(t[4]), wr=['vcc'])
        e('v_cndmask_b32 %s, %s, %s, vcc' % (v(vIDX), v(t[6]), v(t[5])), rd=['vcc'], wr=[(v(vIDX), 'IDX')])
        e('v_bfe_u32 %s, %s, 1, 1' % (v(t[4]), v(t[2])))
        e('v_lshrrev_b32 %s, 1, %s' % (v(t[5]), v(t[3])))
        e('v_cmp_eq_u32 vcc, %s, %s' % (v(t[4]), v(t[5])), wr=['vcc'])
        e('v_mov_b32 %s, 0x3f803f80' % v(t[6]))
        e('v_cndmask_b32 %s, 0, %s, vcc' % (v(t[4]), v(t[6])), rd=['vcc'], wr=[v(t[4])])
        for i in range(4):
            e('v_accvgpr_write_b32 %s, %s' % (a(SA + i), v(t[4])), rd=[v(t[4])], wr=[(a(SA + i), 'SA')])
        for k in range(3):
            for i in range(4):
                e('v_accvgpr_write_b32 %s, 0' % a(L(k) + i), wr=[(a(L(k) + i), ('L', 0, k, -1, i))])
        w = e('s_waitcnt vmcnt(0)', 'wait')
        w.meta['stamp'] = True
        if cfg.qa_lds:
            w.meta['vm_for'] = self.qa_last[0]
            if cfg.qa_init == 1:
                self.qa_last[1] = qa_pair(1)
            if cfg.qa_init == 2 and cfg.p2_early:
                self.qa_last[2] = qa_pair(2)
            for J in cfg.qplan[0]:
                e('s_mov_b32 %s, %d' % (s(sDOFF), J * 8192), 'salu')
                self.lastdma[J] = dma(J, (0, 1, 2, 3))
            e('v_add_u32 %s, %s, %s' % (v(T(7)), s(sSTG), v(vK)), wr=[v(T(7))])
            for b_ in range(2):
                for st in range(4):
                    d = self.RAW + 16 * b_ + 4 * st
                    e('ds_read_b128 %s, %s offset:%d' % (rng('v', d, 4), v(T(7)), 512 * b_ + 64 * st), 'ds',
                      rd=[v(T(7))], wr=[(v(d + i), ('QA', b_, st, i)) for i in range(4)])
        else:
            w.meta['vm_for'] = q0[-1]
            if cfg.qdepth < 6:
                self.q_load(cfg.qdepth, addq)
        b = 0
        for st in range(4):
            d = self.RAW + 16 * b + 4 * st
            tb = 8 * (st & 1)
            for i in range(4):
                e('v_lshlrev_b32 %s, 16, %s' % (v(tb + 2 * i), v(d + i)), rd=[(v(d + i), ('QA', b, st, i))],
                  wr=[v(tb + 2 * i)])
                e('v_and_b32 %s, %s, %s' % (v(tb + 2 * i + 1), s(sMASK), v(d + i)), rd=[v(d + i)],
                  wr=[v(tb + 2 * i + 1)])
            for i in range(4):
                e('v_pk_mul_f32 %s, %s, %s' % (rng('v', tb + 2 * i, 2), rng('v', tb + 2 * i, 2), rng('s', sC, 2)),
                  rd=regs('v', tb + 2 * i, 2), wr=regs('v', tb + 2 * i, 2))
            for i in range(4):
                e('v_cvt_pk_bf16_f32 %s, %s, %s' % (v(d + i), v(tb + 2 * i), v(tb + 2 * i + 1)),
                  rd=regs('v', tb + 2 * i, 2), wr=[v(d + i)])
            for i in range(4):
                e('v_accvgpr_write_b32 %s, %s' % (a(Q(b, st) + i), v(d + i)), rd=[v(d + i)],
                  wr=[(a(Q(b, st) + i), ('Q', 0, b, st, i))])
        e('s_barrier', 'bar')
        for u in range(2):
            for st in range(4):
                d = KF(u, st)
                e('ds_read_b128 %s, %s offset:%d' % (rng('a', d, 4), v(vK), 512 * u + 64 * st), 'ds',
                  rd=[v(vK)], wr=[(a(d + i), ('K', 0, u, st, i)) for i in range(4)])
        return o

    def early(self):
        cfg = self.cfg
        R, D = cfg.R, cfg.D
        firstop = {}
        chain = None
        qprev = None
        tiles = list(range(1, D))
        plan = {b_: cfg.tplan.get(b_, []) for b_ in range(1, 6)}
        if cfg.qa_lds:
            assert sorted(sum(cfg.qplan.values(), [])) == tiles
        else:
            assert sorted(sum(plan.values(), [])) == tiles
        doff = None
        self.m0chain = None
        rawrd = {}
        for b in range(1, 6):
            if cfg.qa_lds and b % 2 == 0:
                k = b // 2
                wq = Ins('s_waitcnt vmcnt(0)', 'wait')
                wq.meta['vm_for'] = self.qa_last[k]
                if cfg.start_stamps:
                    wq.meta['stamp'] = True
                lo_w = self.iQK[(b - 1, 0, 0)] - 1
                self.add(wq, lo=lo_w, hi=lo_w + 2,
                         deps=([(self.qa_last[k], 1)] if self.qa_last[k].deps else []))
                mark = len(self.flex)
                if k + 1 <= 2 and (k + 1) not in self.qa_last:
                    prev = None
                    for c in range(8 * (k + 1), 8 * (k + 1) + 8):
                        imm = 1024 * (c & 3)
                        txt = ''
                        if c % 4 == 0:
                            txt += 's_add_u32 s61, s60, %d\n    ' % (4096 * (c >> 2))
                        txt += 's_add_u32 m0, %s, %d\n    s_nop 0\n    ' % (s(sSTG), CH * c - imm)
                        txt += 'buffer_load_dwordx4 %s, %s, s61 offen offset:%d%s lds' % (
                            v(vDMA), rng('s', sQ, 4), imm, cfg.nt)
                        dm = Ins(txt, 'dma', [v(vDMA)], ['scc'])
                        dm.meta['composite'] = True
                        self.add(dm, lo=0, deps=[(wq, 0)] + ([(prev, 0)] if prev else []) +
                                 ([(self.m0chain, 1)] if self.m0chain else []))
                        prev = dm
                    self.m0chain = prev
                    self.qa_last[k + 1] = prev
                for J in cfg.qplan.get(k, []):
                    prev = None
                    for i in range(4):
                        off = (0, 32, VOFF, VOFF + (8 if cfg.vmap else 32))[i]
                        txt = 's_mov_b32 %s, %d\n    ' % (s(sDOFF), J * 8192) if i == 0 else ''
                        txt += 's_add_u32 m0, %s, %d\n    s_nop 0\n    ' % (s(sWPART), (J % R) * SLOT + off)
                        txt += 'buffer_load_dwordx4 %s, %s, %s offen%s%s lds' % (
                            v(vDMA), rng('s', sK if i < 2 else sV, 4), s(sDOFF), ' offset:1024' if i & 1 else '', cfg.nt)
                        dm = Ins(txt, 'dma', [v(vDMA)], ['scc'])
                        dm.meta['composite'] = True
                        dm.meta['tile'] = J
                        self.add(dm, lo=0, deps=[(wq, 0)] + ([(prev, 0)] if prev else []) +
                                 ([(self.m0chain, 0)] if self.m0chain else []))
                        prev = dm
                    self.m0chain = prev
                    self.lastdma[J] = prev
                for x in self.flex[mark:]:
                    x.meta['asap'] = True
                for b_ in (b, b + 1):
                    for st in range(4):
                        d = self.RAW + 16 * b_ + 4 * st
                        rd = Ins('ds_read_b128 %s, %s offset:%d' % (
                            rng('v', d, 4), v(T(7)), k * 8 * CH + 512 * (b_ & 1) + 64 * st), 'ds',
                            [v(T(7))], [(v(d + i), ('QA', b_, st, i)) for i in range(4)])
                        self.add(rd, lo=0, deps=[(wq, 0)])
                        rd.meta['asap'] = True
                        rawrd[(b_, st)] = rd
            first = None
            cmark = len(self.flex)
            for st in range(4):
                dl = self.iQK[(b, 0, st)] - 2
                for i in range(4):
                    r = self.RAW + 16 * b + 4 * st + i
                    tb = T(5 + (i & 1))
                    key = (b, st, i)
                    c = self.add(V_('v_lshlrev_b32 %s, 16, %s' % (v(tb), v(r)), [(v(r), ('QA', b, st, i))],
                                    [(v(tb), ('qb', key))]), lo=0,
                                 deps=[chain] + ([(rawrd[(b, st)], 4)] if (b, st) in rawrd else []))
                    if first is None:
                        first = c
                        chain0 = c
                    c = self.add(V_('v_and_b32 %s, %s, %s' % (v(r), s(sMASK), v(r)), [(v(r), ('QA', b, st, i)), s(sMASK)],
                                    [(v(r), ('qc', key))]), lo=0, deps=[c])
                    c = self.add(V_('v_mul_f32 %s, %s, %s' % (v(tb), s(sC), v(tb)), [(v(tb), ('qb', key)), s(sC)],
                                    [(v(tb), ('qd', key))]), lo=0, deps=[c])
                    c = self.add(V_('v_mul_f32 %s, %s, %s' % (v(r), s(sC), v(r)), [(v(r), ('qc', key)), s(sC)],
                                    [(v(r), ('qe', key))]), lo=0, deps=[c])
                    c = self.add(V_('v_cvt_pk_bf16_f32 %s, %s, %s' % (v(r), v(tb), v(r)),
                                    [(v(r), ('qe', key)), (v(tb), ('qd', key))], [(v(r), ('qf', key))]), lo=0, deps=[c])
                    c = self.add(V_('v_accvgpr_write_b32 %s, %s' % (a(Q(b, st) + i), v(r)), [(v(r), ('qf', key))],
                                    [(a(Q(b, st) + i), ('Q', 0, b, st, i))]), lo=0, hi=dl, deps=[c])
                    chain = c
            firstop[b] = first
            if cfg.qa_lds and cfg.conv_asap:
                for x in self.flex[cmark:]:
                    x.meta['asap'] = True
            if cfg.start_stamps and not cfg.qa_lds:
                first.meta['stamp'] = True
            mark = len(self.flex)
            if cfg.qa_lds:
                continue
            if b + cfg.qdepth <= 5:
                def addq(ins, dep, first=first):
                    nonlocal qprev
                    deps = [(first, 1)]
                    if dep is not None:
                        deps.append((dep, 1))
                    elif qprev is not None:
                        deps.append((qprev, 1))
                    self.add(ins, lo=0, hi=None, deps=deps, prio=3)
                    ins.hi = None
                    return ins
                ql = self.q_load(b + cfg.qdepth, addq)
                qprev = ql[-1]
            for J in plan[b]:
                doff = self.add(Ins('s_mov_b32 %s, %d' % (s(sDOFF), J * 8192), 'salu', [], [s(sDOFF)]), lo=0,
                                deps=[(first, 1)] + ([(self.m0chain, 1)] if self.m0chain else []))
                self.dma_group(J, 0, None, [(doff, 1)])
            for x in self.flex[mark:]:
                x.meta['asap'] = True
        self.qoff_last = qprev
        self.qc_chain = self.add(V_('v_add_u32 %s, s63, %s' % (v(T(5)), v(vDMA)), [v(vDMA)], [v(T(5))]), lo=0,
                                 hi=self.pstart[6 * cfg.loopA[0]] - 4, deps=[chain])
        hi_final = (self.pend_[3] - 2) if cfg.dma_early else (self.pstart[5] - 4)
        self.doff_final = self.add(Ins('s_mov_b32 %s, %d' % (s(sDOFF), D * 8192), 'salu', [], [s(sDOFF)]), lo=0,
                                   hi=hi_final, deps=[(self.m0chain, 1)] if self.m0chain else [])
        k = self.pstart[0] + 1
        w = Ins('s_waitcnt vmcnt(0)', 'wait')
        w.meta['vm_for_tile0'] = True
        self.add(w, lo=k, hi=k)
        self.bar_v0 = Ins('s_barrier', 'bar')
        self.add(self.bar_v0, lo=k + 1, hi=k + 1, deps=[(w, 1)])
        self.v0wait = w

    def slowpath(self):
        o = []
        e = o.append
        e('L_slow:')
        e('s_waitcnt vmcnt(0) lgkmcnt(0)')
        e('s_mul_i32 s52, %s, %d' % (s(sW), SLOT))
        e('v_and_b32 v1, 63, %s' % v(vDMA))
        e('v_lshrrev_b32 v162, 4, %s' % v(vDMA))
        e('v_and_b32 v162, 63, v162')
        e('v_and_b32 v2, 15, v162')
        e('v_lshrrev_b32 v3, 4, v162')
        e('v_and_b32 v4, 7, v2')
        e('v_mul_u32_u24 v160, %d, v4' % CH)
        e('v_lshrrev_b32 v4, 3, v2')
        e('v_lshl_add_u32 v160, v4, 8, v160')
        e('v_lshl_add_u32 v160, v3, 4, v160')
        e('v_add_u32 v160, s52, v160')
        e('v_bfe_u32 v4, v162, 2, 3')
        e('v_mul_u32_u24 v161, %d, v4' % CH)
        e('v_lshrrev_b32 v4, 5, v162')
        e('v_lshl_add_u32 v161, v4, 8, v161')
        e('v_and_b32 v4, 3, v162')
        e('v_lshl_add_u32 v161, v4, 3, v161')
        e('v_add_u32 v161, %d, v161' % VOFF)
        e('v_add_u32 v161, s52, v161')
        e('v_lshlrev_b32 v4, 4, v3')
        e('v_sub_u32 v163, %s, v4' % v(vQ))
        e('v_and_b32 v4, 1, v3')
        e('v_lshl_add_u32 v163, v4, 5, v163')
        e('v_lshrrev_b32 v4, 1, v3')
        e('v_lshl_add_u32 v163, v4, 4, v163')
        e('v_lshlrev_b32 v162, 4, v162')
        e('s_mov_b32 s53, 0')
        e('L_slow_head:')
        e('s_cmp_eq_u32 s53, 0')
        e('s_cselect_b64 s[54:55], %s, %s' % (rng('s', sFLAG[0], 2), rng('s', sFLAG[1], 2)))
        e('s_cmp_eq_u64 s[54:55], 0')
        e('s_cbranch_scc1 L_slow_next')
        e('s_mov_b32 s56, 0')
        e('L_slow_blk:')
        e('s_mul_i32 s57, s53, 98304')
        e('s_lshr_b32 s58, s56, 1')
        e('s_lshl_b32 s58, s58, 13')
        e('s_add_u32 s57, s57, s58')
        e('s_and_b32 s58, s56, 1')
        e('s_lshl_b32 s58, s58, 9')
        e('s_add_u32 s57, s57, s58')
        for st in range(4):
            e('buffer_load_dwordx4 v[%d:%d], %s, %s, s57 offen offset:%d' % (
                4 * st, 4 * st + 3, v(vQ), rng('s', sQ, 4), 64 * st))
        e('s_waitcnt vmcnt(0)')
        for i in range(16):
            e('v_lshlrev_b32 v42, 16, v%d' % i)
            e('v_and_b32 v43, %s, v%d' % (s(sMASK), i))
            e('v_mul_f32 v42, %s, v42' % s(sC))
            e('v_mul_f32 v43, %s, v43' % s(sC))
            e('v_cvt_pk_bf16_f32 v%d, v42, v43' % (16 + i))
        e('v_mov_b32 v32, 0xff800000')
        e('v_mov_b32 v33, 0')
        for i in range(32):
            e('v_mov_b32 v%d, 0' % (64 + i))
        e('s_mul_i32 s59, s53, 262144')
        e('s_mov_b32 s60, 0')
        e('L_slow_tile:')
        for c in range(8):
            for which, srd in ((0, sK), (VOFF, sV)):
                e('s_add_u32 m0, s52, %d' % (which + c * CH))
                e('s_add_u32 s61, s59, %d' % (c * 1024))
                e('buffer_load_dwordx4 v162, %s, s61 offen lds' % rng('s', srd, 4))
        e('s_waitcnt vmcnt(0)')
        for u in range(2):
            for st in range(4):
                d = 96 + 16 * u + 4 * st
                e('ds_read_b128 v[%d:%d], v160 offset:%d' % (d, d + 3, 512 * u + 64 * st))
        e('s_waitcnt lgkmcnt(0)')
        for t in range(8):
            for pp in range(2):
                d = 128 + 4 * t + 2 * pp
                e('ds_read_b64_tr_b16 v[%d:%d], v161 offset:%d' % (d, d + 1, 512 * pp + 32 * t))
            if t == 3:
                e('s_waitcnt lgkmcnt(0)')
        e('s_waitcnt lgkmcnt(0)')
        for u in range(2):
            for st in range(4):
                d = 34 + 4 * u
                k = 96 + 16 * u + 4 * st
                e('v_mfma_f32_16x16x32_bf16 v[%d:%d], v[%d:%d], v[%d:%d], %s' % (
                    d, d + 3, k, k + 3, 16 + 4 * st, 19 + 4 * st, '0' if st == 0 else 'v[%d:%d]' % (d, d + 3)))
        e('s_nop 15')
        e('v_max3_f32 v42, v34, v35, v36')
        e('v_max3_f32 v42, v42, v37, v38')
        e('v_max3_f32 v42, v42, v39, v40')
        e('v_max3_f32 v42, v42, v41, v32')
        e('v_mov_b32 v43, v42')
        e('s_nop 2')
        e('v_permlane16_swap_b32 v42, v43')
        e('s_nop 2')
        e('v_max_f32 v42, v42, v43')
        e('v_mov_b32 v43, v42')
        e('s_nop 2')
        e('v_permlane32_swap_b32 v42, v43')
        e('s_nop 2')
        e('v_max_f32 v42, v42, v43')
        e('v_sub_f32 v44, v32, v42')
        e('v_exp_f32 v44, v44')
        e('v_mov_b32 v32, v42')
        for r in range(8):
            e('v_sub_f32 v%d, v%d, v42' % (34 + r, 34 + r))
        for r in range(8):
            e('v_exp_f32 v%d, v%d' % (34 + r, 34 + r))
        e('s_nop 1')
        e('v_mul_f32 v33, v33, v44')
        for i in range(4):
            e('v_cvt_pk_bf16_f32 v%d, v%d, v%d' % (48 + i, 34 + 2 * i, 35 + 2 * i))
        for i in range(4):
            e('v_lshlrev_b32 v45, 16, v%d' % (48 + i))
            e('v_and_b32 v46, %s, v%d' % (s(sMASK), 48 + i))
            e('v_add_f32 v33, v33, v45')
            e('v_add_f32 v33, v33, v46')
        for i in range(32):
            e('v_mul_f32 v%d, v%d, v44' % (64 + i, 64 + i))
        e('s_nop 2')
        for t in range(8):
            d = 64 + 4 * t
            e('v_mfma_f32_16x16x32_bf16 v[%d:%d], v[%d:%d], v[48:51], v[%d:%d]' % (
                d, d + 3, 128 + 4 * t, 131 + 4 * t, d, d + 3))
        e('s_nop 15')
        e('s_add_u32 s59, s59, 8192')
        e('s_add_u32 s60, s60, 1')
        e('s_cmp_lt_u32 s60, 32')
        e('s_cbranch_scc1 L_slow_tile')
        e('v_mov_b32 v43, v33')
        e('s_nop 2')
        e('v_permlane16_swap_b32 v33, v43')
        e('s_nop 2')
        e('v_add_f32 v33, v33, v43')
        e('v_mov_b32 v43, v33')
        e('s_nop 2')
        e('v_permlane32_swap_b32 v33, v43')
        e('s_nop 2')
        e('v_add_f32 v33, v33, v43')
        e('v_rcp_f32 v33, v33')
        e('s_nop 1')
        for i in range(32):
            e('v_mul_f32 v%d, v%d, v33' % (64 + i, 64 + i))
        for tau in range(4):
            b0 = 64 + 8 * tau
            e('v_cvt_pk_bf16_f32 v%d, v%d, v%d' % (b0, b0, b0 + 1))
            e('v_cvt_pk_bf16_f32 v%d, v%d, v%d' % (b0 + 1, b0 + 2, b0 + 3))
            e('v_cvt_pk_bf16_f32 v%d, v%d, v%d' % (b0 + 2, b0 + 4, b0 + 5))
            e('v_cvt_pk_bf16_f32 v%d, v%d, v%d' % (b0 + 3, b0 + 6, b0 + 7))
            e('s_nop 2')
            e('v_permlane16_swap_b32 v%d, v%d' % (b0, b0 + 2))
            e('v_permlane16_swap_b32 v%d, v%d' % (b0 + 1, b0 + 3))
            e('s_nop 2')
            e('buffer_store_dwordx4 v[%d:%d], %s, %s, s57 offen offset:%d' % (
                b0, b0 + 3, 'v163', rng('s', sO, 4), 64 * tau))
        e('s_waitcnt vmcnt(0)')
        e('s_add_u32 s56, s56, 1')
        e('s_cmp_lt_u32 s56, 6')
        e('s_cbranch_scc1 L_slow_blk')
        e('L_slow_next:')
        e('s_add_u32 s53, s53, 1')
        e('s_cmp_lt_u32 s53, 2')
        e('s_cbranch_scc1 L_slow_head')
        e('s_endpgm')
        return o

    def build(self):
        cfg = self.cfg
        self.lastdma = {}
        self.qs_chain = self.od_chain = self.od_st = None
        self.build_backbone()
        self.reserve_wait_slots()
        pro = self.prologue()
        self.early()
        self.v0wait.meta['vm_for'] = self.lastdma[0]
        self.softmax()
        self.kv_stream()
        self.qb()
        self.epilogue(0)
        self.epilogue(1)
        for J, w in self.barwait.items():
            tw = w.meta['tile_wait']
            if cfg.no_dma and self.inloop(J):
                w.text = 's_nop 0'
                w.kind = 'nop'
            elif tw == 'all':
                w.meta['vm_for_last_dma'] = True
            elif tw in self.lastdma:
                w.meta['vm_for'] = self.lastdma[tw]
            else:
                assert cfg.no_dma
                w.text = 's_nop 0'
                w.kind = 'nop'
        gaps = schedule(self.bb, self.flex)
        body = linearize(self.bb, gaps)
        prog0 = pro + body
        lastd = None
        for ins in prog0:
            if ins.kind == 'dma':
                lastd = ins
            if ins.meta.get('vm_for_last_dma'):
                ins.meta['vm_for'] = lastd
        insert_waits(prog0)
        for l0, l1 in (cfg.loopA, cfg.loopB):
            for ph in range(cfg.U):
                ws = [self.barwait[J] for J in range(l0 + ph, l1, cfg.U) if self.barwait[J].kind == 'wait']
                if ws:
                    cap = min(w.meta['vm'] for w in ws)
                    for w in ws:
                        w.meta['vm_cap'] = cap
        if cfg.xp:
            def drop(i):
                t = i.text
                if 'd' in cfg.xp and i.kind == 'dma' and rng('s', sQ, 4) in t and s(sQT2) in t: return True
                if 'w' in cfg.xp and t.startswith('ds_write_b128 %s' % v(T(5))): return True
                if 'v' in cfg.xp and i.kind == 'valu' and any(r in (v(T(k)) for k in range(5)) for r in i.wrregs()) and i.gap is not None and i.gap > self.pstart[12] and i.gap < self.pstart[174]: return True
                if 's' in cfg.xp and i.kind == 'vstore' and s(sOSO) in t: return True
                if 'r' in cfg.xp and t.startswith('ds_read_b128 v') and v(T(8)) in t: return True
                return False
            prog0 = [i for i in prog0 if not drop(i)]
            insert_waits(prog0)
            for l0, l1 in (cfg.loopA, cfg.loopB):
                for ph in range(cfg.U):
                    ws = [self.barwait[J] for J in range(l0 + ph, l1, cfg.U) if self.barwait[J].kind == 'wait']
                    for w in ws:
                        w.meta.pop('vm_cap', None)
            insert_waits(prog0)
            for l0, l1 in (cfg.loopA, cfg.loopB):
                for ph in range(cfg.U):
                    ws = [self.barwait[J] for J in range(l0 + ph, l1, cfg.U) if self.barwait[J].kind == 'wait']
                    cap = min(w.meta['vm'] for w in ws)
                    for w in ws:
                        w.meta['vm_cap'] = cap
        prog = insert_waits(prog0)
        if cfg.pk_tail:
            prog = self.pack_tail_muls(prog)
        prog, nn = fix_hazards(prog, verbose=cfg.debug)
        errs = check_tags(prog) if not cfg.xp else 0
        assert errs == 0, errs
        self.check_m0(prog)
        self.gaps = gaps
        self.prog = prog
        self.nnops = nn
        return prog

    def pack_tail_muls(self, prog):
        import re
        last = max(i for i, x in enumerate(prog) if x.kind == 'mfma')
        out = prog[:last + 1]
        rest = prog[last + 1:]
        i = 0
        pat = re.compile(r'v_mul_f32 v(\d+), v(\d+), v(\d+)$')
        while i < len(rest):
            x = rest[i]
            m = pat.match(x.text)
            if m and i + 1 < len(rest):
                m2 = pat.match(rest[i + 1].text)
                d, r, sx = int(m.group(1)), int(m.group(2)), int(m.group(3))
                if m2 and d == sx and d % 2 == 0 and int(m2.group(1)) == d + 1 and int(m2.group(3)) == d + 1 \
                        and int(m2.group(2)) == r:
                    base = r & ~1
                    sel = 'op_sel_hi:[1,0]' if r % 2 == 0 else 'op_sel:[0,1] op_sel_hi:[1,1]'
                    y = rest[i + 1]
                    p = Ins('v_pk_mul_f32 v[%d:%d], v[%d:%d], v[%d:%d] %s' % (d, d + 1, d, d + 1, base, base + 1, sel),
                            'valu', x.rd + y.rd, x.wr + y.wr)
                    out.append(p)
                    i += 2
                    continue
            out.append(x)
            i += 1
        return out

    def check_m0(self, prog):
        lastm0 = None
        used = set()
        for ins in prog:
            if 'm0' in ins.wrregs():
                lastm0 = ins
            if ins.meta.get('composite'):
                lastm0 = None
                continue
            if ins.kind == 'dma':
                assert lastm0 is not None and lastm0.uid not in used, ('M0 reuse', ins.text)
                for d, _ in ins.deps:
                    if 'm0' in d.wrregs():
                        assert d is lastm0, ('M0 clobbered', ins.text)
                used.add(lastm0.uid)

    def roll(self):
        cfg = self.cfg
        prog = self.prog
        segs = []
        cur = []
        names = ['pre']
        for ins in prog:
            cur.append(ins)
            if ins.kind == 'mfma' and 'tile_start' in ins.meta:
                segs.append(cur)
                cur = []
                names.append(ins.meta['tile_start'])
        segs.append(cur)
        seg = dict(zip(names, segs))
        txt = lambda J: [i.text for i in seg[J]]
        U = cfg.U
        loops = [cfg.loopA, cfg.loopB]
        for l0, l1 in loops:
            assert (l1 - l0) % U == 0, (l0, l1)
            for J in range(l0, l1):
                ref = txt(l0 + (J - l0) % U)
                if txt(J) != ref:
                    x, y = txt(J), ref
                    for i in range(min(len(x), len(y))):
                        if x[i] != y[i]:
                            print('tile', J, 'differs at', i, x[i], '|', y[i])
                            break
                    raise Exception('tile %d not periodic' % J)
        out = []
        nst = [0]

        def stamp(real=False, late=False):
            if not cfg.stamps or (late and cfg.start_stamps):
                return
            k = 64 + 2 * nst[0]
            nst[0] += 1
            out.append('    s_waitcnt lgkmcnt(0)')
            out.append('    %s s[%d:%d]' % ('s_memrealtime' if real else 's_memtime', k, k + 1))
            out.append('    s_waitcnt lgkmcnt(0)')

        def fmt(i):
            if cfg.bar_stamps and i.meta.get('tile_wait') is not None and i.kind == 'wait':
                return ['    s_waitcnt lgkmcnt(0)', '    s_memtime s[96:97]', '    s_waitcnt lgkmcnt(0)', '    ' + i.text,
                        '    s_memtime s[98:99]', '    s_waitcnt lgkmcnt(0)',
                        '    s_sub_u32 s98, s98, s96', '    s_add_u32 s100, s100, s98']
            if cfg.bar_stamps and i.kind == 'bar' and 'assert_lg_done' in i.meta:
                return ['    s_memtime s[96:97]', '    s_waitcnt lgkmcnt(0)', '    s_barrier',
                        '    s_memtime s[98:99]', '    s_waitcnt lgkmcnt(0)',
                        '    s_sub_u32 s98, s98, s96', '    s_add_u32 s101, s101, s98']
            return [i.text if i.kind == 'label' else '    ' + i.text]

        def emit(J):
            for i in seg[J]:
                if cfg.stamps and i.meta.get('stamp'):
                    stamp()
                out.extend(fmt(i))
        stamp(True)
        stamp()
        if cfg.bar_stamps:
            out.append('    s_mov_b32 s100, 0')
            out.append('    s_mov_b32 s101, 0')
        emit('pre')
        J = 1
        for li, (l0, l1) in enumerate(loops):
            while J < l0:
                emit(J)
                J += 1
            stamp(late=li > 0)
            out.append('    s_mov_b32 %s, %d' % (s(sCNT), (l1 - l0) // U - 1))
            out.append('L_loop%d:' % li)
            for r in range(U):
                sg = seg[l0 + r]
                lines = [fmt(i) for i in sg]
                if r == U - 1:
                    idx = [k for k, i in enumerate(sg) if i.kind == 'mfma']
                    k = idx[-2]
                    for i in sg[k + 1:]:
                        assert 'scc' not in i.wrregs(), i.text
                    lines.insert(k + 1, ['    s_sub_u32 %s, %s, 1' % (s(sCNT), s(sCNT))])
                    lines.append(['    s_cbranch_scc0 L_loop%d' % li])
                for x in lines:
                    out.extend(x)
            stamp(late=True)
            J = l1
        while J < NT:
            emit(J)
            J += 1
        stamp()
        if cfg.stamps:
            out.append('    s_waitcnt vmcnt(0)')
            stamp()
            stamp(True)
            if cfg.dbg_wg is not None:
                n_ = nst[0]
                out.append('    s_cmp_lg_u32 s2, %d' % cfg.dbg_wg)
                out.append('    s_cbranch_scc1 L_nodbg')
                out.append('    s_cmp_lg_u32 %s, 0' % s(sW))
                out.append('    s_cbranch_scc1 L_nodbg')
                out.append('    s_load_dwordx2 s[44:45], s[0:1], 32')
                out.append('    s_waitcnt lgkmcnt(0)')
                out.append('    s_and_b32 s45, s45, 0xffff')
                out.append('    s_mov_b32 s46, 256')
                out.append('    s_mov_b32 s47, 0x20000')
                out.append('    s_mov_b64 s[32:33], exec')
                out.append('    s_mov_b64 exec, 1')
                out.append('    v_mov_b32 v1, 0')
                vals = [('s%d' % (64 + 2 * (n_ - 1)), 's64')] + [('s%d' % (64 + 2 * (n_ - 2)), 's66')]
                vals += [('s%d' % (64 + 2 * (k + 1)), 's%d' % (64 + 2 * k)) for k in range(1, n_ - 2)]
                for k, (x, y) in enumerate(vals):
                    out.append('    s_sub_u32 s3, %s, %s' % (x, y))
                    out.append('    v_mov_b32 v0, s3')
                    out.append('    buffer_store_dword v0, v1, s[44:47], 0 offen offset:%d' % (4 * k))
                    out.append('    s_waitcnt vmcnt(0)')
                out.append('    s_mov_b64 exec, s[32:33]')
                out.append('L_nodbg:')
            out.append('    s_load_dwordx2 s[44:45], s[0:1], 40')
            out.append('    s_waitcnt lgkmcnt(0)')
            out.append('    s_and_b32 s45, s45, 0xffff')
            out.append('    s_mov_b32 s46, 0x100000')
            out.append('    s_mov_b32 s47, 0x20000')
            out.append('    s_lshl_b32 s3, s2, 2')
            out.append('    s_add_u32 s3, s3, %s' % s(sW))
            out.append('    s_lshl_b32 s3, s3, 7')
            extra = [100, 101] if cfg.bar_stamps else []
            for k, sr in enumerate([64 + 2 * k for k in range(nst[0])] + extra):
                out.append('    v_mov_b32 v0, s%d' % sr)
                out.append('    v_mov_b32 v1, s3')
                out.append('    s_mov_b64 s[32:33], exec')
                out.append('    s_mov_b64 exec, 1')
                out.append('    buffer_store_dword v0, v1, s[44:47], 0 offen offset:%d' % (4 * k))
                out.append('    s_waitcnt vmcnt(0)')
                out.append('    s_mov_b64 exec, s[32:33]')
        out.append('    s_or_b64 s[54:55], %s, %s' % (rng('s', sFLAG[0], 2), rng('s', sFLAG[1], 2)))
        out.append('    s_cbranch_scc1 L_slow')
        out.append('L_done:')
        out.append('    s_endpgm')
        out.append('L_code_end:')
        for l in self.slowpath():
            out.append(l if l.endswith(':') else '    ' + l)
        return out, seg


HEADER = """; Kernarg layout for this problem (48 bytes, ptrs only, base s[0:1]):
; @launch grid=(256,1,1) block=(256,1,1) lds=%d
.amdgcn_target "amdgcn-amd-amdhsa--gfx950"
.text
.globl NAME_kernel
.p2align 8
.type NAME_kernel,@function
NAME_kernel:
"""
FOOTER = """
.section .rodata,"a"
.p2align 6
.amdhsa_kernel NAME_kernel
  .amdhsa_next_free_vgpr 512
  .amdhsa_next_free_sgpr 102
  .amdhsa_accum_offset 256
  .amdhsa_group_segment_fixed_size 0
  .amdhsa_kernarg_size 48
  .amdhsa_user_sgpr_count 2
  .amdhsa_user_sgpr_kernarg_segment_ptr 1
  .amdhsa_system_sgpr_workgroup_id_x 1
.end_amdhsa_kernel
"""


def generate(cfg):
    g = Gen(cfg)
    g.build()
    lines, seg = g.roll()
    lds = LDS_BYTES
    src = (HEADER % lds).replace('NAME', NAME) + '\n'.join(lines) + '\n' + FOOTER.replace('NAME', NAME)
    return src, g, seg


if __name__ == '__main__':
    cfg = Cfg()
    out = sys.argv[1] if len(sys.argv) > 1 else 'cdna_kernels/%s.s' % NAME
    for kv in sys.argv[2:]:
        k, val = kv.split('=')
        setattr(cfg, k, eval(val))
    src, g, seg = generate(cfg)
    open(out, 'w').write(src)
    print('nops inserted', g.nnops, 'total est cycles', est_cycles(g.prog), 'lines', src.count('\n'))
    print(' '.join('%s:%d' % (J, est_cycles(seg[J])) for J in seg))
```

```python
import sys, os, struct
from sched import *

NAME = 'standalone__gqa_softmax__near_ridge'


class Cfg:
    R = 3
    D = 3
    U = 3
    LAT = 7
    loopA = (2, 29)
    loopB = (34, 61)
    thr = 0x4b800000
    debug = False
    stamps = False
    nt = ' nt'
    st_mod = ' nt sc1'
    st_mod2 = ' nt sc1'
    no_dma = False
    no_qb = False
    no_drain = False
    pair_cvt = True
    oswz = True
    stamp_tiles = ()
    st_pace = 16
    pk_dumps = True
    final_T = 0
    code_pf = True
    p2_early = False
    conv_asap = True
    qa_lds = False
    qa_init = 2
    qplan = {0: [], 1: [1], 2: [2]}
    pk_tail = True
    tail_lds = True
    fullline = True
    vmap = True
    exp_odd = True
    order = 'g44'
    qdepth = 2
    tplan = {1: [1], 4: [2]}
    v0_late = False
    start_stamps = False
    dbg_wg = None
    xp = ''
    bar_stamps = False
    dma_early = True
    qrd_lat = 8


SLOT = 16896
KOFF, VOFF = 0, 8448
CH = 1056
NT = 64
NS = NT * 6
DUMMY = 3 * SLOT
STAGE0 = DUMMY + 3 * CH
STAGEW = 24 * CH
LDS_BYTES = STAGE0 + 4 * STAGEW
C_SCALE = 1.4426950408889634 * (128 ** -0.5)


def f32bits(x):
    return struct.unpack('<I', struct.pack('<f', x))[0]


def O(b, t): return 32 * b + 4 * t
def S(buf, u): return 192 + 8 * buf + 4 * u
def P(buf): return 208 + 4 * buf
def CI(b): return 216 + 4 * b
vIDX, vK, vV, vDMA = 240, 241, 242, 243
def T(i): return 244 + i
vQ, vO = T(10), T(11)
def Q(b, s): return 16 * b + 4 * s
def KF(u, s): return 96 + 16 * u + 4 * s
def VF(t): return 128 + 4 * t
def L(k): return 160 + 4 * k
SA = 172
def QR(b, s): return 176 + 16 * b + 4 * s
def qoff(b): return 8192 * (b >> 1) + 512 * (b & 1)

sK, sV, sQ, sO = 4, 8, 12, 16
sDOFF, sDLDS, sSLOT, sDELTA, sWPART, sTMP, sW, sIDX = 20, 21, 22, 23, 24, 25, 26, 27
sC, sTHR, sMASK = 28, 30, 31
sFLAG = [34, 36]
sCNT, sPHASE, sQOFF, sOOFF = 38, 39, 40, 41
sWPARTV = 21
sSTG, sQI, sQREL, sQM, sQSO, sQT, sQT2 = 42, 44, 45, 46, 47, 48, 49
sOI, sOSO, sOT, sOT2, sOINC = 50, 51, 32, 33, 62


def v(n): return 'v%d' % n
def a(n): return 'a%d' % n
def s(n): return 's%d' % n


def V_(text, rd=(), wr=(), kind='valu'):
    return Ins(text, kind, rd, wr)


def S_(text, rd=(), wr=()):
    return Ins(text, 'salu', rd, list(wr) + ['scc'])


class Gen:
    def __init__(self, cfg):
        self.cfg = cfg
        self.bb = []
        self.flex = []
        self.iQK = {}
        self.iPV = {}
        self.iZ = {}
        self.pos = {}
        self.pstart = {}
        self.pend_ = {}

    def slot(self, n):
        Tf = self.cfg.final_T
        n0 = 6 * (NT - Tf)
        if Tf == 0 or n < n0:
            return n // 6, n % 6
        m = n - n0
        return NT - Tf + (m % (2 * Tf)) // 2, 2 * (m // (2 * Tf)) + (m & 1)

    def lds_base(self, J):
        if self.cfg.final_T == 3 and J == NT - 1:
            return STAGE0
        return (J % self.cfg.R) * SLOT

    def mk_qk(self, n, u, st):
        J, b = self.slot(n)
        j = J % 32
        d = S(n & 1, u)
        h = n // 192
        rd = [(a(KF(u, st) + i), ('K', J, u, st, i)) for i in range(4)]
        rd += [(a(Q(b, st) + i), ('Q', h, b, st, i)) for i in range(4)]
        if st == 0:
            if j == 0:
                c = '0'
                srcc = []
            else:
                c = rng('v', CI(b), 4)
                srcc = regs('v', CI(b), 4)
                rd += [(r, ('CI', h, b)) for r in srcc]
        else:
            c = rng('v', d, 4)
            srcc = regs('v', d, 4)
            rd += [(v(d + i), ('Sp', n, u, st - 1, i)) for i in range(4)]
        tag = 'Sp' if st < 3 else 'S'
        wr = [(v(d + i), (tag, n, u, st, i) if st < 3 else ('S', n, u, i)) for i in range(4)]
        m = Ins('v_mfma_f32_16x16x32_bf16 %s, %s, %s, %s' % (rng('v', d, 4), rng('a', KF(u, st), 4),
                                                          rng('a', Q(b, st), 4), c),
                'mfma', rd, wr, srcc=srcc)
        m.meta['cls'] = 'xdl'
        return m

    def mk_pv(self, n, t):
        J, b = self.slot(n)
        j = J % 32
        h = n // 192
        d = O(b, t)
        rd = [(a(VF(t) + i), ('V', J, t, i)) for i in range(4)]
        rd += [(v(P(n & 1) + i), ('P', n, i)) for i in range(4)]
        if j == 0:
            c = '0'
            srcc = []
        else:
            c = rng('v', d, 4)
            srcc = regs('v', d, 4)
            rd += [(v(d + i), ('O', h, b, t, j - 1, i)) for i in range(4)]
        wr = [(v(d + i), ('O', h, b, t, j, i)) for i in range(4)]
        m = Ins('v_mfma_f32_16x16x32_bf16 %s, %s, %s, %s' % (rng('v', d, 4), rng('a', VF(t), 4),
                                                          rng('v', P(n & 1), 4), c),
                'mfma', rd, wr, srcc=srcc)
        m.meta['cls'] = 'xdl'
        return m

    def mk_z(self, p):
        n0 = p - 2
        h, j, k = n0 // 192, self.slot(n0)[0] % 32, self.slot(n0)[1] // 2
        d = L(k)
        rd = [(v(P(0) + i), ('P', n0, i)) for i in range(4)] + [(v(P(1) + i), ('P', n0 + 1, i)) for i in range(4)]
        rd += [(a(SA + i), 'SA') for i in range(4)] + [(v(vIDX), 'IDX')]
        rd += [(a(d + i), ('L', h, k, j - 1, i)) for i in range(4)]
        wr = [(a(d + i), ('L', h, k, j, i)) for i in range(4)]
        m = Ins('v_smfmac_f32_16x16x64_bf16 %s, %s, %s, %s' % (rng('a', d, 4), rng('a', SA, 4),
                                                            rng('v', P(0), 8), v(vIDX)),
                'mfma', rd, wr, srcc=regs('a', d, 4))
        m.meta['cls'] = 'smf'
        return m

    def build_backbone(self):
        bb = self.bb
        for p in range(-1, NS + 1):
            qk = p + 1 if p + 1 < NS else None
            pv = p - 1 if 0 <= p - 1 < NS else None
            z = p >= 2 and p % 2 == 0
            self.pstart[p] = len(bb)
            seq = []
            qs = [('q', i >> 2, i & 3) for i in range(8)] if qk is not None else []
            ps = [('p', i) for i in range(8)] if pv is not None else []
            if self.cfg.order == 'alt' or not qs or not ps:
                for i in range(8):
                    seq += qs[i:i + 1] + ps[i:i + 1]
            elif self.cfg.order == 'g44':
                seq = qs[:4] + ps[:4] + qs[4:] + ps[4:]
            elif self.cfg.order == 'g88':
                seq = qs + ps
            zfirst = self.cfg.order != 'alt'
            zdone = not z
            npos = 0
            for it in seq:
                if it[0] == 'p' and not zdone and zfirst and qs:
                    self.iZ[p] = len(bb)
                    bb.append(self.mk_z(p))
                    zdone = True
                if it[0] == 'q':
                    m = self.mk_qk(qk, it[1], it[2])
                    self.iQK[(qk, it[1], it[2])] = len(bb)
                else:
                    m = self.mk_pv(pv, it[1])
                    self.iPV[(pv, it[1])] = len(bb)
                self.pos[(p, npos)] = len(bb)
                npos += 1
                bb.append(m)
                if it[0] == 'p' and not zdone:
                    self.iZ[p] = len(bb)
                    bb.append(self.mk_z(p))
                    zdone = True
            self.pend_[p] = len(bb) - 1
        for J in range(1, NT):
            k = self.pstart[6 * J]
            bb[k].meta['tile_start'] = J
            bb[k].meta['reserve_scal'] = True
            bb[k - 1].meta['reserve_scal'] = True

    def reserve_wait_slots(self):
        for J in range(1, NT):
            for u in range(2):
                for st in range(4):
                    self.bb[self.iQK[(6 * J, u, st)] - 1].meta['reserve_scal'] = True
        for J in range(0, NT):
            for t in range(8):
                self.bb[self.iPV[(6 * J, t)] - 1].meta['reserve_scal'] = True
        for n in range(6 * (NT - self.cfg.final_T) + 1, NS):
            if self.cfg.final_T and self.slot(n)[0] != self.slot(n - 1)[0]:
                for u in range(2):
                    for st in range(4):
                        self.bb[self.iQK[(n, u, st)] - 1].meta['reserve_scal'] = True
                for t in range(8):
                    self.bb[self.iPV[(n, t)] - 1].meta['reserve_scal'] = True

    def add(self, ins, lo=None, hi=None, deps=(), prio=0):
        ins.lo, ins.hi, ins.prio = lo, hi, prio
        ins.deps = [d if isinstance(d, tuple) else (d, 0) for d in deps if d is not None]
        self.flex.append(ins)
        return ins

    def softmax(self):
        lastcvt = {}
        for n in range(NS):
            j, b, h = self.slot(n)[0] % 32, self.slot(n)[1], n // 192
            buf = n & 1
            sr = [S(buf, u) + i for u in range(2) for i in range(4)]
            firstpv = self.iPV[(n, 0)]
            normal = j != 0 and (n, 15) in self.pos and n + 2 < NS
            stag = [('S', n, r >> 2, r & 3) for r in range(8)]
            pre = None
            if j == 0:
                t0, t1 = T(0), T(1)
                lo0 = self.iQK[(n, 0, 3)] + 4
                lo1 = self.iQK[(n, 1, 3)] + 4
                prevuse = self.t0_last if hasattr(self, 't0_last') else None
                c = self.add(V_('v_max3_f32 %s, %s, %s, %s' % (v(t0), v(sr[0]), v(sr[1]), v(sr[2])),
                                [(v(sr[i]), stag[i]) for i in range(3)], [(v(t0), ('m0', n))]), lo=lo0,
                             deps=[prevuse])
                c = self.add(V_('v_max_f32 %s, %s, %s' % (v(t0), v(t0), v(sr[3])),
                                [(v(t0), ('m0', n)), (v(sr[3]), stag[3])], [(v(t0), ('m1', n))]), lo=lo0, deps=[c])
                c = self.add(V_('v_max3_f32 %s, %s, %s, %s' % (v(t0), v(t0), v(sr[4]), v(sr[5])),
                                [(v(t0), ('m1', n)), (v(sr[4]), stag[4]), (v(sr[5]), stag[5])],
                                [(v(t0), ('m2', n))]), lo=lo1, deps=[c])
                c = self.add(V_('v_max3_f32 %s, %s, %s, %s' % (v(t0), v(t0), v(sr[6]), v(sr[7])),
                                [(v(t0), ('m2', n)), (v(sr[6]), stag[6]), (v(sr[7]), stag[7])],
                                [(v(t0), ('m3', n))]), lo=lo1, deps=[c])
                c = self.add(V_('v_mov_b32 %s, %s' % (v(t1), v(t0)), [(v(t0), ('m3', n))], [(v(t1), ('m3c', n))]),
                             deps=[c], lo=lo1)
                c = self.add(V_('v_permlane16_swap_b32 %s, %s' % (v(t0), v(t1)),
                                [(v(t0), ('m3', n)), (v(t1), ('m3c', n))],
                                [(v(t0), ('m4a', n)), (v(t1), ('m4b', n))], kind='perm'), deps=[(c, 1)], lo=lo1)
                c = self.add(V_('v_max_f32 %s, %s, %s' % (v(t0), v(t0), v(t1)),
                                [(v(t0), ('m4a', n)), (v(t1), ('m4b', n))], [(v(t0), ('m5', n))]), deps=[c], lo=lo1)
                c = self.add(V_('v_mov_b32 %s, %s' % (v(t1), v(t0)), [(v(t0), ('m5', n))], [(v(t1), ('m5c', n))]),
                             deps=[c], lo=lo1)
                c = self.add(V_('v_permlane32_swap_b32 %s, %s' % (v(t0), v(t1)),
                                [(v(t0), ('m5', n)), (v(t1), ('m5c', n))],
                                [(v(t0), ('m6a', n)), (v(t1), ('m6b', n))], kind='perm'), deps=[(c, 1)], lo=lo1)
                cis = []
                for i in range(4):
                    c = self.add(V_('v_min_f32 %s, -%s, -%s' % (v(CI(b) + i), v(t0), v(t1)),
                                    [(v(t0), ('m6a', n)), (v(t1), ('m6b', n))], [(v(CI(b) + i), ('CI', h, b))]),
                                 deps=[c], lo=lo1)
                    cis.append(c)
                self.t0_last = cis[-1]
                for cc in cis:
                    cc.hi = self.iQK[(n + 6, 0, 0)] - 2
                pre = []
                for r in range(8):
                    c = self.add(V_('v_add_f32 %s, %s, %s' % (v(sr[r]), v(CI(b)), v(sr[r])),
                                    [(v(CI(b)), ('CI', h, b)), (v(sr[r]), stag[r])], [(v(sr[r]), ('Ss', n, r))]),
                                 deps=[cis[0]], lo=lo1)
                    pre.append(c)
                stag = [('Ss', n, r) for r in range(8)]
            exps = []
            for r in range(8):
                e = V_('v_exp_f32 %s, %s' % (v(sr[r]), v(sr[r])), [(v(sr[r]), stag[r])],
                       [(v(sr[r]), ('E', n, r))], kind='trans')
                if normal:
                    g = self.pos[(n, 2 * r + (1 if self.cfg.exp_odd else 0))]
                    self.add(e, lo=g, hi=g, prio=5)
                else:
                    lo = self.iQK[(n, r >> 2, 3)] + 4
                    self.add(e, lo=lo, deps=[pre[r]] if pre else [])
                exps.append(e)
            for i in range(4):
                c = V_('v_cvt_pk_bf16_f32 %s, %s, %s' % (v(P(buf) + i), v(sr[2 * i]), v(sr[2 * i + 1])),
                       [(v(sr[2 * i]), ('E', n, 2 * i)), (v(sr[2 * i + 1]), ('E', n, 2 * i + 1))],
                       [(v(P(buf) + i), ('P', n, i))])
                lo = 0
                if n >= 2:
                    lo = self.iPV[(n - 2, 7)]
                    zp = n if n % 2 == 0 else n - 1
                    zp = (n - 2) - ((n - 2) % 2) + 2
                    lo = max(lo, self.iZ[zp])
                if normal:
                    if self.cfg.exp_odd:
                        g = self.pos[(n, 8)] if i < 2 else self.pstart[n + 1]
                    else:
                        g = self.pos[(n, (8 * (i >> 1) + 7) if self.cfg.pair_cvt else 4 * i + 3)]
                    assert g >= lo
                    self.add(c, lo=g, hi=g, deps=[(exps[2 * i], 1), (exps[2 * i + 1], 1)], prio=5)
                else:
                    hi = firstpv - 2
                    if n + 2 < NS:
                        hi = min(hi, self.iQK[(n + 2, i >> 1, 0)] - 1)
                    self.add(c, lo=lo, hi=hi, deps=[(exps[2 * i], 1), (exps[2 * i + 1], 1)])

    def inloop(self, J):
        return any(a_ <= J < b_ for a_, b_ in (self.cfg.loopA, self.cfg.loopB))

    def dma_group(self, JJ, lo, hi, deps, which=(0, 1, 2, 3)):
        cfg = self.cfg
        prev = self.m0chain
        base = self.lds_base(JJ)
        for i in which:
            off = (0, 32, VOFF, VOFF + (8 if cfg.vmap else 32))[i]
            wp = sWPART
            m = S_('s_add_u32 m0, %s, %d' % (s(wp), base + off), [s(wp)], ['m0'])
            self.add(m, lo=lo, hi=hi, deps=list(deps) + ([(prev, 1)] if prev else []))
            srd = sK if i < 2 else sV
            dma = Ins('buffer_load_dwordx4 %s, %s, %s offen%s%s lds' % (
                v(vDMA), rng('s', srd, 4), s(sDOFF), ' offset:1024' if i & 1 else '', cfg.nt), 'dma',
                [v(vDMA), 'm0', s(sDOFF)] + regs('s', srd, 4), [])
            dma.meta['tile'] = JJ
            self.add(dma, lo=lo, hi=hi, deps=[(m, 1)] + list(deps))
            prev = dma
        self.m0chain = prev
        self.lastdma[JJ] = prev
        return prev

    def kv_stream(self):
        cfg = self.cfg
        R, D = cfg.R, cfg.D
        self.bar = {}
        self.barwait = {}
        kreads = {}
        chain = None
        JF = NT - cfg.final_T
        for J in range(0, NT):
            if cfg.final_T and J > JF:
                break
            p3 = 6 * J + 3
            last = J == NT - 1
            if cfg.loopA[0] - 1 <= J < cfg.loopA[1] and not cfg.no_qb:
                self.q_stage_tile(J, dma_only=J < cfg.loopA[0])
            if cfg.loopB[0] <= J < cfg.loopB[1] and not cfg.no_drain:
                self.o_drain_tile(J)
            vr = []
            for t in range(8):
                for pp in range(2):
                    d = VF(t) + 2 * pp
                    ins = Ins('ds_read_b64_tr_b16 %s, %s offset:%d' % (
                        rng('a', d, 2), v(vV), self.lds_base(J) + 512 * pp +
                        ((64 * (t >> 1) + 8 * (t & 1)) if cfg.vmap else 32 * t)),
                        'ds', [v(vV)], [(a(d + i), ('V', J, t, 2 * pp + i)) for i in range(2)])
                    lo_ = self.iPV[(6 * J - 1, t)] if J > 0 else 0
                    hi_ = self.iPV[(6 * J, t)] - cfg.LAT
                    if J > 0:
                        deps = [(self.bar[J - 1], 0)]
                    else:
                        deps = [(self.bar_v0, 0)]
                        lo_ = max(lo_, self.bar_v0.lo)
                    self.add(ins, lo=lo_, hi=max(hi_, lo_), deps=deps)
                    vr.append(ins)
            if cfg.final_T and J == JF:
                self.kv_final(JF)
                break
            e = self.pend_[p3]
            w = Ins('s_waitcnt vmcnt(0)', 'wait')
            w.meta['tile_wait'] = J + 1 if not last else 'all'
            self.add(w, lo=e - 2, hi=e - 1)
            bar = Ins('s_barrier', 'bar')
            bar.meta['assert_lg_done'] = set(vr) | set(kreads.get(J, []))
            self.add(bar, lo=e - 1, hi=e, deps=[(w, 1)])
            self.bar[J] = bar
            self.barwait[J] = w
            if cfg.start_stamps and J < 2:
                bar.meta['stamp'] = True
            if last:
                break
            kr = []
            for u in range(2):
                for st in range(4):
                    d = KF(u, st)
                    ins = Ins('ds_read_b128 %s, %s offset:%d' % (
                        rng('a', d, 4), v(vK), self.lds_base(J + 1) + 512 * u + 64 * st), 'ds',
                        [v(vK)], [(a(d + i), ('K', J + 1, u, st, i)) for i in range(4)])
                    lo_ = self.iQK[(6 * J + 5, u, st)]
                    hi_ = self.iQK[(6 * J + 6, u, st)] - cfg.LAT
                    self.add(ins, lo=lo_, hi=max(hi_, lo_), deps=[(bar, 0)])
                    kr.append(ins)
            kreads[J + 1] = kr
            JJ = J + D
            if cfg.final_T == 3 and JJ == NT - 1:
                JJ = NT
            if JJ < NT and not (cfg.no_dma and self.inloop(J)):
                lo_ = self.pstart[6 * J + 5] - 2
                hi_ = self.pend_[6 * J + 5] - 1
                if cfg.dma_early:
                    lo_ = self.pend_[6 * J + 3]
                    hi_ = self.pstart[6 * J + 5] + 2
                if J == 0:
                    inc = self.doff_final
                else:
                    inc = self.add(S_('s_add_u32 %s, %s, 8192' % (s(sDOFF), s(sDOFF)), [s(sDOFF)], [s(sDOFF)]),
                                   lo=self.pstart[6 * J + 2] + 1, hi=self.pend_[6 * J + 3] - 3, deps=[(chain, 1)])
                chain = self.dma_group(JJ, lo_, hi_, [(bar, 1), (inc, 1)])
                if cfg.final_T == 3 and JJ == NT - 2:
                    inc = self.add(S_('s_add_u32 %s, %s, 8192' % (s(sDOFF), s(sDOFF)), [s(sDOFF)], [s(sDOFF)]),
                                   lo=lo_, hi=hi_ + 12, deps=[(chain, 1)])
                    chain = self.dma_group(JJ + 1, lo_, hi_ + 24, [(inc, 1)])

    def kv_final(self, JF):
        cfg = self.cfg
        n0 = 6 * JF
        bars = {JF: self.bar[JF - 1]}
        for t in range(1, cfg.final_T):
            J = JF + t
            nfirst = n0 + 2 * t
            e = self.iQK[(nfirst - 1, 0, 0)] - 1
            w = Ins('s_waitcnt vmcnt(0)', 'wait')
            w.meta['vm_for'] = self.lastdma[J]
            self.add(w, lo=e - 2, hi=e - 1)
            bar = Ins('s_barrier', 'bar')
            self.add(bar, lo=e - 1, hi=e, deps=[(w, 1)])
            bars[J] = bar
        allreads = []
        for n in range(n0 + 1, NS):
            J = self.slot(n)[0]
            if J == self.slot(n - 1)[0]:
                continue
            base = self.lds_base(J)
            for u in range(2):
                for st in range(4):
                    d = KF(u, st)
                    ins = Ins('ds_read_b128 %s, %s offset:%d' % (rng('a', d, 4), v(vK), base + 512 * u + 64 * st), 'ds',
                              [v(vK)], [(a(d + i), ('K', J, u, st, i)) for i in range(4)])
                    lo_ = self.iQK[(n - 1, u, st)]
                    hi_ = self.iQK[(n, u, st)] - cfg.LAT
                    self.add(ins, lo=lo_, hi=max(hi_, lo_), deps=[(bars[J], 0)])
                    allreads.append(ins)
            for t in range(8):
                for pp in range(2):
                    d = VF(t) + 2 * pp
                    ins = Ins('ds_read_b64_tr_b16 %s, %s offset:%d' % (
                        rng('a', d, 2), v(vV), base + 512 * pp +
                        ((64 * (t >> 1) + 8 * (t & 1)) if cfg.vmap else 32 * t)),
                        'ds', [v(vV)], [(a(d + i), ('V', J, t, 2 * pp + i)) for i in range(2)])
                    lo_ = self.iPV[(n - 1, t)]
                    hi_ = self.iPV[(n, t)] - cfg.LAT
                    self.add(ins, lo=lo_, hi=max(hi_, lo_), deps=[(bars[J], 0)])
                    allreads.append(ins)
        e = self.iPV[(NS - 2, 7)]
        bar = Ins('s_barrier', 'bar')
        bar.meta['assert_lg_done'] = set(allreads)
        self.add(bar, lo=e, hi=e + 2)

    def q_stage_tile(self, J, dma_only=False):
        cfg = self.cfg
        lo, hi = self.pstart[6 * J + 1] + 2, self.pend_[6 * J + 3] - 3
        prev = self.qs_chain

        def sc(ins, h=hi):
            nonlocal prev
            prev = self.add(ins, lo=lo, hi=h, deps=[(prev, 1)] if prev else [])
            return prev
        sc(S_('s_add_u32 %s, %s, 1' % (s(sQI), s(sQI)), [s(sQI)], [s(sQI)]))
        sc(S_('s_add_u32 %s, %s, %d' % (s(sQREL), s(sQREL), CH), [s(sQREL)], [s(sQREL)]))
        sc(S_('s_add_u32 %s, %s, 1024' % (s(sQSO), s(sQSO)), [s(sQSO)], [s(sQSO)]))
        sc(S_('s_sub_u32 %s, %s, 24' % (s(sQM), s(sQI)), [s(sQI)], [s(sQM)]))
        sc(S_('s_ashr_i32 %s, %s, 31' % (s(sQM), s(sQM)), [s(sQM)], [s(sQM)]))
        sc(S_('s_and_b32 %s, %s, %s' % (s(sQT), s(sQREL), s(sQM)), [s(sQREL), s(sQM)], [s(sQT)]))
        sc(S_('s_andn2_b32 %s, 0x40000000, %s' % (s(sQT2), s(sQM)), [s(sQM)], [s(sQT2)]))
        so = sc(S_('s_or_b32 %s, %s, %s' % (s(sQT2), s(sQT2), s(sQSO)), [s(sQT2), s(sQSO)], [s(sQT2)]))
        wlo, whi = self.pstart[6 * J + 5] - 3, self.pstart[6 * J + 5] + 3
        if cfg.dma_early:
            wlo, whi = self.pend_[6 * J + 3] - 4, self.pend_[6 * J + 3] + 2
        m = S_('s_add_u32 m0, %s, %d' % (s(sQT), DUMMY), [s(sQT)], ['m0'])
        self.add(m, lo=wlo, hi=whi, deps=[(so, 1)] + ([(self.m0chain, 1)] if self.m0chain else []))
        dma = Ins('buffer_load_dwordx4 %s, %s, %s offen%s lds' % (v(vDMA), rng('s', sQ, 4), s(sQT2), cfg.nt), 'dma',
                  [v(vDMA), 'm0', s(sQT2)] + regs('s', sQ, 4), [])
        self.add(dma, lo=wlo, hi=whi, deps=[(m, 1)])
        self.m0chain = dma
        self.qs_chain = dma
        if dma_only:
            return
        t0, tb, ad = T(0), T(4), T(5)
        key = ('qc', J)
        lo = self.pstart[6 * J + 1] + 8
        hi = self.pend_[6 * J + 3] - 3
        rd = Ins('ds_read_b128 %s, %s' % (rng('v', t0, 4), v(ad)), 'ds', [v(ad)],
                 [(v(t0 + i), (key, 'raw', i)) for i in range(4)])
        self.add(rd, lo=lo, hi=self.pstart[6 * J + 2] - 2, deps=[(self.qc_chain, 1)] if self.qc_chain else [])
        c = None
        lo2 = self.pstart[6 * J + 2] + 1
        for i in range(4):
            r = t0 + i
            c = self.add(V_('v_lshlrev_b32 %s, 16, %s' % (v(tb), v(r)), [(v(r), (key, 'raw', i))], [(v(tb), (key, 'b', i))]),
                         lo=lo2, deps=[(rd, cfg.qrd_lat), c] if c else [(rd, cfg.qrd_lat)])
            c = self.add(V_('v_and_b32 %s, %s, %s' % (v(r), s(sMASK), v(r)), [(v(r), (key, 'raw', i)), s(sMASK)],
                            [(v(r), (key, 'c', i))]), lo=lo2, deps=[c])
            c = self.add(V_('v_mul_f32 %s, %s, %s' % (v(tb), s(sC), v(tb)), [(v(tb), (key, 'b', i)), s(sC)],
                            [(v(tb), (key, 'd', i))]), lo=lo2, deps=[c])
            c = self.add(V_('v_mul_f32 %s, %s, %s' % (v(r), s(sC), v(r)), [(v(r), (key, 'c', i)), s(sC)],
                            [(v(r), (key, 'e', i))]), lo=lo2, deps=[c])
            c = self.add(V_('v_cvt_pk_bf16_f32 %s, %s, %s' % (v(r), v(tb), v(r)),
                            [(v(r), (key, 'e', i)), (v(tb), (key, 'd', i))], [(v(r), (key, 'f', i))]), lo=lo2, deps=[c])
        wr = Ins('ds_write_b128 %s, %s' % (v(ad), rng('v', t0, 4)), 'dsw',
                 [v(ad)] + [(v(t0 + i), (key, 'f', i)) for i in range(4)], [])
        self.add(wr, lo=lo2, hi=hi + 20, deps=[(c, 1)])
        up = self.add(V_('v_add_u32 %s, %d, %s' % (v(ad), CH, v(ad)), [v(ad)], [v(ad)]), lo=lo2, hi=hi + 24,
                      deps=[(wr, 0)])
        self.qc_chain = up
        self.qc_lastwrite = wr

    def o_drain_tile(self, J):
        cfg = self.cfg
        ph = (J - cfg.loopB[0]) % 3
        if ph == 0:
            lo, hi = self.pstart[6 * J] + 2, self.pend_[6 * J + 1]
            prev = self.od_chain

            def sc(ins):
                nonlocal prev
                prev = self.add(ins, lo=lo, hi=hi, deps=[(prev, 1)] if prev else [])
                return prev
            sc(S_('s_lshr_b32 %s, %s, 1' % (s(sOT), s(sOI)), [s(sOI)], [s(sOT)]))
            sc(S_('s_lshl_b32 %s, %s, 13' % (s(sOT), s(sOT)), [s(sOT)], [s(sOT)]))
            sc(S_('s_and_b32 %s, %s, 1' % (s(sOT2), s(sOI)), [s(sOI)], [s(sOT2)]))
            sc(S_('s_lshl_b32 %s, %s, 9' % (s(sOT2), s(sOT2)), [s(sOT2)], [s(sOT2)]))
            sc(S_('s_add_u32 %s, %s, %s' % (s(sOSO), s(sOT), s(sOT2)), [s(sOT), s(sOT2)], [s(sOSO)]))
            sc(S_('s_sub_u32 %s, %s, 6' % (s(sOT), s(sOI)), [s(sOI)], [s(sOT)]))
            sc(S_('s_ashr_i32 %s, %s, 31' % (s(sOT), s(sOT)), [s(sOT)], [s(sOT)]))
            sc(S_('s_andn2_b32 %s, 0x40000000, %s' % (s(sOT2), s(sOT)), [s(sOT)], [s(sOT2)]))
            sc(S_('s_or_b32 %s, %s, %s' % (s(sOSO), s(sOSO), s(sOT2)), [s(sOSO), s(sOT2)], [s(sOSO)]))
            sc(S_('s_and_b32 %s, %d, %s' % (s(sOINC), 2048 if cfg.oswz else 2 * CH, s(sOT)), [s(sOT)], [s(sOINC)]))
            sc(S_('s_add_u32 %s, %s, 1' % (s(sOI), s(sOI)), [s(sOI)], [s(sOI)]))
            self.od_scal = prev
            self.od_chain = prev
        if ph > 1:
            return
        ad = T(8)
        key = ('od', J)
        lo = self.pstart[6 * J + 2] + 1
        rds = []
        for q in range(2):
            t0 = T(4 * q)
            rd = Ins('ds_read_b128 %s, %s offset:%d' % (
                rng('v', t0, 4), v(ad), (1024 if cfg.oswz else 128 if cfg.fullline else CH) * q),
                     'ds', [v(ad)],
                     [(v(t0 + i), (key, q, i)) for i in range(4)])
            self.add(rd, lo=lo, hi=lo + 6, deps=[(self.od_st, 1)] if self.od_st else [])
            rds.append(rd)
        up = self.add(V_('v_add_u32 %s, %s, %s' % (v(ad), s(sOINC), v(ad)), [v(ad), s(sOINC)], [v(ad)]),
                      lo=lo, hi=self.pend_[6 * J + 3], deps=[(rds[0], 0), (rds[1], 0), (self.od_scal, 1)])
        for q in range(2):
            t0 = T(4 * q)
            st = Ins('buffer_store_dwordx4 %s, %s, %s, %s offen offset:%d%s' % (
                rng('v', t0, 4), v(vO), rng('s', sO, 4), s(sOSO),
                128 * ph + (256 if cfg.fullline else 64) * q, cfg.st_mod), 'vstore',
                [(v(t0 + i), (key, q, i)) for i in range(4)] + [v(vO), s(sOSO)] + regs('s', sO, 4), [])
            self.add(st, lo=lo + 10, hi=self.pend_[6 * J + 3] - 3, deps=[(rds[q], cfg.qrd_lat + 1), (self.od_scal, 1)])
            self.od_st = st
        self.od_chain = self.od_st if ph == 1 else self.od_chain

    def o_write_addr(self, d0, d1, tmp, lo, hi, deps, tag):
        A = lambda t, rd, wr, dp: self.add(V_(t, rd, wr), lo=lo, hi=hi, deps=dp)
        c = A('v_bfe_u32 %s, %s, 4, 4' % (v(d0), v(vDMA)), [v(vDMA)], [v(d0)], deps)
        c = A('v_bfe_u32 %s, %s, 8, 2' % (v(tmp), v(vDMA)), [v(vDMA)], [v(tmp)], [c])
        c = A('v_xor_b32 %s, %s, %s' % (v(tmp), v(d0), v(tmp)), [v(d0), v(tmp)], [v(tmp)], [c])
        c = A('v_and_b32 %s, 7, %s' % (v(tmp), v(tmp)), [v(tmp)], [v(tmp)], [c])
        c = A('v_lshl_add_u32 %s, %s, 3, %s' % (v(d0), v(d0), v(tmp)), [v(d0), v(tmp)], [v(d0)], [c])
        c = A('v_lshlrev_b32 %s, 4, %s' % (v(d0), v(d0)), [v(d0)], [v(d0)], [c])
        c = A('v_xor_b32 %s, 64, %s' % (v(d1), v(d0)), [v(d0)], [v(d1)], [c])
        c1 = A('v_add_u32 %s, %s, %s' % (v(d1), s(sSTG), v(d1)), [s(sSTG), v(d1)], [(v(d1), tag + '1')], [c])
        c0 = A('v_add_u32 %s, %s, %s' % (v(d0), s(sSTG), v(d0)), [s(sSTG), v(d0)], [(v(d0), tag + '0')], [c1])
        return c0

    def o_read_addr(self, d, tmp, lo, hi, deps, tag):
        A = lambda t, rd, wr, dp: self.add(V_(t, rd, wr), lo=lo, hi=hi, deps=dp)
        c = A('v_bfe_u32 %s, %s, 7, 3' % (v(d), v(vDMA)), [v(vDMA)], [v(d)], deps)
        c = A('v_bfe_u32 %s, %s, 4, 3' % (v(tmp), v(vDMA)), [v(vDMA)], [v(tmp)], [c])
        c = A('v_xor_b32 %s, %s, %s' % (v(tmp), v(d), v(tmp)), [v(d), v(tmp)], [v(tmp)], [c])
        c = A('v_lshl_add_u32 %s, %s, 3, %s' % (v(d), v(d), v(tmp)), [v(d), v(tmp)], [v(d)], [c])
        c = A('v_lshlrev_b32 %s, 4, %s' % (v(d), v(d)), [v(d)], [v(d)], [c])
        return A('v_add_u32 %s, %s, %s' % (v(d), s(sSTG), v(d)), [s(sSTG), v(d)], [(v(d), tag) if tag else v(d)], [c])

    def epilogue(self, h):
        cfg = self.cfg
        self.st_last = None
        self.st_prev = None
        if h == 1 and cfg.tail_lds:
            assert cfg.vmap and cfg.fullline
            lo_ = self.pstart[6 * cfg.loopB[1]] + 2
            hi_ = self.pstart[6 * 62]
            t0_ = T(0)
            if cfg.oswz:
                self.tr_addr = self.o_read_addr(T(9), t0_, lo_, hi_, [], 'traddr')
                self.tw_addr = self.o_write_addr(T(8), T(7), t0_, lo_, hi_, [self.tr_addr], 'twaddr')
            else:
                c = self.add(V_('v_bfe_u32 %s, %s, 4, 3' % (v(t0_), v(vDMA)), [v(vDMA)], [v(t0_)]), lo=lo_, hi=hi_)
                c = self.add(V_('v_lshrrev_b32 %s, 2, %s' % (v(T(9)), v(t0_)), [v(t0_)], [v(T(9))]), lo=lo_, hi=hi_, deps=[c])
                c = self.add(V_('v_mul_u32_u24 %s, %d, %s' % (v(T(9)), CH, v(T(9))), [v(T(9))], [v(T(9))]), lo=lo_, hi=hi_, deps=[c])
                c = self.add(V_('v_and_b32 %s, 3, %s' % (v(t0_), v(t0_)), [v(t0_)], [v(t0_)]), lo=lo_, hi=hi_, deps=[c])
                c = self.add(V_('v_lshl_add_u32 %s, %s, 8, %s' % (v(T(9)), v(t0_), v(T(9))), [v(t0_), v(T(9))], [v(T(9))]), lo=lo_, hi=hi_, deps=[c])
                c = self.add(V_('v_bfe_u32 %s, %s, 7, 3' % (v(t0_), v(vDMA)), [v(vDMA)], [v(t0_)]), lo=lo_, hi=hi_, deps=[c])
                c = self.add(V_('v_lshl_add_u32 %s, %s, 4, %s' % (v(T(9)), v(t0_), v(T(9))), [v(t0_), v(T(9))], [v(T(9))]), lo=lo_, hi=hi_, deps=[c])
                self.tr_addr = self.add(V_('v_add_u32 %s, %s, %s' % (v(T(9)), s(sSTG), v(T(9))), [s(sSTG), v(T(9))],
                                           [(v(T(9)), 'traddr')]), lo=lo_, hi=hi_, deps=[c])
                self.tw_addr = self.add(V_('v_add_u32 %s, %s, %s' % (v(T(8)), s(43), v(vDMA)), [s(43), v(vDMA)],
                                           [(v(T(8)), 'twaddr')]), lo=lo_, hi=hi_)
        prev_wr = None
        tail_rd = {}
        prevchain = getattr(self, 'sq_chain', None)
        lread = {}
        for b in range(6):
            n = max(n_ for n_ in range(192 * h, 192 * h + 192) if self.slot(n_)[1] == b)
            k, e = b >> 1, b & 1
            bmark = len(self.flex)
            zi = self.iZ[n - (b & 1) + 2]
            x = T(2 + (b & 1))
            y = T(4)
            nxt = n + 6 if h == 0 else None
            jl = 31
            prevx = getattr(self, 'xlast', {}).get(b & 1)
            r0 = self.add(V_('v_accvgpr_read_b32 %s, %s' % (v(x), a(L(k) + 2 * e)),
                             [(a(L(k) + 2 * e), ('L', h, k, jl, 2 * e))], [(v(x), ('l0', h, b))]),
                          lo=zi + 5, deps=[prevx])
            r1 = self.add(V_('v_accvgpr_read_b32 %s, %s' % (v(y), a(L(k) + 2 * e + 1)),
                             [(a(L(k) + 2 * e + 1), ('L', h, k, jl, 2 * e + 1))], [(v(y), ('l1', h, b))]),
                          lo=zi + 5, deps=[getattr(self, 'ylast', None)])
            lread[b] = (r0, r1)
            ad = self.add(V_('v_add_f32 %s, %s, %s' % (v(x), v(x), v(y)),
                             [(v(x), ('l0', h, b)), (v(y), ('l1', h, b))], [(v(x), ('l', h, b))]), deps=[r0, r1],
                          lo=zi + 5)
            self.ylast = ad
            cmp_ = self.add(V_('v_cmp_nge_f32 vcc, %s, %s' % (s(sTHR), v(x)), [s(sTHR), (v(x), ('l', h, b))],
                               [('vcc', ('chk', h, b))]), deps=[ad, getattr(self, 'vcc_last', None)], lo=zi + 5)
            fl = self.add(S_('s_or_b64 %s, %s, vcc' % (rng('s', sFLAG[h], 2), rng('s', sFLAG[h], 2)),
                             [('vcc', ('chk', h, b))] + regs('s', sFLAG[h], 2), regs('s', sFLAG[h], 2)),
                          deps=[(cmp_, 1)], lo=zi + 5)
            self.vcc_last = (fl, 1)
            rc = self.add(V_('v_rcp_f32 %s, %s' % (v(x), v(x)), [(v(x), ('l', h, b))], [(v(x), ('r', h, b))],
                             kind='trans'), deps=[cmp_], lo=zi + 5)
            fl.hi = None
            so = None
            if h == 1:
                so = self.add(Ins('s_mov_b32 %s, %d' % (s(sOOFF), h * 98304 + qoff(b)), 'salu', [], [s(sOOFF)]),
                              deps=[(self.st_last, 1)] if self.st_last is not None and b > 0 else [], lo=zi)
            last_in_block = None
            for tau in range(4):
                t0, t1 = 2 * tau, 2 * tau + 1
                muls = {}
                lo = self.iPV[(n, t1)] + 5
                for t in (t0, t1):
                    for i in range(4):
                        r = O(b, t) + i
                        muls[(t, i)] = self.add(V_('v_mul_f32 %s, %s, %s' % (v(r), v(x), v(r)),
                                                   [(v(x), ('r', h, b)), (v(r), ('O', h, b, t, jl, i))],
                                                   [(v(r), ('On', h, b, t, i))]), lo=lo, deps=[(rc, 1)])
                base = O(b, t0)
                cv = []
                src = [(t0, 0), (t0, 2), (t1, 0), (t1, 2)]
                for q, (t, i) in enumerate(src):
                    d = base + q
                    deps = [muls[(t, i)], muls[(t, i + 1)]]
                    if q == 1:
                        deps.append(cv[0])
                    if q == 2:
                        deps += [cv[1]]
                    if q == 3:
                        deps += [cv[1], cv[2]]
                    c = self.add(V_('v_cvt_pk_bf16_f32 %s, %s, %s' % (v(d), v(O(b, t) + i), v(O(b, t) + i + 1)),
                                    [(v(O(b, t) + i), ('On', h, b, t, i)), (v(O(b, t) + i + 1), ('On', h, b, t, i + 1))],
                                    [(v(d), ('Oc', h, b, tau, q))]), lo=lo, deps=deps)
                    cv.append(c)
                    if (tau & 1) == 0 and q == 0:
                        cvall = {}
                    cvall[(tau, q)] = c
                if cfg.vmap:
                    tagn = 'Oc'
                    pre_st = [(x, 1) for x in cv]
                else:
                    tagn = 'Os'
                    s0 = self.add(V_('v_permlane16_swap_b32 %s, %s' % (v(base), v(base + 2)),
                                     [(v(base), ('Oc', h, b, tau, 0)), (v(base + 2), ('Oc', h, b, tau, 2))],
                                     [(v(base), ('Os', h, b, tau, 0)), (v(base + 2), ('Os', h, b, tau, 2))], kind='perm'),
                                  deps=[(cv[0], 1), (cv[2], 1)], lo=lo)
                    s1 = self.add(V_('v_permlane16_swap_b32 %s, %s' % (v(base + 1), v(base + 3)),
                                     [(v(base + 1), ('Oc', h, b, tau, 1)), (v(base + 3), ('Oc', h, b, tau, 3))],
                                     [(v(base + 1), ('Os', h, b, tau, 1)), (v(base + 3), ('Os', h, b, tau, 3))],
                                     kind='perm'), deps=[(cv[1], 1), (cv[3], 1)], lo=lo)
                    pre_st = [(s0, 1), (s1, 1)]
                hi = None
                if h == 0:
                    if cfg.oswz:
                        areg, atag, aoff = T(8 + (tau & 1)), 'ostage%d' % (tau & 1), 2048 * (2 * b + (tau >> 1))
                    else:
                        areg, atag, aoff = T(8), 'ostage', CH * (4 * b + tau)
                    st = Ins('ds_write_b128 %s, %s offset:%d' % (v(areg), rng('v', base, 4), aoff), 'dsw',
                             [(v(base + q), (tagn, h, b, tau, q)) for q in range(4)] + [(v(areg), atag)], [])
                    st.meta['cost'] = 8
                    hi = self.iPV[(nxt, t0)] - 2
                    deps = pre_st + [(self.ostage_addr, 1)]
                    for b_ in range(0, 2 * (b >> 1) + 2):
                        deps += [(x, 0) for x in self.qb_reads[b_]]
                    self.add(st, lo=lo, hi=hi, deps=deps)
                elif cfg.tail_lds:
                    fslot = (16 + 4 * (b & 1)) if cfg.final_T else 4 * b
                    if cfg.oswz:
                        pbase = (16 * CH + 4096 * (b & 1)) if cfg.final_T else 4096 * b
                        areg, atag, aoff = (T(8), T(7))[tau & 1], 'twaddr%d' % (tau & 1), pbase + 2048 * (tau >> 1)
                    else:
                        areg, atag, aoff = T(8), 'twaddr', CH * (fslot + tau)
                    wr = Ins('ds_write_b128 %s, %s offset:%d' % (v(areg), rng('v', base, 4), aoff), 'dsw',
                             [(v(base + q), (tagn, h, b, tau, q)) for q in range(4)] + [(v(areg), atag)], [])
                    self.add(wr, lo=lo, deps=pre_st + [(self.tw_addr, 1)] +
                             [(x, 0) for x in tail_rd.get(b - 2, [])])
                    st = wr
                    if tau & 1:
                        hh = tau >> 1
                        for q in range(2):
                            dst = O(b, 4 * hh + 2 * q + 1)
                            rdep = [(wr, 0), (self.tr_addr, 1), (prev_wr, 0)]
                            rd = Ins('ds_read_b128 %s, %s offset:%d' % (
                                rng('v', dst, 4), v(T(9)),
                                (pbase + 2048 * hh + 1024 * q) if cfg.oswz else CH * (fslot + 2 * hh) + 128 * q), 'ds',
                                [(v(T(9)), 'traddr')], [(v(dst + i), ('Ot', b, hh, q, i)) for i in range(4)])
                            self.add(rd, lo=lo, deps=rdep + [(cvall[k_], 0) for k_ in cvall])
                            tail_rd.setdefault(b, []).append(rd)
                            st = Ins('buffer_store_dwordx4 %s, %s, %s, %s offen offset:%d%s' % (
                                rng('v', dst, 4), v(vO), rng('s', sO, 4), s(sOOFF), 128 * hh + 256 * q, cfg.st_mod2),
                                'vstore', [(v(dst + i), ('Ot', b, hh, q, i)) for i in range(4)] +
                                [v(vO), s(sOOFF)] + regs('s', sO, 4), [])
                            pace = [(self.st_prev, cfg.st_pace)] if (cfg.final_T and self.st_prev is not None) else []
                            self.add(st, lo=lo, deps=[(rd, cfg.qrd_lat), (so, 1)] + pace)
                            self.st_prev = st
                    prev_wr = wr
                else:
                    st = Ins('buffer_store_dwordx4 %s, %s, %s, %s offen offset:%d%s' % (
                        rng('v', base, 4), v(vQ if cfg.vmap else vO), rng('s', sO, 4), s(sOOFF), 64 * tau,
                        cfg.st_mod2), 'vstore',
                        [(v(base + q), (tagn, h, b, tau, q)) for q in range(4)] + [v(vO), s(sOOFF)] + regs('s', sO, 4), [])
                    self.add(st, lo=lo, hi=hi, deps=pre_st + [(so, 1)])
                if nxt is not None:
                    for q in (2, 3):
                        cv[q].hi = min(self.iPV[(nxt, t1)] - 2, cv[q].hi if cv[q].hi is not None else 10 ** 9)
                self.st_last = st
                last_in_block = muls[(t1, 3)]
            if h == 1 and cfg.final_T and b < 4:
                for x in self.flex[bmark:]:
                    x.meta['asap'] = True
            self.xlast = getattr(self, 'xlast', {})
            self.xlast[b & 1] = last_in_block
        if h == 0 and cfg.fullline:
            assert cfg.vmap
            t9 = T(9)
            lo_ = self.pstart[6 * cfg.loopB[0] - 6]
            hi_ = self.pstart[6 * cfg.loopB[0]] - 3
            dep = self.st_last
            if cfg.oswz:
                c = self.o_read_addr(T(8), t9, lo_, hi_, [(dep, 1)], None)
            else:
                c = self.add(V_('v_bfe_u32 %s, %s, 4, 3' % (v(t9), v(vDMA)), [v(vDMA)], [v(t9)]), lo=lo_, hi=hi_, deps=[(dep, 1)])
                c = self.add(V_('v_lshrrev_b32 %s, 2, %s' % (v(T(8)), v(t9)), [v(t9)], [v(T(8))]), lo=lo_, hi=hi_, deps=[c])
                c = self.add(V_('v_mul_u32_u24 %s, %d, %s' % (v(T(8)), CH, v(T(8))), [v(T(8))], [v(T(8))]), lo=lo_, hi=hi_, deps=[c])
                c = self.add(V_('v_and_b32 %s, 3, %s' % (v(t9), v(t9)), [v(t9)], [v(t9)]), lo=lo_, hi=hi_, deps=[c])
                c = self.add(V_('v_lshl_add_u32 %s, %s, 8, %s' % (v(T(8)), v(t9), v(T(8))), [v(t9), v(T(8))], [v(T(8))]), lo=lo_, hi=hi_, deps=[c])
                c = self.add(V_('v_bfe_u32 %s, %s, 7, 3' % (v(t9), v(vDMA)), [v(vDMA)], [v(t9)]), lo=lo_, hi=hi_, deps=[c])
                c = self.add(V_('v_lshl_add_u32 %s, %s, 4, %s' % (v(T(8)), v(t9), v(T(8))), [v(t9), v(T(8))], [v(T(8))]), lo=lo_, hi=hi_, deps=[c])
                c = self.add(V_('v_add_u32 %s, %s, %s' % (v(T(8)), s(sSTG), v(T(8))), [s(sSTG), v(T(8))], [v(T(8))]), lo=lo_, hi=hi_, deps=[c])
            self.od_addr = c
        if h == 0:
            for k in range(3):
                zi_next = self.iZ[192 + 2 + 2 * k]
                for i in range(4):
                    bb_ = 2 * k + (i >> 1)
                    self.add(V_('v_accvgpr_write_b32 %s, 0' % a(L(k) + i), [],
                                [(a(L(k) + i), ('L', 1, k, -1, i))]),
                             deps=[lread[bb_][i & 1]], hi=zi_next - 2, lo=0)

    def qb(self):
        cfg = self.cfg
        lo = self.pstart[6 * cfg.loopA[1]] + 2
        ad = self.add(V_('v_add_u32 %s, %s, %s' % (v(T(5)), s(sSTG), v(vK)), [s(sSTG), v(vK)], [(v(T(5)), 'qsaddr')]),
                      lo=lo, hi=self.pstart[184], deps=[(self.qc_chain, 1)] if self.qc_chain else [])
        self.qb_reads = {}
        for b in range(6):
            nlast, nfirst = 186 + b, 192 + b
            lst = []
            for st in range(4):
                d = Q(b, st)
                ins = Ins('ds_read_b128 %s, %s offset:%d' % (
                    rng('a', d, 4), v(T(5)), (b >> 1) * 8 * CH + 512 * (b & 1) + 64 * st), 'ds',
                    [(v(T(5)), 'qsaddr')], [(a(d + i), ('Q', 1, b, st, i)) for i in range(4)])
                lo_ = max(self.iQK[(nlast, 0, st)], self.iQK[(nlast, 1, st)])
                self.add(ins, lo=lo_, hi=self.iQK[(nfirst, 0, st)] - cfg.LAT, deps=[(ad, 1)])
                lst.append(ins)
            self.qb_reads[b] = lst
        if cfg.oswz:
            self.ostage_addr = self.o_write_addr(T(8), T(9), T(7), lo, self.pstart[184], [], 'ostage')
        else:
            self.ostage_addr = self.add(V_('v_add_u32 %s, %s, %s' % (v(T(8)), s(43), v(vDMA)), [s(43), v(vDMA)],
                                           [(v(T(8)), 'ostage')]), lo=lo, hi=self.pstart[184])

    RAW = 96

    def q_load(self, b, add):
        cfg = self.cfg
        out = []
        so = add(Ins('s_mov_b32 %s, %d' % (s(sQOFF), qoff(b)), 'salu', [], [s(sQOFF)]), None)
        for st in range(4):
            d = self.RAW + 16 * b + 4 * st
            out.append(add(Ins('buffer_load_dwordx4 %s, %s, %s, %s offen offset:%d%s' % (
                rng('v', d, 4), v(vQ), rng('s', sQ, 4), s(sQOFF), 64 * st, cfg.nt), 'vload',
                [v(vQ), s(sQOFF)] + regs('s', sQ, 4), [(v(d + i), ('QA', b, st, i)) for i in range(4)]), so))
        return out

    def prologue(self):
        cfg = self.cfg
        R = cfg.R
        o = []

        def e(text, kind='valu', rd=(), wr=()):
            i = Ins(text, kind, rd, wr)
            o.append(i)
            return i

        def srd_setup(srd, ptr, per):
            e('s_mul_i32 s3, s2, %d' % per, 'salu')
            e('s_add_u32 %s, %s, s3' % (s(srd), s(ptr)), 'salu')
            e('s_addc_u32 %s, %s, 0' % (s(srd + 1), s(ptr + 1)), 'salu')
            e('s_and_b32 %s, %s, 0xffff' % (s(srd + 1), s(srd + 1)), 'salu')
            e('s_mov_b32 %s, %d' % (s(srd + 2), per), 'salu')
            e('s_mov_b32 %s, 0x20000' % s(srd + 3), 'salu')

        def dma(J, which):
            last = None
            for i in which:
                off = (0, 32, VOFF, VOFF + (8 if cfg.vmap else 32))[i]
                wp = sWPART
                e('s_add_u32 m0, %s, %d' % (s(wp), (J % R) * SLOT + off), 'salu', wr=['m0'])
                srd = sK if i < 2 else sV
                e('s_nop 0', 'nop')
                last = e('buffer_load_dwordx4 %s, %s, %s offen%s%s lds' % (
                    v(vDMA), rng('s', srd, 4), s(sDOFF), ' offset:1024' if i & 1 else '', cfg.nt), 'dma', rd=['m0'])
                last.meta['tile'] = J
            return last

        def addq(ins, dep):
            o.append(ins)
            return ins
        e('s_cmp_ge_u32 s2, 256', 'salu')
        e('s_cbranch_scc1 L_done', 'branch')
        e('s_load_dwordx4 s[44:47], s[0:1], 0', 'salu')
        e('s_load_dwordx4 s[48:51], s[0:1], 16', 'salu')
        t = [T(i) for i in range(10)]
        e('v_lshrrev_b32 %s, 6, v0' % v(t[0]), wr=[v(t[0])])
        e('v_and_b32 %s, 63, v0' % v(t[1]), wr=[v(t[1])])
        e('v_readfirstlane_b32 %s, %s' % (s(sW), v(t[0])), rd=[v(t[0])], wr=[s(sW)])
        e('v_and_b32 %s, 15, %s' % (v(t[2]), v(t[1])))
        e('v_lshrrev_b32 %s, 4, %s' % (v(t[3]), v(t[1])))
        e('v_lshlrev_b32 %s, 4, %s' % (v(vDMA), v(t[1])))
        e('v_lshl_add_u32 %s, %s, 11, %s' % (v(vDMA), v(t[0]), v(vDMA)), wr=[v(vDMA)])
        e('v_mul_u32_u24 %s, %d, %s' % (v(t[4]), 24576, v(t[0])))
        e('v_and_b32 %s, 7, %s' % (v(t[5]), v(t[2])))
        e('v_lshl_add_u32 %s, %s, 10, %s' % (v(t[4]), v(t[5]), v(t[4])))
        e('v_lshrrev_b32 %s, 3, %s' % (v(t[5]), v(t[2])))
        e('v_lshl_add_u32 %s, %s, 8, %s' % (v(t[4]), v(t[5]), v(t[4])))
        e('v_lshl_add_u32 %s, %s, 4, %s' % (v(vQ), v(t[3]), v(t[4])), wr=[v(vQ)])
        e('s_mul_i32 %s, %s, %d' % (s(sWPART), s(sW), 2 * CH), 'salu', rd=[s(sW)], wr=[s(sWPART)])
        e('s_mov_b32 %s, 0' % s(sDOFF), 'salu')
        e('s_waitcnt lgkmcnt(0)', 'wait')
        if cfg.start_stamps:
            e('s_nop 0', 'nop').meta['stamp'] = True
        srd_setup(sK, 46, 524288)
        srd_setup(sQ, 44, 196608)
        def qa_pair(k):
            last = None
            for c in range(8 * k, 8 * k + 8):
                if c % 4 == 0:
                    e('s_add_u32 s61, s60, %d' % (4096 * (c >> 2)), 'salu')
                imm = 1024 * (c & 3)
                e('s_add_u32 m0, %s, %d' % (s(sSTG), CH * c - imm), 'salu', wr=['m0'])
                e('s_nop 0', 'nop')
                last = e('buffer_load_dwordx4 %s, %s, s61 offen offset:%d%s lds' % (
                    v(vDMA), rng('s', sQ, 4), imm, cfg.nt), 'dma', rd=['m0'])
            return last
        if cfg.qa_lds:
            e('s_mul_i32 %s, %s, %d' % (s(sSTG), s(sW), STAGEW), 'salu')
            e('s_add_u32 %s, %s, %d' % (s(sSTG), s(sSTG), STAGE0), 'salu')
            e('s_mul_i32 s60, %s, %d' % (s(sW), 24576 - 2048), 'salu')
        k0 = dma(0, (0, 1))
        if cfg.qa_lds:
            self.qa_last = {0: qa_pair(0)}
            for k_ in range(1, cfg.qa_init):
                self.qa_last[k_] = qa_pair(k_)
        else:
            q0 = self.q_load(0, addq)
            for b_ in range(1, cfg.qdepth):
                self.q_load(b_, addq)
        srd_setup(sV, 48, 524288)
        v0 = dma(0, (2, 3))
        if cfg.code_pf:
            e('s_getpc_b64 s[56:57]', 'salu')
            x = e('L_pc:', 'label')
            e('v_lshlrev_b32 %s, 7, %s' % (v(t[6]), v(t[1])))
            e('v_lshl_add_u32 %s, %s, 13, %s' % (v(t[6]), v(t[0]), v(t[6])))
            for rep in range(2):
                e('v_min_u32 %s, L_code_end-L_pc-4, %s' % (v(t[7]), v(t[6])))
                e('v_mov_b32 %s, s57' % v(t[9]))
                e('v_add_co_u32 %s, vcc, s56, %s' % (v(t[8]), v(t[7])), wr=['vcc'])
                e('v_addc_co_u32 %s, vcc, 0, %s, vcc' % (v(t[9]), v(t[9])), rd=['vcc'])
                e('global_load_dword v%d, %s, off' % (16 + rep, rng('v', t[8], 2)), 'vload', wr=[v(16 + rep)])
                if rep == 0:
                    e('v_add_u32 %s, 32768, %s' % (v(t[6]), v(t[6])))
        self.lastdma[0] = v0
        srd_setup(sO, 50, 196608)
        if cfg.vmap and cfg.fullline:
            e('v_mul_u32_u24 %s, %d, %s' % (v(vO), 24576, v(t[0])))
            e('v_lshrrev_b32 %s, 3, %s' % (v(t[5]), v(t[1])))
            e('v_lshl_add_u32 %s, %s, 10, %s' % (v(vO), v(t[5]), v(vO)))
            e('v_and_b32 %s, 7, %s' % (v(t[5]), v(t[1])))
            e('v_lshl_add_u32 %s, %s, 4, %s' % (v(vO), v(t[5]), v(vO)), wr=[v(vO)])
        elif cfg.vmap:
            e('v_mov_b32 %s, %s' % (v(vO), v(vQ)), wr=[v(vO)])
        else:
            e('v_and_b32 %s, 1, %s' % (v(t[5]), v(t[3])))
            e('v_lshl_add_u32 %s, %s, 5, %s' % (v(t[4]), v(t[5]), v(t[4])))
            e('v_lshrrev_b32 %s, 1, %s' % (v(t[5]), v(t[3])))
            e('v_lshl_add_u32 %s, %s, 4, %s' % (v(vO), v(t[5]), v(t[4])), wr=[v(vO)])
        e('v_and_b32 %s, 7, %s' % (v(t[4]), v(t[2])))
        e('v_mul_u32_u24 %s, %d, %s' % (v(vK), CH, v(t[4])))
        e('v_lshrrev_b32 %s, 3, %s' % (v(t[4]), v(t[2])))
        e('v_lshl_add_u32 %s, %s, 8, %s' % (v(vK), v(t[4]), v(vK)))
        e('v_lshl_add_u32 %s, %s, 4, %s' % (v(vK), v(t[3]), v(vK)), wr=[v(vK)])
        e('v_bfe_u32 %s, %s, 2, 3' % (v(t[4]), v(t[1])))
        if cfg.vmap:
            e('v_lshrrev_b32 %s, 1, %s' % (v(t[5]), v(t[4])))
            e('v_mul_u32_u24 %s, %d, %s' % (v(vV), 2 * CH, v(t[5])))
            e('v_and_b32 %s, 1, %s' % (v(t[5]), v(t[4])))
            e('v_mul_u32_u24 %s, 1032, %s' % (v(t[5]), v(t[5])))
            e('v_add_u32 %s, %s, %s' % (v(vV), v(t[5]), v(vV)))
        else:
            e('v_mul_u32_u24 %s, %d, %s' % (v(vV), CH, v(t[4])))
        e('v_lshrrev_b32 %s, 5, %s' % (v(t[4]), v(t[1])))
        e('v_lshl_add_u32 %s, %s, 8, %s' % (v(vV), v(t[4]), v(vV)))
        e('v_and_b32 %s, 3, %s' % (v(t[4]), v(t[1])))
        e('v_lshl_add_u32 %s, %s, %d, %s' % (v(vV), v(t[4]), 4 if cfg.vmap else 3, v(vV)))
        e('v_add_u32 %s, %d, %s' % (v(vV), VOFF, v(vV)), wr=[v(vV)])
        e('s_mov_b32 %s, 0x%08x' % (s(sC), f32bits(C_SCALE)), 'salu')
        e('s_mov_b32 %s, 0x%08x' % (s(sC + 1), f32bits(C_SCALE)), 'salu')
        e('s_mov_b32 %s, 0x%08x' % (s(sTHR), cfg.thr), 'salu')
        e('s_mov_b32 %s, 0xffff0000' % s(sMASK), 'salu')
        e('s_mov_b64 %s, 0' % rng('s', sFLAG[0], 2), 'salu')
        e('s_mov_b64 %s, 0' % rng('s', sFLAG[1], 2), 'salu')
        if not cfg.qa_lds:
            e('s_mul_i32 %s, %s, %d' % (s(sSTG), s(sW), STAGEW), 'salu')
            e('s_add_u32 %s, %s, %d' % (s(sSTG), s(sSTG), STAGE0), 'salu')
        e('s_sub_u32 %s, %s, %d' % (s(sQREL), s(sSTG), DUMMY), 'salu')
        e('s_lshl_b32 s3, %s, 11' % s(sW), 'salu')
        e('s_sub_u32 s43, %s, s3' % s(sSTG), 'salu')
        e('s_sub_u32 s63, s43, %d' % (3 * CH), 'salu')
        e('s_mov_b32 %s, -2' % s(sQI), 'salu')
        e('s_sub_u32 %s, %s, %d' % (s(sQREL), s(sQREL), 2 * CH), 'salu')
        e('s_mul_i32 %s, %s, %d' % (s(sQSO), s(sW), 24576 - 2048), 'salu')
        e('s_add_u32 %s, %s, %d' % (s(sQSO), s(sQSO), 98304 - 2048), 'salu')
        e('s_mov_b32 %s, 0' % s(sOI), 'salu')
        e('v_and_b32 %s, 1, %s' % (v(t[4]), v(t[2])))
        e('v_mov_b32 %s, 0x4444' % v(t[5]))
        e('v_mov_b32 %s, 0xeeee' % v(t[6]))
        e('v_cmp_eq_u32 vcc, 0, %s' % v(t[4]), wr=['vcc'])
        e('v_cndmask_b32 %s, %s, %s, vcc' % (v(vIDX), v(t[6]), v(t[5])), rd=['vcc'], wr=[(v(vIDX), 'IDX')])
        e('v_bfe_u32 %s, %s, 1, 1' % (v(t[4]), v(t[2])))
        e('v_lshrrev_b32 %s, 1, %s' % (v(t[5]), v(t[3])))
        e('v_cmp_eq_u32 vcc, %s, %s' % (v(t[4]), v(t[5])), wr=['vcc'])
        e('v_mov_b32 %s, 0x3f803f80' % v(t[6]))
        e('v_cndmask_b32 %s, 0, %s, vcc' % (v(t[4]), v(t[6])), rd=['vcc'], wr=[v(t[4])])
        for i in range(4):
            e('v_accvgpr_write_b32 %s, %s' % (a(SA + i), v(t[4])), rd=[v(t[4])], wr=[(a(SA + i), 'SA')])
        for k in range(3):
            for i in range(4):
                e('v_accvgpr_write_b32 %s, 0' % a(L(k) + i), wr=[(a(L(k) + i), ('L', 0, k, -1, i))])
        w = e('s_waitcnt vmcnt(0)', 'wait')
        w.meta['stamp'] = True
        if cfg.qa_lds:
            w.meta['vm_for'] = self.qa_last[0]
            if cfg.qa_init == 1:
                self.qa_last[1] = qa_pair(1)
            if cfg.qa_init == 2 and cfg.p2_early:
                self.qa_last[2] = qa_pair(2)
            for J in cfg.qplan[0]:
                e('s_mov_b32 %s, %d' % (s(sDOFF), J * 8192), 'salu')
                self.lastdma[J] = dma(J, (0, 1, 2, 3))
            e('v_add_u32 %s, %s, %s' % (v(T(7)), s(sSTG), v(vK)), wr=[v(T(7))])
            for b_ in range(2):
                for st in range(4):
                    d = self.RAW + 16 * b_ + 4 * st
                    e('ds_read_b128 %s, %s offset:%d' % (rng('v', d, 4), v(T(7)), 512 * b_ + 64 * st), 'ds',
                      rd=[v(T(7))], wr=[(v(d + i), ('QA', b_, st, i)) for i in range(4)])
        else:
            w.meta['vm_for'] = q0[-1]
            if cfg.qdepth < 6:
                self.q_load(cfg.qdepth, addq)
        b = 0
        for st in range(4):
            d = self.RAW + 16 * b + 4 * st
            tb = 8 * (st & 1)
            for i in range(4):
                e('v_lshlrev_b32 %s, 16, %s' % (v(tb + 2 * i), v(d + i)), rd=[(v(d + i), ('QA', b, st, i))],
                  wr=[v(tb + 2 * i)])
                e('v_and_b32 %s, %s, %s' % (v(tb + 2 * i + 1), s(sMASK), v(d + i)), rd=[v(d + i)],
                  wr=[v(tb + 2 * i + 1)])
            for i in range(4):
                e('v_pk_mul_f32 %s, %s, %s' % (rng('v', tb + 2 * i, 2), rng('v', tb + 2 * i, 2), rng('s', sC, 2)),
                  rd=regs('v', tb + 2 * i, 2), wr=regs('v', tb + 2 * i, 2))
            for i in range(4):
                e('v_cvt_pk_bf16_f32 %s, %s, %s' % (v(d + i), v(tb + 2 * i), v(tb + 2 * i + 1)),
                  rd=regs('v', tb + 2 * i, 2), wr=[v(d + i)])
            for i in range(4):
                e('v_accvgpr_write_b32 %s, %s' % (a(Q(b, st) + i), v(d + i)), rd=[v(d + i)],
                  wr=[(a(Q(b, st) + i), ('Q', 0, b, st, i))])
        e('s_barrier', 'bar')
        for u in range(2):
            for st in range(4):
                d = KF(u, st)
                e('ds_read_b128 %s, %s offset:%d' % (rng('a', d, 4), v(vK), 512 * u + 64 * st), 'ds',
                  rd=[v(vK)], wr=[(a(d + i), ('K', 0, u, st, i)) for i in range(4)])
        return o

    def early(self):
        cfg = self.cfg
        R, D = cfg.R, cfg.D
        firstop = {}
        chain = None
        qprev = None
        tiles = list(range(1, D))
        plan = {b_: cfg.tplan.get(b_, []) for b_ in range(1, 6)}
        if cfg.qa_lds:
            assert sorted(sum(cfg.qplan.values(), [])) == tiles
        else:
            assert sorted(sum(plan.values(), [])) == tiles
        doff = None
        self.m0chain = None
        rawrd = {}
        for b in range(1, 6):
            if cfg.qa_lds and b % 2 == 0:
                k = b // 2
                wq = Ins('s_waitcnt vmcnt(0)', 'wait')
                wq.meta['vm_for'] = self.qa_last[k]
                if cfg.start_stamps:
                    wq.meta['stamp'] = True
                lo_w = self.iQK[(b - 1, 0, 0)] - 1
                self.add(wq, lo=lo_w, hi=lo_w + 2,
                         deps=([(self.qa_last[k], 1)] if self.qa_last[k].deps else []))
                mark = len(self.flex)
                if k + 1 <= 2 and (k + 1) not in self.qa_last:
                    prev = None
                    for c in range(8 * (k + 1), 8 * (k + 1) + 8):
                        imm = 1024 * (c & 3)
                        txt = ''
                        if c % 4 == 0:
                            txt += 's_add_u32 s61, s60, %d\n    ' % (4096 * (c >> 2))
                        txt += 's_add_u32 m0, %s, %d\n    s_nop 0\n    ' % (s(sSTG), CH * c - imm)
                        txt += 'buffer_load_dwordx4 %s, %s, s61 offen offset:%d%s lds' % (
                            v(vDMA), rng('s', sQ, 4), imm, cfg.nt)
                        dm = Ins(txt, 'dma', [v(vDMA)], ['scc'])
                        dm.meta['composite'] = True
                        self.add(dm, lo=0, deps=[(wq, 0)] + ([(prev, 0)] if prev else []) +
                                 ([(self.m0chain, 1)] if self.m0chain else []))
                        prev = dm
                    self.m0chain = prev
                    self.qa_last[k + 1] = prev
                for J in cfg.qplan.get(k, []):
                    prev = None
                    for i in range(4):
                        off = (0, 32, VOFF, VOFF + (8 if cfg.vmap else 32))[i]
                        txt = 's_mov_b32 %s, %d\n    ' % (s(sDOFF), J * 8192) if i == 0 else ''
                        txt += 's_add_u32 m0, %s, %d\n    s_nop 0\n    ' % (s(sWPART), (J % R) * SLOT + off)
                        txt += 'buffer_load_dwordx4 %s, %s, %s offen%s%s lds' % (
                            v(vDMA), rng('s', sK if i < 2 else sV, 4), s(sDOFF), ' offset:1024' if i & 1 else '', cfg.nt)
                        dm = Ins(txt, 'dma', [v(vDMA)], ['scc'])
                        dm.meta['composite'] = True
                        dm.meta['tile'] = J
                        self.add(dm, lo=0, deps=[(wq, 0)] + ([(prev, 0)] if prev else []) +
                                 ([(self.m0chain, 0)] if self.m0chain else []))
                        prev = dm
                    self.m0chain = prev
                    self.lastdma[J] = prev
                for x in self.flex[mark:]:
                    x.meta['asap'] = True
                for b_ in (b, b + 1):
                    for st in range(4):
                        d = self.RAW + 16 * b_ + 4 * st
                        rd = Ins('ds_read_b128 %s, %s offset:%d' % (
                            rng('v', d, 4), v(T(7)), k * 8 * CH + 512 * (b_ & 1) + 64 * st), 'ds',
                            [v(T(7))], [(v(d + i), ('QA', b_, st, i)) for i in range(4)])
                        self.add(rd, lo=0, deps=[(wq, 0)])
                        rd.meta['asap'] = True
                        rawrd[(b_, st)] = rd
            first = None
            cmark = len(self.flex)
            for st in range(4):
                dl = self.iQK[(b, 0, st)] - 2
                for i in range(4):
                    r = self.RAW + 16 * b + 4 * st + i
                    tb = T(5 + (i & 1))
                    key = (b, st, i)
                    c = self.add(V_('v_lshlrev_b32 %s, 16, %s' % (v(tb), v(r)), [(v(r), ('QA', b, st, i))],
                                    [(v(tb), ('qb', key))]), lo=0,
                                 deps=[chain] + ([(rawrd[(b, st)], 4)] if (b, st) in rawrd else []))
                    if first is None:
                        first = c
                        chain0 = c
                    c = self.add(V_('v_and_b32 %s, %s, %s' % (v(r), s(sMASK), v(r)), [(v(r), ('QA', b, st, i)), s(sMASK)],
                                    [(v(r), ('qc', key))]), lo=0, deps=[c])
                    c = self.add(V_('v_mul_f32 %s, %s, %s' % (v(tb), s(sC), v(tb)), [(v(tb), ('qb', key)), s(sC)],
                                    [(v(tb), ('qd', key))]), lo=0, deps=[c])
                    c = self.add(V_('v_mul_f32 %s, %s, %s' % (v(r), s(sC), v(r)), [(v(r), ('qc', key)), s(sC)],
                                    [(v(r), ('qe', key))]), lo=0, deps=[c])
                    c = self.add(V_('v_cvt_pk_bf16_f32 %s, %s, %s' % (v(r), v(tb), v(r)),
                                    [(v(r), ('qe', key)), (v(tb), ('qd', key))], [(v(r), ('qf', key))]), lo=0, deps=[c])
                    c = self.add(V_('v_accvgpr_write_b32 %s, %s' % (a(Q(b, st) + i), v(r)), [(v(r), ('qf', key))],
                                    [(a(Q(b, st) + i), ('Q', 0, b, st, i))]), lo=0, hi=dl, deps=[c])
                    chain = c
            firstop[b] = first
            if cfg.qa_lds and cfg.conv_asap:
                for x in self.flex[cmark:]:
                    x.meta['asap'] = True
            if cfg.start_stamps and not cfg.qa_lds:
                first.meta['stamp'] = True
            mark = len(self.flex)
            if cfg.qa_lds:
                continue
            if b + cfg.qdepth <= 5:
                def addq(ins, dep, first=first):
                    nonlocal qprev
                    deps = [(first, 1)]
                    if dep is not None:
                        deps.append((dep, 1))
                    elif qprev is not None:
                        deps.append((qprev, 1))
                    self.add(ins, lo=0, hi=None, deps=deps, prio=3)
                    ins.hi = None
                    return ins
                ql = self.q_load(b + cfg.qdepth, addq)
                qprev = ql[-1]
            for J in plan[b]:
                doff = self.add(Ins('s_mov_b32 %s, %d' % (s(sDOFF), J * 8192), 'salu', [], [s(sDOFF)]), lo=0,
                                deps=[(first, 1)] + ([(self.m0chain, 1)] if self.m0chain else []))
                self.dma_group(J, 0, None, [(doff, 1)])
            for x in self.flex[mark:]:
                x.meta['asap'] = True
        self.qoff_last = qprev
        self.qc_chain = self.add(V_('v_add_u32 %s, s63, %s' % (v(T(5)), v(vDMA)), [v(vDMA)], [v(T(5))]), lo=0,
                                 hi=self.pstart[6 * cfg.loopA[0]] - 4, deps=[chain])
        hi_final = (self.pend_[3] - 2) if cfg.dma_early else (self.pstart[5] - 4)
        self.doff_final = self.add(Ins('s_mov_b32 %s, %d' % (s(sDOFF), D * 8192), 'salu', [], [s(sDOFF)]), lo=0,
                                   hi=hi_final, deps=[(self.m0chain, 1)] if self.m0chain else [])
        k = self.pstart[0] + 1
        w = Ins('s_waitcnt vmcnt(0)', 'wait')
        w.meta['vm_for_tile0'] = True
        self.add(w, lo=k, hi=k)
        self.bar_v0 = Ins('s_barrier', 'bar')
        self.add(self.bar_v0, lo=k + 1, hi=k + 1, deps=[(w, 1)])
        self.v0wait = w

    def slowpath(self):
        o = []
        e = o.append
        e('L_slow:')
        e('s_waitcnt vmcnt(0) lgkmcnt(0)')
        e('s_mul_i32 s52, %s, %d' % (s(sW), SLOT))
        e('v_and_b32 v1, 63, %s' % v(vDMA))
        e('v_lshrrev_b32 v162, 4, %s' % v(vDMA))
        e('v_and_b32 v162, 63, v162')
        e('v_and_b32 v2, 15, v162')
        e('v_lshrrev_b32 v3, 4, v162')
        e('v_and_b32 v4, 7, v2')
        e('v_mul_u32_u24 v160, %d, v4' % CH)
        e('v_lshrrev_b32 v4, 3, v2')
        e('v_lshl_add_u32 v160, v4, 8, v160')
        e('v_lshl_add_u32 v160, v3, 4, v160')
        e('v_add_u32 v160, s52, v160')
        e('v_bfe_u32 v4, v162, 2, 3')
        e('v_mul_u32_u24 v161, %d, v4' % CH)
        e('v_lshrrev_b32 v4, 5, v162')
        e('v_lshl_add_u32 v161, v4, 8, v161')
        e('v_and_b32 v4, 3, v162')
        e('v_lshl_add_u32 v161, v4, 3, v161')
        e('v_add_u32 v161, %d, v161' % VOFF)
        e('v_add_u32 v161, s52, v161')
        e('v_lshlrev_b32 v4, 4, v3')
        e('v_sub_u32 v163, %s, v4' % v(vQ))
        e('v_and_b32 v4, 1, v3')
        e('v_lshl_add_u32 v163, v4, 5, v163')
        e('v_lshrrev_b32 v4, 1, v3')
        e('v_lshl_add_u32 v163, v4, 4, v163')
        e('v_lshlrev_b32 v162, 4, v162')
        e('s_mov_b32 s53, 0')
        e('L_slow_head:')
        e('s_cmp_eq_u32 s53, 0')
        e('s_cselect_b64 s[54:55], %s, %s' % (rng('s', sFLAG[0], 2), rng('s', sFLAG[1], 2)))
        e('s_cmp_eq_u64 s[54:55], 0')
        e('s_cbranch_scc1 L_slow_next')
        e('s_mov_b32 s56, 0')
        e('L_slow_blk:')
        e('s_mul_i32 s57, s53, 98304')
        e('s_lshr_b32 s58, s56, 1')
        e('s_lshl_b32 s58, s58, 13')
        e('s_add_u32 s57, s57, s58')
        e('s_and_b32 s58, s56, 1')
        e('s_lshl_b32 s58, s58, 9')
        e('s_add_u32 s57, s57, s58')
        for st in range(4):
            e('buffer_load_dwordx4 v[%d:%d], %s, %s, s57 offen offset:%d' % (
                4 * st, 4 * st + 3, v(vQ), rng('s', sQ, 4), 64 * st))
        e('s_waitcnt vmcnt(0)')
        for i in range(16):
            e('v_lshlrev_b32 v42, 16, v%d' % i)
            e('v_and_b32 v43, %s, v%d' % (s(sMASK), i))
            e('v_mul_f32 v42, %s, v42' % s(sC))
            e('v_mul_f32 v43, %s, v43' % s(sC))
            e('v_cvt_pk_bf16_f32 v%d, v42, v43' % (16 + i))
        e('v_mov_b32 v32, 0xff800000')
        e('v_mov_b32 v33, 0')
        for i in range(32):
            e('v_mov_b32 v%d, 0' % (64 + i))
        e('s_mul_i32 s59, s53, 262144')
        e('s_mov_b32 s60, 0')
        e('L_slow_tile:')
        for c in range(8):
            for which, srd in ((0, sK), (VOFF, sV)):
                e('s_add_u32 m0, s52, %d' % (which + c * CH))
                e('s_add_u32 s61, s59, %d' % (c * 1024))
                e('buffer_load_dwordx4 v162, %s, s61 offen lds' % rng('s', srd, 4))
        e('s_waitcnt vmcnt(0)')
        for u in range(2):
            for st in range(4):
                d = 96 + 16 * u + 4 * st
                e('ds_read_b128 v[%d:%d], v160 offset:%d' % (d, d + 3, 512 * u + 64 * st))
        e('s_waitcnt lgkmcnt(0)')
        for t in range(8):
            for pp in range(2):
                d = 128 + 4 * t + 2 * pp
                e('ds_read_b64_tr_b16 v[%d:%d], v161 offset:%d' % (d, d + 1, 512 * pp + 32 * t))
            if t == 3:
                e('s_waitcnt lgkmcnt(0)')
        e('s_waitcnt lgkmcnt(0)')
        for u in range(2):
            for st in range(4):
                d = 34 + 4 * u
                k = 96 + 16 * u + 4 * st
                e('v_mfma_f32_16x16x32_bf16 v[%d:%d], v[%d:%d], v[%d:%d], %s' % (
                    d, d + 3, k, k + 3, 16 + 4 * st, 19 + 4 * st, '0' if st == 0 else 'v[%d:%d]' % (d, d + 3)))
        e('s_nop 15')
        e('v_max3_f32 v42, v34, v35, v36')
        e('v_max3_f32 v42, v42, v37, v38')
        e('v_max3_f32 v42, v42, v39, v40')
        e('v_max3_f32 v42, v42, v41, v32')
        e('v_mov_b32 v43, v42')
        e('s_nop 2')
        e('v_permlane16_swap_b32 v42, v43')
        e('s_nop 2')
        e('v_max_f32 v42, v42, v43')
        e('v_mov_b32 v43, v42')
        e('s_nop 2')
        e('v_permlane32_swap_b32 v42, v43')
        e('s_nop 2')
        e('v_max_f32 v42, v42, v43')
        e('v_sub_f32 v44, v32, v42')
        e('v_exp_f32 v44, v44')
        e('v_mov_b32 v32, v42')
        for r in range(8):
            e('v_sub_f32 v%d, v%d, v42' % (34 + r, 34 + r))
        for r in range(8):
            e('v_exp_f32 v%d, v%d' % (34 + r, 34 + r))
        e('s_nop 1')
        e('v_mul_f32 v33, v33, v44')
        for i in range(4):
            e('v_cvt_pk_bf16_f32 v%d, v%d, v%d' % (48 + i, 34 + 2 * i, 35 + 2 * i))
        for i in range(4):
            e('v_lshlrev_b32 v45, 16, v%d' % (48 + i))
            e('v_and_b32 v46, %s, v%d' % (s(sMASK), 48 + i))
            e('v_add_f32 v33, v33, v45')
            e('v_add_f32 v33, v33, v46')
        for i in range(32):
            e('v_mul_f32 v%d, v%d, v44' % (64 + i, 64 + i))
        e('s_nop 2')
        for t in range(8):
            d = 64 + 4 * t
            e('v_mfma_f32_16x16x32_bf16 v[%d:%d], v[%d:%d], v[48:51], v[%d:%d]' % (
                d, d + 3, 128 + 4 * t, 131 + 4 * t, d, d + 3))
        e('s_nop 15')
        e('s_add_u32 s59, s59, 8192')
        e('s_add_u32 s60, s60, 1')
        e('s_cmp_lt_u32 s60, 32')
        e('s_cbranch_scc1 L_slow_tile')
        e('v_mov_b32 v43, v33')
        e('s_nop 2')
        e('v_permlane16_swap_b32 v33, v43')
        e('s_nop 2')
        e('v_add_f32 v33, v33, v43')
        e('v_mov_b32 v43, v33')
        e('s_nop 2')
        e('v_permlane32_swap_b32 v33, v43')
        e('s_nop 2')
        e('v_add_f32 v33, v33, v43')
        e('v_rcp_f32 v33, v33')
        e('s_nop 1')
        for i in range(32):
            e('v_mul_f32 v%d, v%d, v33' % (64 + i, 64 + i))
        for tau in range(4):
            b0 = 64 + 8 * tau
            e('v_cvt_pk_bf16_f32 v%d, v%d, v%d' % (b0, b0, b0 + 1))
            e('v_cvt_pk_bf16_f32 v%d, v%d, v%d' % (b0 + 1, b0 + 2, b0 + 3))
            e('v_cvt_pk_bf16_f32 v%d, v%d, v%d' % (b0 + 2, b0 + 4, b0 + 5))
            e('v_cvt_pk_bf16_f32 v%d, v%d, v%d' % (b0 + 3, b0 + 6, b0 + 7))
            e('s_nop 2')
            e('v_permlane16_swap_b32 v%d, v%d' % (b0, b0 + 2))
            e('v_permlane16_swap_b32 v%d, v%d' % (b0 + 1, b0 + 3))
            e('s_nop 2')
            e('buffer_store_dwordx4 v[%d:%d], %s, %s, s57 offen offset:%d' % (
                b0, b0 + 3, 'v163', rng('s', sO, 4), 64 * tau))
        e('s_waitcnt vmcnt(0)')
        e('s_add_u32 s56, s56, 1')
        e('s_cmp_lt_u32 s56, 6')
        e('s_cbranch_scc1 L_slow_blk')
        e('L_slow_next:')
        e('s_add_u32 s53, s53, 1')
        e('s_cmp_lt_u32 s53, 2')
        e('s_cbranch_scc1 L_slow_head')
        e('s_endpgm')
        return o

    def build(self):
        cfg = self.cfg
        self.lastdma = {}
        self.qs_chain = self.od_chain = self.od_st = None
        self.build_backbone()
        self.reserve_wait_slots()
        pro = self.prologue()
        self.early()
        self.v0wait.meta['vm_for'] = self.lastdma[0]
        self.softmax()
        self.kv_stream()
        self.qb()
        self.epilogue(0)
        self.epilogue(1)
        for J, w in self.barwait.items():
            tw = w.meta['tile_wait']
            if cfg.no_dma and self.inloop(J):
                w.text = 's_nop 0'
                w.kind = 'nop'
            elif tw == 'all':
                w.meta['vm_for_last_dma'] = True
            elif tw in self.lastdma:
                w.meta['vm_for'] = self.lastdma[tw]
            else:
                assert cfg.no_dma
                w.text = 's_nop 0'
                w.kind = 'nop'
        gaps = schedule(self.bb, self.flex)
        body = linearize(self.bb, gaps)
        prog0 = pro + body
        lastd = None
        for ins in prog0:
            if ins.kind == 'dma':
                lastd = ins
            if ins.meta.get('vm_for_last_dma'):
                ins.meta['vm_for'] = lastd
        insert_waits(prog0)
        for l0, l1 in (cfg.loopA, cfg.loopB):
            for ph in range(cfg.U):
                ws = [self.barwait[J] for J in range(l0 + ph, l1, cfg.U) if self.barwait[J].kind == 'wait']
                if ws:
                    cap = min(w.meta['vm'] for w in ws)
                    for w in ws:
                        w.meta['vm_cap'] = cap
        if cfg.xp:
            def drop(i):
                t = i.text
                if 'd' in cfg.xp and i.kind == 'dma' and rng('s', sQ, 4) in t and s(sQT2) in t: return True
                if 'w' in cfg.xp and t.startswith('ds_write_b128 %s' % v(T(5))): return True
                if 'v' in cfg.xp and i.kind == 'valu' and any(r in (v(T(k)) for k in range(5)) for r in i.wrregs()) and i.gap is not None and i.gap > self.pstart[12] and i.gap < self.pstart[174]: return True
                if 's' in cfg.xp and i.kind == 'vstore' and s(sOSO) in t: return True
                if 'r' in cfg.xp and t.startswith('ds_read_b128 v') and v(T(8)) in t: return True
                return False
            prog0 = [i for i in prog0 if not drop(i)]
            insert_waits(prog0)
            for l0, l1 in (cfg.loopA, cfg.loopB):
                for ph in range(cfg.U):
                    ws = [self.barwait[J] for J in range(l0 + ph, l1, cfg.U) if self.barwait[J].kind == 'wait']
                    for w in ws:
                        w.meta.pop('vm_cap', None)
            insert_waits(prog0)
            for l0, l1 in (cfg.loopA, cfg.loopB):
                for ph in range(cfg.U):
                    ws = [self.barwait[J] for J in range(l0 + ph, l1, cfg.U) if self.barwait[J].kind == 'wait']
                    cap = min(w.meta['vm'] for w in ws)
                    for w in ws:
                        w.meta['vm_cap'] = cap
        prog = insert_waits(prog0)
        if cfg.pk_tail:
            prog = self.pack_tail_muls(prog)
        prog, nn = fix_hazards(prog, verbose=cfg.debug)
        errs = check_tags(prog) if not cfg.xp else 0
        assert errs == 0, errs
        self.check_m0(prog)
        self.gaps = gaps
        self.prog = prog
        self.nnops = nn
        return prog

    def pack_tail_muls(self, prog):
        import re
        last = max(i for i, x in enumerate(prog) if x.kind == 'mfma')
        if self.cfg.final_T or self.cfg.pk_dumps:
            last = -1
        out = prog[:last + 1]
        rest = prog[last + 1:]
        i = 0
        pat = re.compile(r'v_mul_f32 v(\d+), v(\d+), v(\d+)$')
        inrun = False
        while i < len(rest):
            x = rest[i]
            m = pat.match(x.text)
            if m and i + 1 < len(rest):
                m2 = pat.match(rest[i + 1].text)
                d, r, sx = int(m.group(1)), int(m.group(2)), int(m.group(3))
                run = 0
                while i + run < len(rest) and pat.match(rest[i + run].text):
                    run += 1
                if m2 and d == sx and d % 2 == 0 and int(m2.group(1)) == d + 1 and int(m2.group(3)) == d + 1 \
                        and int(m2.group(2)) == r and d < 192 and (run >= 8 or inrun):
                    inrun = True
                    base = r & ~1
                    sel = 'op_sel_hi:[1,0]' if r % 2 == 0 else 'op_sel:[0,1] op_sel_hi:[1,1]'
                    y = rest[i + 1]
                    p = Ins('v_pk_mul_f32 v[%d:%d], v[%d:%d], v[%d:%d] %s' % (d, d + 1, d, d + 1, base, base + 1, sel),
                            'valu', x.rd + y.rd, x.wr + y.wr)
                    out.append(p)
                    i += 2
                    continue
            inrun = False
            out.append(x)
            i += 1
        return out

    def check_m0(self, prog):
        lastm0 = None
        used = set()
        for ins in prog:
            if 'm0' in ins.wrregs():
                lastm0 = ins
            if ins.meta.get('composite'):
                lastm0 = None
                continue
            if ins.kind == 'dma':
                assert lastm0 is not None and lastm0.uid not in used, ('M0 reuse', ins.text)
                for d, _ in ins.deps:
                    if 'm0' in d.wrregs():
                        assert d is lastm0, ('M0 clobbered', ins.text)
                used.add(lastm0.uid)

    def roll(self):
        cfg = self.cfg
        prog = self.prog
        segs = []
        cur = []
        names = ['pre']
        for ins in prog:
            cur.append(ins)
            if ins.kind == 'mfma' and 'tile_start' in ins.meta:
                segs.append(cur)
                cur = []
                names.append(ins.meta['tile_start'])
        segs.append(cur)
        seg = dict(zip(names, segs))
        txt = lambda J: [i.text for i in seg[J]]
        U = cfg.U
        loops = [cfg.loopA, cfg.loopB]
        for l0, l1 in loops:
            assert (l1 - l0) % U == 0, (l0, l1)
            for J in range(l0, l1):
                ref = txt(l0 + (J - l0) % U)
                if txt(J) != ref:
                    x, y = txt(J), ref
                    for i in range(min(len(x), len(y))):
                        if x[i] != y[i]:
                            print('tile', J, 'differs at', i, x[i], '|', y[i])
                            break
                    raise Exception('tile %d not periodic' % J)
        out = []
        nst = [0]

        def stamp(real=False, late=False):
            if not cfg.stamps or (late and cfg.start_stamps):
                return
            k = 64 + 2 * nst[0]
            nst[0] += 1
            out.append('    s_waitcnt lgkmcnt(0)')
            out.append('    %s s[%d:%d]' % ('s_memrealtime' if real else 's_memtime', k, k + 1))
            out.append('    s_waitcnt lgkmcnt(0)')

        def fmt(i):
            if cfg.bar_stamps and i.meta.get('tile_wait') is not None and i.kind == 'wait':
                return ['    s_waitcnt lgkmcnt(0)', '    s_memtime s[96:97]', '    s_waitcnt lgkmcnt(0)', '    ' + i.text,
                        '    s_memtime s[98:99]', '    s_waitcnt lgkmcnt(0)',
                        '    s_sub_u32 s98, s98, s96', '    s_add_u32 s100, s100, s98']
            if cfg.bar_stamps and i.kind == 'bar' and 'assert_lg_done' in i.meta:
                return ['    s_memtime s[96:97]', '    s_waitcnt lgkmcnt(0)', '    s_barrier',
                        '    s_memtime s[98:99]', '    s_waitcnt lgkmcnt(0)',
                        '    s_sub_u32 s98, s98, s96', '    s_add_u32 s101, s101, s98']
            return [i.text if i.kind == 'label' else '    ' + i.text]

        def emit(J):
            if J in cfg.stamp_tiles:
                stamp()
            lastm = max([k_ for k_, i in enumerate(seg[J]) if i.kind == 'mfma'] + [-1])
            for k_, i in enumerate(seg[J]):
                if cfg.stamps and i.meta.get('stamp'):
                    stamp()
                out.extend(fmt(i))
                if J == NT - 1 and k_ == lastm and cfg.stamp_tiles:
                    stamp()
        stamp(True)
        stamp()
        if cfg.bar_stamps:
            out.append('    s_mov_b32 s100, 0')
            out.append('    s_mov_b32 s101, 0')
        emit('pre')
        J = 1
        for li, (l0, l1) in enumerate(loops):
            while J < l0:
                emit(J)
                J += 1
            stamp(late=li > 0)
            out.append('    s_mov_b32 %s, %d' % (s(sCNT), (l1 - l0) // U - 1))
            out.append('L_loop%d:' % li)
            for r in range(U):
                sg = seg[l0 + r]
                lines = [fmt(i) for i in sg]
                if r == U - 1:
                    idx = [k for k, i in enumerate(sg) if i.kind == 'mfma']
                    k = idx[-2]
                    for i in sg[k + 1:]:
                        assert 'scc' not in i.wrregs(), i.text
                    lines.insert(k + 1, ['    s_sub_u32 %s, %s, 1' % (s(sCNT), s(sCNT))])
                    lines.append(['    s_cbranch_scc0 L_loop%d' % li])
                for x in lines:
                    out.extend(x)
            stamp(late=True)
            J = l1
        while J < NT:
            emit(J)
            J += 1
        stamp()
        if cfg.stamps:
            out.append('    s_waitcnt vmcnt(0)')
            stamp()
            stamp(True)
            if cfg.dbg_wg is not None:
                n_ = nst[0]
                out.append('    s_cmp_lg_u32 s2, %d' % cfg.dbg_wg)
                out.append('    s_cbranch_scc1 L_nodbg')
                out.append('    s_cmp_lg_u32 %s, 0' % s(sW))
                out.append('    s_cbranch_scc1 L_nodbg')
                out.append('    s_load_dwordx2 s[44:45], s[0:1], 32')
                out.append('    s_waitcnt lgkmcnt(0)')
                out.append('    s_and_b32 s45, s45, 0xffff')
                out.append('    s_mov_b32 s46, 256')
                out.append('    s_mov_b32 s47, 0x20000')
                out.append('    s_mov_b64 s[32:33], exec')
                out.append('    s_mov_b64 exec, 1')
                out.append('    v_mov_b32 v1, 0')
                vals = [('s%d' % (64 + 2 * (n_ - 1)), 's64')] + [('s%d' % (64 + 2 * (n_ - 2)), 's66')]
                vals += [('s%d' % (64 + 2 * (k + 1)), 's%d' % (64 + 2 * k)) for k in range(1, n_ - 2)]
                for k, (x, y) in enumerate(vals):
                    out.append('    s_sub_u32 s3, %s, %s' % (x, y))
                    out.append('    v_mov_b32 v0, s3')
                    out.append('    buffer_store_dword v0, v1, s[44:47], 0 offen offset:%d' % (4 * k))
                    out.append('    s_waitcnt vmcnt(0)')
                out.append('    s_mov_b64 exec, s[32:33]')
                out.append('L_nodbg:')
            out.append('    s_load_dwordx2 s[44:45], s[0:1], 40')
            out.append('    s_waitcnt lgkmcnt(0)')
            out.append('    s_and_b32 s45, s45, 0xffff')
            out.append('    s_mov_b32 s46, 0x100000')
            out.append('    s_mov_b32 s47, 0x20000')
            out.append('    s_lshl_b32 s3, s2, 2')
            out.append('    s_add_u32 s3, s3, %s' % s(sW))
            out.append('    s_lshl_b32 s3, s3, 7')
            extra = [100, 101] if cfg.bar_stamps else []
            for k, sr in enumerate([64 + 2 * k for k in range(nst[0])] + extra):
                out.append('    v_mov_b32 v0, s%d' % sr)
                out.append('    v_mov_b32 v1, s3')
                out.append('    s_mov_b64 s[32:33], exec')
                out.append('    s_mov_b64 exec, 1')
                out.append('    buffer_store_dword v0, v1, s[44:47], 0 offen offset:%d' % (4 * k))
                out.append('    s_waitcnt vmcnt(0)')
                out.append('    s_mov_b64 exec, s[32:33]')
        out.append('    s_or_b64 s[54:55], %s, %s' % (rng('s', sFLAG[0], 2), rng('s', sFLAG[1], 2)))
        out.append('    s_cbranch_scc1 L_slow')
        out.append('L_done:')
        out.append('    s_endpgm')
        out.append('L_code_end:')
        for l in self.slowpath():
            out.append(l if l.endswith(':') else '    ' + l)
        return out, seg


HEADER = """; Kernarg layout for this problem (48 bytes, ptrs only, base s[0:1]):
; @launch grid=(256,1,1) block=(256,1,1) lds=%d
.amdgcn_target "amdgcn-amd-amdhsa--gfx950"
.text
.globl NAME_kernel
.p2align 8
.type NAME_kernel,@function
NAME_kernel:
"""
FOOTER = """
.section .rodata,"a"
.p2align 6
.amdhsa_kernel NAME_kernel
  .amdhsa_next_free_vgpr 512
  .amdhsa_next_free_sgpr 102
  .amdhsa_accum_offset 256
  .amdhsa_group_segment_fixed_size 0
  .amdhsa_kernarg_size 48
  .amdhsa_user_sgpr_count 2
  .amdhsa_user_sgpr_kernarg_segment_ptr 1
  .amdhsa_system_sgpr_workgroup_id_x 1
.end_amdhsa_kernel
"""


def generate(cfg):
    g = Gen(cfg)
    g.build()
    lines, seg = g.roll()
    lds = LDS_BYTES
    src = (HEADER % lds).replace('NAME', NAME) + '\n'.join(lines) + '\n' + FOOTER.replace('NAME', NAME)
    return src, g, seg


if __name__ == '__main__':
    cfg = Cfg()
    out = sys.argv[1] if len(sys.argv) > 1 else 'cdna_kernels/%s.s' % NAME
    for kv in sys.argv[2:]:
        k, val = kv.split('=')
        setattr(cfg, k, eval(val))
    src, g, seg = generate(cfg)
    open(out, 'w').write(src)
    print('nops inserted', g.nnops, 'total est cycles', est_cycles(g.prog), 'lines', src.count('\n'))
    print(' '.join('%s:%d' % (J, est_cycles(seg[J])) for J in seg))
```

```python
import sys, os, struct
from sched import *

NAME = 'standalone__gqa_softmax__near_ridge'


class Cfg:
    R = 3
    D = 3
    U = 3
    LAT = 7
    loopA = (2, 29)
    loopB = (34, 61)
    thr = 0x4b800000
    debug = False
    stamps = False
    nt = ' nt'
    st_mod = ' nt sc1'
    st_mod2 = ' nt sc1'
    no_dma = False
    no_qb = False
    no_drain = False
    pair_cvt = True
    x_pad = 0
    st_after_dma = False
    oswz = True
    stamp_tiles = ()
    st_pace = 16
    pk_dumps = True
    final_T = 0
    code_pf = True
    p2_early = False
    conv_asap = True
    qa_lds = False
    qa_init = 2
    qplan = {0: [], 1: [1], 2: [2]}
    pk_tail = True
    tail_lds = True
    fullline = True
    vmap = True
    exp_odd = True
    order = 'g44'
    qdepth = 2
    tplan = {1: [1], 4: [2]}
    v0_late = False
    start_stamps = False
    dbg_wg = None
    xp = ''
    bar_stamps = False
    dma_early = True
    qrd_lat = 10


SLOT = 16896
KOFF, VOFF = 0, 8448
CH = 1056
NT = 64
NS = NT * 6
DUMMY = 3 * SLOT
STAGE0 = DUMMY + 3 * CH
STAGEW = 24 * CH
LDS_BYTES = STAGE0 + 4 * STAGEW
C_SCALE = 1.4426950408889634 * (128 ** -0.5)


def f32bits(x):
    return struct.unpack('<I', struct.pack('<f', x))[0]


def O(b, t): return 32 * b + 4 * t
def S(buf, u): return 192 + 8 * buf + 4 * u
def P(buf): return 208 + 4 * buf
def CI(b): return 216 + 4 * b
vIDX, vK, vV, vDMA = 240, 241, 242, 243
def T(i): return 244 + i
vQ, vO = T(10), T(11)
def Q(b, s): return 16 * b + 4 * s
def KF(u, s): return 96 + 16 * u + 4 * s
def VF(t): return 128 + 4 * t
def L(k): return 160 + 4 * k
SA = 172
def QR(b, s): return 176 + 16 * b + 4 * s
def qoff(b): return 8192 * (b >> 1) + 512 * (b & 1)

sK, sV, sQ, sO = 4, 8, 12, 16
sDOFF, sDLDS, sSLOT, sDELTA, sWPART, sTMP, sW, sIDX = 20, 21, 22, 23, 24, 25, 26, 27
sC, sTHR, sMASK = 28, 30, 31
sFLAG = [34, 36]
sCNT, sPHASE, sQOFF, sOOFF = 38, 39, 40, 41
sWPARTV = 21
sSTG, sQI, sQREL, sQM, sQSO, sQT, sQT2 = 42, 44, 45, 46, 47, 48, 49
sOI, sOSO, sOT, sOT2, sOINC = 50, 51, 32, 33, 62


def v(n): return 'v%d' % n
def a(n): return 'a%d' % n
def s(n): return 's%d' % n


def V_(text, rd=(), wr=(), kind='valu'):
    return Ins(text, kind, rd, wr)


def S_(text, rd=(), wr=()):
    return Ins(text, 'salu', rd, list(wr) + ['scc'])


class Gen:
    def __init__(self, cfg):
        self.cfg = cfg
        self.bb = []
        self.flex = []
        self.iQK = {}
        self.iPV = {}
        self.iZ = {}
        self.pos = {}
        self.pstart = {}
        self.pend_ = {}

    def slot(self, n):
        Tf = self.cfg.final_T
        n0 = 6 * (NT - Tf)
        if Tf == 0 or n < n0:
            return n // 6, n % 6
        m = n - n0
        return NT - Tf + (m % (2 * Tf)) // 2, 2 * (m // (2 * Tf)) + (m & 1)

    def lds_base(self, J):
        if self.cfg.final_T == 3 and J == NT - 1:
            return STAGE0
        return (J % self.cfg.R) * SLOT

    def mk_qk(self, n, u, st):
        J, b = self.slot(n)
        j = J % 32
        d = S(n & 1, u)
        h = n // 192
        rd = [(a(KF(u, st) + i), ('K', J, u, st, i)) for i in range(4)]
        rd += [(a(Q(b, st) + i), ('Q', h, b, st, i)) for i in range(4)]
        if st == 0:
            if j == 0:
                c = '0'
                srcc = []
            else:
                c = rng('v', CI(b), 4)
                srcc = regs('v', CI(b), 4)
                rd += [(r, ('CI', h, b)) for r in srcc]
        else:
            c = rng('v', d, 4)
            srcc = regs('v', d, 4)
            rd += [(v(d + i), ('Sp', n, u, st - 1, i)) for i in range(4)]
        tag = 'Sp' if st < 3 else 'S'
        wr = [(v(d + i), (tag, n, u, st, i) if st < 3 else ('S', n, u, i)) for i in range(4)]
        m = Ins('v_mfma_f32_16x16x32_bf16 %s, %s, %s, %s' % (rng('v', d, 4), rng('a', KF(u, st), 4),
                                                          rng('a', Q(b, st), 4), c),
                'mfma', rd, wr, srcc=srcc)
        m.meta['cls'] = 'xdl'
        return m

    def mk_pv(self, n, t):
        J, b = self.slot(n)
        j = J % 32
        h = n // 192
        d = O(b, t)
        rd = [(a(VF(t) + i), ('V', J, t, i)) for i in range(4)]
        rd += [(v(P(n & 1) + i), ('P', n, i)) for i in range(4)]
        if j == 0:
            c = '0'
            srcc = []
        else:
            c = rng('v', d, 4)
            srcc = regs('v', d, 4)
            rd += [(v(d + i), ('O', h, b, t, j - 1, i)) for i in range(4)]
        wr = [(v(d + i), ('O', h, b, t, j, i)) for i in range(4)]
        m = Ins('v_mfma_f32_16x16x32_bf16 %s, %s, %s, %s' % (rng('v', d, 4), rng('a', VF(t), 4),
                                                          rng('v', P(n & 1), 4), c),
                'mfma', rd, wr, srcc=srcc)
        m.meta['cls'] = 'xdl'
        return m

    def mk_z(self, p):
        n0 = p - 2
        h, j, k = n0 // 192, self.slot(n0)[0] % 32, self.slot(n0)[1] // 2
        d = L(k)
        rd = [(v(P(0) + i), ('P', n0, i)) for i in range(4)] + [(v(P(1) + i), ('P', n0 + 1, i)) for i in range(4)]
        rd += [(a(SA + i), 'SA') for i in range(4)] + [(v(vIDX), 'IDX')]
        rd += [(a(d + i), ('L', h, k, j - 1, i)) for i in range(4)]
        wr = [(a(d + i), ('L', h, k, j, i)) for i in range(4)]
        m = Ins('v_smfmac_f32_16x16x64_bf16 %s, %s, %s, %s' % (rng('a', d, 4), rng('a', SA, 4),
                                                            rng('v', P(0), 8), v(vIDX)),
                'mfma', rd, wr, srcc=regs('a', d, 4))
        m.meta['cls'] = 'smf'
        return m

    def build_backbone(self):
        bb = self.bb
        for p in range(-1, NS + 1):
            qk = p + 1 if p + 1 < NS else None
            pv = p - 1 if 0 <= p - 1 < NS else None
            z = p >= 2 and p % 2 == 0
            self.pstart[p] = len(bb)
            seq = []
            qs = [('q', i >> 2, i & 3) for i in range(8)] if qk is not None else []
            ps = [('p', i) for i in range(8)] if pv is not None else []
            if self.cfg.order == 'alt' or not qs or not ps:
                for i in range(8):
                    seq += qs[i:i + 1] + ps[i:i + 1]
            elif self.cfg.order == 'g44':
                seq = qs[:4] + ps[:4] + qs[4:] + ps[4:]
            elif self.cfg.order == 'g88':
                seq = qs + ps
            zfirst = self.cfg.order != 'alt'
            zdone = not z
            npos = 0
            for it in seq:
                if it[0] == 'p' and not zdone and zfirst and qs:
                    self.iZ[p] = len(bb)
                    bb.append(self.mk_z(p))
                    zdone = True
                if it[0] == 'q':
                    m = self.mk_qk(qk, it[1], it[2])
                    self.iQK[(qk, it[1], it[2])] = len(bb)
                else:
                    m = self.mk_pv(pv, it[1])
                    self.iPV[(pv, it[1])] = len(bb)
                self.pos[(p, npos)] = len(bb)
                npos += 1
                bb.append(m)
                if it[0] == 'p' and not zdone:
                    self.iZ[p] = len(bb)
                    bb.append(self.mk_z(p))
                    zdone = True
            self.pend_[p] = len(bb) - 1
        for J in range(1, NT):
            k = self.pstart[6 * J]
            bb[k].meta['tile_start'] = J
            bb[k].meta['reserve_scal'] = True
            bb[k - 1].meta['reserve_scal'] = True

    def reserve_wait_slots(self):
        for J in range(1, NT):
            for u in range(2):
                for st in range(4):
                    self.bb[self.iQK[(6 * J, u, st)] - 1].meta['reserve_scal'] = True
        for J in range(0, NT):
            for t in range(8):
                self.bb[self.iPV[(6 * J, t)] - 1].meta['reserve_scal'] = True
        for n in range(6 * (NT - self.cfg.final_T) + 1, NS):
            if self.cfg.final_T and self.slot(n)[0] != self.slot(n - 1)[0]:
                for u in range(2):
                    for st in range(4):
                        self.bb[self.iQK[(n, u, st)] - 1].meta['reserve_scal'] = True
                for t in range(8):
                    self.bb[self.iPV[(n, t)] - 1].meta['reserve_scal'] = True

    def add(self, ins, lo=None, hi=None, deps=(), prio=0):
        ins.lo, ins.hi, ins.prio = lo, hi, prio
        ins.deps = [d if isinstance(d, tuple) else (d, 0) for d in deps if d is not None]
        self.flex.append(ins)
        return ins

    def softmax(self):
        lastcvt = {}
        for n in range(NS):
            j, b, h = self.slot(n)[0] % 32, self.slot(n)[1], n // 192
            buf = n & 1
            sr = [S(buf, u) + i for u in range(2) for i in range(4)]
            firstpv = self.iPV[(n, 0)]
            normal = j != 0 and (n, 15) in self.pos and n + 2 < NS
            stag = [('S', n, r >> 2, r & 3) for r in range(8)]
            pre = None
            if j == 0:
                t0, t1 = T(0), T(1)
                lo0 = self.iQK[(n, 0, 3)] + 4
                lo1 = self.iQK[(n, 1, 3)] + 4
                prevuse = self.t0_last if hasattr(self, 't0_last') else None
                c = self.add(V_('v_max3_f32 %s, %s, %s, %s' % (v(t0), v(sr[0]), v(sr[1]), v(sr[2])),
                                [(v(sr[i]), stag[i]) for i in range(3)], [(v(t0), ('m0', n))]), lo=lo0,
                             deps=[prevuse])
                c = self.add(V_('v_max_f32 %s, %s, %s' % (v(t0), v(t0), v(sr[3])),
                                [(v(t0), ('m0', n)), (v(sr[3]), stag[3])], [(v(t0), ('m1', n))]), lo=lo0, deps=[c])
                c = self.add(V_('v_max3_f32 %s, %s, %s, %s' % (v(t0), v(t0), v(sr[4]), v(sr[5])),
                                [(v(t0), ('m1', n)), (v(sr[4]), stag[4]), (v(sr[5]), stag[5])],
                                [(v(t0), ('m2', n))]), lo=lo1, deps=[c])
                c = self.add(V_('v_max3_f32 %s, %s, %s, %s' % (v(t0), v(t0), v(sr[6]), v(sr[7])),
                                [(v(t0), ('m2', n)), (v(sr[6]), stag[6]), (v(sr[7]), stag[7])],
                                [(v(t0), ('m3', n))]), lo=lo1, deps=[c])
                c = self.add(V_('v_mov_b32 %s, %s' % (v(t1), v(t0)), [(v(t0), ('m3', n))], [(v(t1), ('m3c', n))]),
                             deps=[c], lo=lo1)
                c = self.add(V_('v_permlane16_swap_b32 %s, %s' % (v(t0), v(t1)),
                                [(v(t0), ('m3', n)), (v(t1), ('m3c', n))],
                                [(v(t0), ('m4a', n)), (v(t1), ('m4b', n))], kind='perm'), deps=[(c, 1)], lo=lo1)
                c = self.add(V_('v_max_f32 %s, %s, %s' % (v(t0), v(t0), v(t1)),
                                [(v(t0), ('m4a', n)), (v(t1), ('m4b', n))], [(v(t0), ('m5', n))]), deps=[c], lo=lo1)
                c = self.add(V_('v_mov_b32 %s, %s' % (v(t1), v(t0)), [(v(t0), ('m5', n))], [(v(t1), ('m5c', n))]),
                             deps=[c], lo=lo1)
                c = self.add(V_('v_permlane32_swap_b32 %s, %s' % (v(t0), v(t1)),
                                [(v(t0), ('m5', n)), (v(t1), ('m5c', n))],
                                [(v(t0), ('m6a', n)), (v(t1), ('m6b', n))], kind='perm'), deps=[(c, 1)], lo=lo1)
                cis = []
                for i in range(4):
                    c = self.add(V_('v_min_f32 %s, -%s, -%s' % (v(CI(b) + i), v(t0), v(t1)),
                                    [(v(t0), ('m6a', n)), (v(t1), ('m6b', n))], [(v(CI(b) + i), ('CI', h, b))]),
                                 deps=[c], lo=lo1)
                    cis.append(c)
                self.t0_last = cis[-1]
                for cc in cis:
                    cc.hi = self.iQK[(n + 6, 0, 0)] - 2
                pre = []
                for r in range(8):
                    c = self.add(V_('v_add_f32 %s, %s, %s' % (v(sr[r]), v(CI(b)), v(sr[r])),
                                    [(v(CI(b)), ('CI', h, b)), (v(sr[r]), stag[r])], [(v(sr[r]), ('Ss', n, r))]),
                                 deps=[cis[0]], lo=lo1)
                    pre.append(c)
                stag = [('Ss', n, r) for r in range(8)]
            exps = []
            for r in range(8):
                e = V_('v_exp_f32 %s, %s' % (v(sr[r]), v(sr[r])), [(v(sr[r]), stag[r])],
                       [(v(sr[r]), ('E', n, r))], kind='trans')
                if normal:
                    g = self.pos[(n, 2 * r + (1 if self.cfg.exp_odd else 0))]
                    self.add(e, lo=g, hi=g, prio=5)
                else:
                    lo = self.iQK[(n, r >> 2, 3)] + 4
                    self.add(e, lo=lo, deps=[pre[r]] if pre else [])
                exps.append(e)
            for i in range(4):
                c = V_('v_cvt_pk_bf16_f32 %s, %s, %s' % (v(P(buf) + i), v(sr[2 * i]), v(sr[2 * i + 1])),
                       [(v(sr[2 * i]), ('E', n, 2 * i)), (v(sr[2 * i + 1]), ('E', n, 2 * i + 1))],
                       [(v(P(buf) + i), ('P', n, i))])
                lo = 0
                if n >= 2:
                    lo = self.iPV[(n - 2, 7)]
                    zp = n if n % 2 == 0 else n - 1
                    zp = (n - 2) - ((n - 2) % 2) + 2
                    lo = max(lo, self.iZ[zp])
                if normal:
                    if self.cfg.exp_odd:
                        g = self.pos[(n, 8)] if i < 2 else self.pstart[n + 1]
                    else:
                        g = self.pos[(n, (8 * (i >> 1) + 7) if self.cfg.pair_cvt else 4 * i + 3)]
                    assert g >= lo
                    self.add(c, lo=g, hi=g, deps=[(exps[2 * i], 1), (exps[2 * i + 1], 1)], prio=5)
                else:
                    hi = firstpv - 2
                    if n + 2 < NS:
                        hi = min(hi, self.iQK[(n + 2, i >> 1, 0)] - 1)
                    self.add(c, lo=lo, hi=hi, deps=[(exps[2 * i], 1), (exps[2 * i + 1], 1)])

    def inloop(self, J):
        return any(a_ <= J < b_ for a_, b_ in (self.cfg.loopA, self.cfg.loopB))

    def dma_group(self, JJ, lo, hi, deps, which=(0, 1, 2, 3)):
        cfg = self.cfg
        prev = self.m0chain
        base = self.lds_base(JJ)
        for i in which:
            off = (0, 32, VOFF, VOFF + (8 if cfg.vmap else 32))[i]
            wp = sWPART
            m = S_('s_add_u32 m0, %s, %d' % (s(wp), base + off), [s(wp)], ['m0'])
            self.add(m, lo=lo, hi=hi, deps=list(deps) + ([(prev, 1)] if prev else []))
            srd = sK if i < 2 else sV
            dma = Ins('buffer_load_dwordx4 %s, %s, %s offen%s%s lds' % (
                v(vDMA), rng('s', srd, 4), s(sDOFF), ' offset:1024' if i & 1 else '', cfg.nt), 'dma',
                [v(vDMA), 'm0', s(sDOFF)] + regs('s', srd, 4), [])
            dma.meta['tile'] = JJ
            self.add(dma, lo=lo, hi=hi, deps=[(m, 1)] + list(deps))
            prev = dma
        self.m0chain = prev
        self.lastdma[JJ] = prev
        return prev

    def kv_stream(self):
        cfg = self.cfg
        R, D = cfg.R, cfg.D
        self.bar = {}
        self.barwait = {}
        kreads = {}
        chain = None
        JF = NT - cfg.final_T
        for J in range(0, NT):
            if cfg.final_T and J > JF:
                break
            p3 = 6 * J + 3
            last = J == NT - 1
            if cfg.loopA[0] - 1 <= J < cfg.loopA[1] and not cfg.no_qb:
                self.q_stage_tile(J, dma_only=J < cfg.loopA[0])
            if cfg.loopB[0] <= J < cfg.loopB[1] and not cfg.no_drain:
                self.o_drain_tile(J)
            vr = []
            for t in range(8):
                for pp in range(2):
                    d = VF(t) + 2 * pp
                    ins = Ins('ds_read_b64_tr_b16 %s, %s offset:%d' % (
                        rng('a', d, 2), v(vV), self.lds_base(J) + 512 * pp +
                        ((64 * (t >> 1) + 8 * (t & 1)) if cfg.vmap else 32 * t)),
                        'ds', [v(vV)], [(a(d + i), ('V', J, t, 2 * pp + i)) for i in range(2)])
                    lo_ = self.iPV[(6 * J - 1, t)] if J > 0 else 0
                    hi_ = self.iPV[(6 * J, t)] - cfg.LAT
                    if J > 0:
                        deps = [(self.bar[J - 1], 0)]
                    else:
                        deps = [(self.bar_v0, 0)]
                        lo_ = max(lo_, self.bar_v0.lo)
                    self.add(ins, lo=lo_, hi=max(hi_, lo_), deps=deps)
                    vr.append(ins)
            if cfg.final_T and J == JF:
                self.kv_final(JF)
                break
            if last:
                break
            e = self.pend_[p3]
            w = Ins('s_waitcnt vmcnt(0)', 'wait')
            w.meta['tile_wait'] = J + 1 if not last else 'all'
            self.add(w, lo=e - 2, hi=e - 1)
            bar = Ins('s_barrier', 'bar')
            bar.meta['assert_lg_done'] = set(vr) | set(kreads.get(J, []))
            self.add(bar, lo=e - 1, hi=e, deps=[(w, 1)])
            self.bar[J] = bar
            self.barwait[J] = w
            if cfg.start_stamps and J < 2:
                bar.meta['stamp'] = True
            if last:
                break
            kr = []
            for u in range(2):
                for st in range(4):
                    d = KF(u, st)
                    ins = Ins('ds_read_b128 %s, %s offset:%d' % (
                        rng('a', d, 4), v(vK), self.lds_base(J + 1) + 512 * u + 64 * st), 'ds',
                        [v(vK)], [(a(d + i), ('K', J + 1, u, st, i)) for i in range(4)])
                    lo_ = self.iQK[(6 * J + 5, u, st)]
                    hi_ = self.iQK[(6 * J + 6, u, st)] - cfg.LAT
                    self.add(ins, lo=lo_, hi=max(hi_, lo_), deps=[(bar, 0)])
                    kr.append(ins)
            kreads[J + 1] = kr
            JJ = J + D
            if cfg.final_T == 3 and JJ == NT - 1:
                JJ = NT
            if JJ < NT and not (cfg.no_dma and self.inloop(J)):
                lo_ = self.pstart[6 * J + 5] - 2
                hi_ = self.pend_[6 * J + 5] - 1
                if cfg.dma_early:
                    lo_ = self.pend_[6 * J + 3]
                    hi_ = self.pstart[6 * J + 5] + 2
                if J == 0:
                    inc = self.doff_final
                else:
                    inc = self.add(S_('s_add_u32 %s, %s, 8192' % (s(sDOFF), s(sDOFF)), [s(sDOFF)], [s(sDOFF)]),
                                   lo=self.pstart[6 * J + 2] + 1, hi=self.pend_[6 * J + 3] - 3, deps=[(chain, 1)])
                chain = self.dma_group(JJ, lo_, hi_, [(bar, 1), (inc, 1)])
                prev_ = chain
                if cfg.st_after_dma and J == cfg.loopB[0] - 2 and not cfg.no_drain:
                    for q_ in range(2):
                        dl = Ins('buffer_store_dword %s, %s, %s, s61 offen' % (v(vDMA), v(vDMA), rng('s', sO, 4)), 'vstore',
                                 [v(vDMA)], [])
                        dl.meta['cost'] = 4
                        self.add(dl, lo=lo_, hi=self.pend_[6 * J + 5] + 2, deps=[(prev_, 1)])
                        prev_ = dl
                for st_, rd_ in self.pending_st.get(J, []):
                    self.add(st_, lo=lo_, hi=self.pend_[6 * J + 5] + 2,
                             deps=[(rd_, cfg.qrd_lat + 1), (self.od_scal, 1), (prev_, 1)])
                    prev_ = st_
                if cfg.final_T == 3 and JJ == NT - 2:
                    inc = self.add(S_('s_add_u32 %s, %s, 8192' % (s(sDOFF), s(sDOFF)), [s(sDOFF)], [s(sDOFF)]),
                                   lo=lo_, hi=hi_ + 12, deps=[(chain, 1)])
                    chain = self.dma_group(JJ + 1, lo_, hi_ + 24, [(inc, 1)])

    def kv_final(self, JF):
        cfg = self.cfg
        n0 = 6 * JF
        bars = {JF: self.bar[JF - 1]}
        for t in range(1, cfg.final_T):
            J = JF + t
            nfirst = n0 + 2 * t
            e = self.iQK[(nfirst - 1, 0, 0)] - 1
            w = Ins('s_waitcnt vmcnt(0)', 'wait')
            w.meta['vm_for'] = self.lastdma[J]
            self.add(w, lo=e - 2, hi=e - 1)
            bar = Ins('s_barrier', 'bar')
            self.add(bar, lo=e - 1, hi=e, deps=[(w, 1)])
            bars[J] = bar
        allreads = []
        for n in range(n0 + 1, NS):
            J = self.slot(n)[0]
            if J == self.slot(n - 1)[0]:
                continue
            base = self.lds_base(J)
            for u in range(2):
                for st in range(4):
                    d = KF(u, st)
                    ins = Ins('ds_read_b128 %s, %s offset:%d' % (rng('a', d, 4), v(vK), base + 512 * u + 64 * st), 'ds',
                              [v(vK)], [(a(d + i), ('K', J, u, st, i)) for i in range(4)])
                    lo_ = self.iQK[(n - 1, u, st)]
                    hi_ = self.iQK[(n, u, st)] - cfg.LAT
                    self.add(ins, lo=lo_, hi=max(hi_, lo_), deps=[(bars[J], 0)])
                    allreads.append(ins)
            for t in range(8):
                for pp in range(2):
                    d = VF(t) + 2 * pp
                    ins = Ins('ds_read_b64_tr_b16 %s, %s offset:%d' % (
                        rng('a', d, 2), v(vV), base + 512 * pp +
                        ((64 * (t >> 1) + 8 * (t & 1)) if cfg.vmap else 32 * t)),
                        'ds', [v(vV)], [(a(d + i), ('V', J, t, 2 * pp + i)) for i in range(2)])
                    lo_ = self.iPV[(n - 1, t)]
                    hi_ = self.iPV[(n, t)] - cfg.LAT
                    self.add(ins, lo=lo_, hi=max(hi_, lo_), deps=[(bars[J], 0)])
                    allreads.append(ins)
        e = self.iPV[(NS - 2, 7)]
        bar = Ins('s_barrier', 'bar')
        bar.meta['assert_lg_done'] = set(allreads)
        self.add(bar, lo=e, hi=e + 2)

    def q_stage_tile(self, J, dma_only=False):
        cfg = self.cfg
        lo, hi = self.pstart[6 * J + 1] + 2, self.pend_[6 * J + 3] - 3
        prev = self.qs_chain

        def sc(ins, h=hi):
            nonlocal prev
            prev = self.add(ins, lo=lo, hi=h, deps=[(prev, 1)] if prev else [])
            return prev
        sc(S_('s_add_u32 %s, %s, 1' % (s(sQI), s(sQI)), [s(sQI)], [s(sQI)]))
        sc(S_('s_add_u32 %s, %s, %d' % (s(sQREL), s(sQREL), CH), [s(sQREL)], [s(sQREL)]))
        sc(S_('s_add_u32 %s, %s, 1024' % (s(sQSO), s(sQSO)), [s(sQSO)], [s(sQSO)]))
        sc(S_('s_sub_u32 %s, %s, 24' % (s(sQM), s(sQI)), [s(sQI)], [s(sQM)]))
        sc(S_('s_ashr_i32 %s, %s, 31' % (s(sQM), s(sQM)), [s(sQM)], [s(sQM)]))
        sc(S_('s_and_b32 %s, %s, %s' % (s(sQT), s(sQREL), s(sQM)), [s(sQREL), s(sQM)], [s(sQT)]))
        sc(S_('s_andn2_b32 %s, 0x40000000, %s' % (s(sQT2), s(sQM)), [s(sQM)], [s(sQT2)]))
        so = sc(S_('s_or_b32 %s, %s, %s' % (s(sQT2), s(sQT2), s(sQSO)), [s(sQT2), s(sQSO)], [s(sQT2)]))
        wlo, whi = self.pstart[6 * J + 5] - 3, self.pstart[6 * J + 5] + 3
        if cfg.dma_early:
            wlo, whi = self.pend_[6 * J + 3] - 4, self.pend_[6 * J + 3] + 2
        m = S_('s_add_u32 m0, %s, %d' % (s(sQT), DUMMY), [s(sQT)], ['m0'])
        self.add(m, lo=wlo, hi=whi, deps=[(so, 1)] + ([(self.m0chain, 1)] if self.m0chain else []))
        dma = Ins('buffer_load_dwordx4 %s, %s, %s offen%s lds' % (v(vDMA), rng('s', sQ, 4), s(sQT2), cfg.nt), 'dma',
                  [v(vDMA), 'm0', s(sQT2)] + regs('s', sQ, 4), [])
        self.add(dma, lo=wlo, hi=whi, deps=[(m, 1)])
        self.m0chain = dma
        self.qs_chain = dma
        if dma_only:
            return
        t0, tb, ad = T(0), T(4), T(5)
        key = ('qc', J)
        lo = self.pstart[6 * J + 1] + 8
        hi = self.pend_[6 * J + 3] - 3
        rd = Ins('ds_read_b128 %s, %s' % (rng('v', t0, 4), v(ad)), 'ds', [v(ad)],
                 [(v(t0 + i), (key, 'raw', i)) for i in range(4)])
        self.add(rd, lo=lo, hi=self.pstart[6 * J + 2] - 2, deps=[(self.qc_chain, 1)] if self.qc_chain else [])
        c = None
        lo2 = self.pstart[6 * J + 2] + 1
        for i in range(4):
            r = t0 + i
            c = self.add(V_('v_lshlrev_b32 %s, 16, %s' % (v(tb), v(r)), [(v(r), (key, 'raw', i))], [(v(tb), (key, 'b', i))]),
                         lo=lo2, deps=[(rd, cfg.qrd_lat), c] if c else [(rd, cfg.qrd_lat)])
            c = self.add(V_('v_and_b32 %s, %s, %s' % (v(r), s(sMASK), v(r)), [(v(r), (key, 'raw', i)), s(sMASK)],
                            [(v(r), (key, 'c', i))]), lo=lo2, deps=[c])
            c = self.add(V_('v_mul_f32 %s, %s, %s' % (v(tb), s(sC), v(tb)), [(v(tb), (key, 'b', i)), s(sC)],
                            [(v(tb), (key, 'd', i))]), lo=lo2, deps=[c])
            c = self.add(V_('v_mul_f32 %s, %s, %s' % (v(r), s(sC), v(r)), [(v(r), (key, 'c', i)), s(sC)],
                            [(v(r), (key, 'e', i))]), lo=lo2, deps=[c])
            c = self.add(V_('v_cvt_pk_bf16_f32 %s, %s, %s' % (v(r), v(tb), v(r)),
                            [(v(r), (key, 'e', i)), (v(tb), (key, 'd', i))], [(v(r), (key, 'f', i))]), lo=lo2, deps=[c])
        wr = Ins('ds_write_b128 %s, %s' % (v(ad), rng('v', t0, 4)), 'dsw',
                 [v(ad)] + [(v(t0 + i), (key, 'f', i)) for i in range(4)], [])
        self.add(wr, lo=lo2, hi=hi + 20, deps=[(c, 1)])
        up = self.add(V_('v_add_u32 %s, %d, %s' % (v(ad), CH, v(ad)), [v(ad)], [v(ad)]), lo=lo2, hi=hi + 24,
                      deps=[(wr, 0)])
        self.qc_chain = up
        self.qc_lastwrite = wr

    def o_drain_tile(self, J):
        cfg = self.cfg
        ph = (J - cfg.loopB[0]) % 3
        if ph == 0:
            lo, hi = self.pstart[6 * J] + 2, self.pend_[6 * J + 1]
            prev = self.od_chain

            def sc(ins):
                nonlocal prev
                prev = self.add(ins, lo=lo, hi=hi, deps=[(prev, 1)] if prev else [])
                return prev
            sc(S_('s_lshr_b32 %s, %s, 1' % (s(sOT), s(sOI)), [s(sOI)], [s(sOT)]))
            sc(S_('s_lshl_b32 %s, %s, 13' % (s(sOT), s(sOT)), [s(sOT)], [s(sOT)]))
            sc(S_('s_and_b32 %s, %s, 1' % (s(sOT2), s(sOI)), [s(sOI)], [s(sOT2)]))
            sc(S_('s_lshl_b32 %s, %s, 9' % (s(sOT2), s(sOT2)), [s(sOT2)], [s(sOT2)]))
            sc(S_('s_add_u32 %s, %s, %s' % (s(sOSO), s(sOT), s(sOT2)), [s(sOT), s(sOT2)], [s(sOSO)]))
            sc(S_('s_sub_u32 %s, %s, 6' % (s(sOT), s(sOI)), [s(sOI)], [s(sOT)]))
            sc(S_('s_ashr_i32 %s, %s, 31' % (s(sOT), s(sOT)), [s(sOT)], [s(sOT)]))
            sc(S_('s_andn2_b32 %s, 0x40000000, %s' % (s(sOT2), s(sOT)), [s(sOT)], [s(sOT2)]))
            sc(S_('s_or_b32 %s, %s, %s' % (s(sOSO), s(sOSO), s(sOT2)), [s(sOSO), s(sOT2)], [s(sOSO)]))
            sc(S_('s_and_b32 %s, %d, %s' % (s(sOINC), 2048 if cfg.oswz else 2 * CH, s(sOT)), [s(sOT)], [s(sOINC)]))
            sc(S_('s_add_u32 %s, %s, 1' % (s(sOI), s(sOI)), [s(sOI)], [s(sOI)]))
            self.od_scal = prev
            self.od_chain = prev
        if ph > 1:
            return
        ad = T(8)
        key = ('od', J)
        lo = self.pstart[6 * J + 2] + 1
        rds = []
        for q in range(2):
            t0 = T(4 * q)
            rd = Ins('ds_read_b128 %s, %s offset:%d' % (
                rng('v', t0, 4), v(ad), (1024 if cfg.oswz else 128 if cfg.fullline else CH) * q),
                     'ds', [v(ad)],
                     [(v(t0 + i), (key, q, i)) for i in range(4)])
            self.add(rd, lo=lo, hi=lo + 6, deps=[(self.od_st, 1)] if self.od_st else [])
            rds.append(rd)
        up = self.add(V_('v_add_u32 %s, %s, %s' % (v(ad), s(sOINC), v(ad)), [v(ad), s(sOINC)], [v(ad)]),
                      lo=lo, hi=self.pend_[6 * J + 3], deps=[(rds[0], 0), (rds[1], 0), (self.od_scal, 1)])
        for q in range(2):
            t0 = T(4 * q)
            st = Ins('buffer_store_dwordx4 %s, %s, %s, %s offen offset:%d%s' % (
                rng('v', t0, 4), v(vO), rng('s', sO, 4), s(sOSO),
                128 * ph + (256 if cfg.fullline else 64) * q, cfg.st_mod), 'vstore',
                [(v(t0 + i), (key, q, i)) for i in range(4)] + [v(vO), s(sOSO)] + regs('s', sO, 4), [])
            if cfg.st_after_dma:
                self.pending_st.setdefault(J, []).append((st, rds[q]))
            else:
                self.add(st, lo=lo + 10, hi=self.pend_[6 * J + 3] - 3,
                         deps=[(rds[q], cfg.qrd_lat + 1), (self.od_scal, 1)])
            self.od_st = st
        self.od_chain = self.od_st if ph == 1 else self.od_chain

    def o_write_addr(self, d0, d1, tmp, lo, hi, deps, tag):
        A = lambda t, rd, wr, dp: self.add(V_(t, rd, wr), lo=lo, hi=hi, deps=dp)
        c = A('v_bfe_u32 %s, %s, 4, 4' % (v(d0), v(vDMA)), [v(vDMA)], [v(d0)], deps)
        c = A('v_bfe_u32 %s, %s, 8, 2' % (v(tmp), v(vDMA)), [v(vDMA)], [v(tmp)], [c])
        c = A('v_xor_b32 %s, %s, %s' % (v(tmp), v(d0), v(tmp)), [v(d0), v(tmp)], [v(tmp)], [c])
        c = A('v_and_b32 %s, 7, %s' % (v(tmp), v(tmp)), [v(tmp)], [v(tmp)], [c])
        c = A('v_lshl_add_u32 %s, %s, 3, %s' % (v(d0), v(d0), v(tmp)), [v(d0), v(tmp)], [v(d0)], [c])
        c = A('v_lshlrev_b32 %s, 4, %s' % (v(d0), v(d0)), [v(d0)], [v(d0)], [c])
        c = A('v_xor_b32 %s, 64, %s' % (v(d1), v(d0)), [v(d0)], [v(d1)], [c])
        c1 = A('v_add_u32 %s, %s, %s' % (v(d1), s(sSTG), v(d1)), [s(sSTG), v(d1)], [(v(d1), tag + '1')], [c])
        c0 = A('v_add_u32 %s, %s, %s' % (v(d0), s(sSTG), v(d0)), [s(sSTG), v(d0)], [(v(d0), tag + '0')], [c1])
        return c0

    def o_read_addr(self, d, tmp, lo, hi, deps, tag):
        A = lambda t, rd, wr, dp: self.add(V_(t, rd, wr), lo=lo, hi=hi, deps=dp)
        c = A('v_bfe_u32 %s, %s, 7, 3' % (v(d), v(vDMA)), [v(vDMA)], [v(d)], deps)
        c = A('v_bfe_u32 %s, %s, 4, 3' % (v(tmp), v(vDMA)), [v(vDMA)], [v(tmp)], [c])
        c = A('v_xor_b32 %s, %s, %s' % (v(tmp), v(d), v(tmp)), [v(d), v(tmp)], [v(tmp)], [c])
        c = A('v_lshl_add_u32 %s, %s, 3, %s' % (v(d), v(d), v(tmp)), [v(d), v(tmp)], [v(d)], [c])
        c = A('v_lshlrev_b32 %s, 4, %s' % (v(d), v(d)), [v(d)], [v(d)], [c])
        return A('v_add_u32 %s, %s, %s' % (v(d), s(sSTG), v(d)), [s(sSTG), v(d)], [(v(d), tag) if tag else v(d)], [c])

    def epilogue(self, h):
        cfg = self.cfg
        self.st_last = None
        self.st_prev = None
        if h == 1 and cfg.tail_lds:
            assert cfg.vmap and cfg.fullline
            lo_ = self.pstart[6 * cfg.loopB[1]] + 2
            hi_ = self.pstart[6 * 62]
            t0_ = T(0)
            if cfg.oswz:
                self.tr_addr = self.o_read_addr(T(9), t0_, lo_, hi_, [], 'traddr')
                self.tw_addr = self.o_write_addr(T(8), T(7), t0_, lo_, hi_, [self.tr_addr], 'twaddr')
            else:
                c = self.add(V_('v_bfe_u32 %s, %s, 4, 3' % (v(t0_), v(vDMA)), [v(vDMA)], [v(t0_)]), lo=lo_, hi=hi_)
                c = self.add(V_('v_lshrrev_b32 %s, 2, %s' % (v(T(9)), v(t0_)), [v(t0_)], [v(T(9))]), lo=lo_, hi=hi_, deps=[c])
                c = self.add(V_('v_mul_u32_u24 %s, %d, %s' % (v(T(9)), CH, v(T(9))), [v(T(9))], [v(T(9))]), lo=lo_, hi=hi_, deps=[c])
                c = self.add(V_('v_and_b32 %s, 3, %s' % (v(t0_), v(t0_)), [v(t0_)], [v(t0_)]), lo=lo_, hi=hi_, deps=[c])
                c = self.add(V_('v_lshl_add_u32 %s, %s, 8, %s' % (v(T(9)), v(t0_), v(T(9))), [v(t0_), v(T(9))], [v(T(9))]), lo=lo_, hi=hi_, deps=[c])
                c = self.add(V_('v_bfe_u32 %s, %s, 7, 3' % (v(t0_), v(vDMA)), [v(vDMA)], [v(t0_)]), lo=lo_, hi=hi_, deps=[c])
                c = self.add(V_('v_lshl_add_u32 %s, %s, 4, %s' % (v(T(9)), v(t0_), v(T(9))), [v(t0_), v(T(9))], [v(T(9))]), lo=lo_, hi=hi_, deps=[c])
                self.tr_addr = self.add(V_('v_add_u32 %s, %s, %s' % (v(T(9)), s(sSTG), v(T(9))), [s(sSTG), v(T(9))],
                                           [(v(T(9)), 'traddr')]), lo=lo_, hi=hi_, deps=[c])
                self.tw_addr = self.add(V_('v_add_u32 %s, %s, %s' % (v(T(8)), s(43), v(vDMA)), [s(43), v(vDMA)],
                                           [(v(T(8)), 'twaddr')]), lo=lo_, hi=hi_)
        prev_wr = None
        tail_rd = {}
        prevchain = getattr(self, 'sq_chain', None)
        lread = {}
        for b in range(6):
            n = max(n_ for n_ in range(192 * h, 192 * h + 192) if self.slot(n_)[1] == b)
            k, e = b >> 1, b & 1
            bmark = len(self.flex)
            zi = self.iZ[n - (b & 1) + 2]
            x = T(2 + (b & 1))
            y = T(4)
            nxt = n + 6 if h == 0 else None
            jl = 31
            prevx = getattr(self, 'xlast', {}).get(b & 1)
            r0 = self.add(V_('v_accvgpr_read_b32 %s, %s' % (v(x), a(L(k) + 2 * e)),
                             [(a(L(k) + 2 * e), ('L', h, k, jl, 2 * e))], [(v(x), ('l0', h, b))]),
                          lo=zi + 5, deps=[prevx])
            r1 = self.add(V_('v_accvgpr_read_b32 %s, %s' % (v(y), a(L(k) + 2 * e + 1)),
                             [(a(L(k) + 2 * e + 1), ('L', h, k, jl, 2 * e + 1))], [(v(y), ('l1', h, b))]),
                          lo=zi + 5, deps=[getattr(self, 'ylast', None)])
            lread[b] = (r0, r1)
            ad = self.add(V_('v_add_f32 %s, %s, %s' % (v(x), v(x), v(y)),
                             [(v(x), ('l0', h, b)), (v(y), ('l1', h, b))], [(v(x), ('l', h, b))]), deps=[r0, r1],
                          lo=zi + 5)
            self.ylast = ad
            cmp_ = self.add(V_('v_cmp_nge_f32 vcc, %s, %s' % (s(sTHR), v(x)), [s(sTHR), (v(x), ('l', h, b))],
                               [('vcc', ('chk', h, b))]), deps=[ad, getattr(self, 'vcc_last', None)], lo=zi + 5)
            fl = self.add(S_('s_or_b64 %s, %s, vcc' % (rng('s', sFLAG[h], 2), rng('s', sFLAG[h], 2)),
                             [('vcc', ('chk', h, b))] + regs('s', sFLAG[h], 2), regs('s', sFLAG[h], 2)),
                          deps=[(cmp_, 1)], lo=zi + 5)
            self.vcc_last = (fl, 1)
            rc = self.add(V_('v_rcp_f32 %s, %s' % (v(x), v(x)), [(v(x), ('l', h, b))], [(v(x), ('r', h, b))],
                             kind='trans'), deps=[cmp_], lo=zi + 5)
            fl.hi = None
            so = None
            if h == 1:
                so = self.add(Ins('s_mov_b32 %s, %d' % (s(sOOFF), h * 98304 + qoff(b)), 'salu', [], [s(sOOFF)]),
                              deps=[(self.st_last, 1)] if self.st_last is not None and b > 0 else [], lo=zi)
            last_in_block = None
            for tau in range(4):
                t0, t1 = 2 * tau, 2 * tau + 1
                muls = {}
                lo = self.iPV[(n, t1)] + 5
                for t in (t0, t1):
                    for i in range(4):
                        r = O(b, t) + i
                        muls[(t, i)] = self.add(V_('v_mul_f32 %s, %s, %s' % (v(r), v(x), v(r)),
                                                   [(v(x), ('r', h, b)), (v(r), ('O', h, b, t, jl, i))],
                                                   [(v(r), ('On', h, b, t, i))]), lo=lo, deps=[(rc, 1)])
                base = O(b, t0)
                cv = []
                src = [(t0, 0), (t0, 2), (t1, 0), (t1, 2)]
                for q, (t, i) in enumerate(src):
                    d = base + q
                    deps = [muls[(t, i)], muls[(t, i + 1)]]
                    if q == 1:
                        deps.append(cv[0])
                    if q == 2:
                        deps += [cv[1]]
                    if q == 3:
                        deps += [cv[1], cv[2]]
                    c = self.add(V_('v_cvt_pk_bf16_f32 %s, %s, %s' % (v(d), v(O(b, t) + i), v(O(b, t) + i + 1)),
                                    [(v(O(b, t) + i), ('On', h, b, t, i)), (v(O(b, t) + i + 1), ('On', h, b, t, i + 1))],
                                    [(v(d), ('Oc', h, b, tau, q))]), lo=lo, deps=deps)
                    cv.append(c)
                    if (tau & 1) == 0 and q == 0:
                        cvall = {}
                    cvall[(tau, q)] = c
                if cfg.vmap:
                    tagn = 'Oc'
                    pre_st = [(x, 1) for x in cv]
                else:
                    tagn = 'Os'
                    s0 = self.add(V_('v_permlane16_swap_b32 %s, %s' % (v(base), v(base + 2)),
                                     [(v(base), ('Oc', h, b, tau, 0)), (v(base + 2), ('Oc', h, b, tau, 2))],
                                     [(v(base), ('Os', h, b, tau, 0)), (v(base + 2), ('Os', h, b, tau, 2))], kind='perm'),
                                  deps=[(cv[0], 1), (cv[2], 1)], lo=lo)
                    s1 = self.add(V_('v_permlane16_swap_b32 %s, %s' % (v(base + 1), v(base + 3)),
                                     [(v(base + 1), ('Oc', h, b, tau, 1)), (v(base + 3), ('Oc', h, b, tau, 3))],
                                     [(v(base + 1), ('Os', h, b, tau, 1)), (v(base + 3), ('Os', h, b, tau, 3))],
                                     kind='perm'), deps=[(cv[1], 1), (cv[3], 1)], lo=lo)
                    pre_st = [(s0, 1), (s1, 1)]
                hi = None
                if h == 0:
                    if cfg.oswz:
                        areg, atag, aoff = T(8 + (tau & 1)), 'ostage%d' % (tau & 1), 2048 * (2 * b + (tau >> 1))
                    else:
                        areg, atag, aoff = T(8), 'ostage', CH * (4 * b + tau)
                    st = Ins('ds_write_b128 %s, %s offset:%d' % (v(areg), rng('v', base, 4), aoff), 'dsw',
                             [(v(base + q), (tagn, h, b, tau, q)) for q in range(4)] + [(v(areg), atag)], [])
                    st.meta['cost'] = 8
                    hi = self.iPV[(nxt, t0)] - 2
                    deps = pre_st + [(self.ostage_addr, 1)]
                    for b_ in range(0, 2 * (b >> 1) + 2):
                        deps += [(x, 0) for x in self.qb_reads[b_]]
                    self.add(st, lo=lo, hi=hi, deps=deps)
                elif cfg.tail_lds:
                    fslot = (16 + 4 * (b & 1)) if cfg.final_T else 4 * b
                    if cfg.oswz:
                        pbase = (16 * CH + 4096 * (b & 1)) if cfg.final_T else 4096 * b
                        areg, atag, aoff = (T(8), T(7))[tau & 1], 'twaddr%d' % (tau & 1), pbase + 2048 * (tau >> 1)
                    else:
                        areg, atag, aoff = T(8), 'twaddr', CH * (fslot + tau)
                    wr = Ins('ds_write_b128 %s, %s offset:%d' % (v(areg), rng('v', base, 4), aoff), 'dsw',
                             [(v(base + q), (tagn, h, b, tau, q)) for q in range(4)] + [(v(areg), atag)], [])
                    self.add(wr, lo=lo, deps=pre_st + [(self.tw_addr, 1)] +
                             [(x, 0) for x in tail_rd.get(b - 2, [])])
                    st = wr
                    if tau & 1:
                        hh = tau >> 1
                        for q in range(2):
                            dst = O(b, 4 * hh + 2 * q + 1)
                            rdep = [(wr, 0), (self.tr_addr, 1), (prev_wr, 0)]
                            rd = Ins('ds_read_b128 %s, %s offset:%d' % (
                                rng('v', dst, 4), v(T(9)),
                                (pbase + 2048 * hh + 1024 * q) if cfg.oswz else CH * (fslot + 2 * hh) + 128 * q), 'ds',
                                [(v(T(9)), 'traddr')], [(v(dst + i), ('Ot', b, hh, q, i)) for i in range(4)])
                            self.add(rd, lo=lo, deps=rdep + [(cvall[k_], 0) for k_ in cvall])
                            tail_rd.setdefault(b, []).append(rd)
                            st = Ins('buffer_store_dwordx4 %s, %s, %s, %s offen offset:%d%s' % (
                                rng('v', dst, 4), v(vO), rng('s', sO, 4), s(sOOFF), 128 * hh + 256 * q, cfg.st_mod2),
                                'vstore', [(v(dst + i), ('Ot', b, hh, q, i)) for i in range(4)] +
                                [v(vO), s(sOOFF)] + regs('s', sO, 4), [])
                            pace = [(self.st_prev, cfg.st_pace)] if (cfg.final_T and self.st_prev is not None) else []
                            self.add(st, lo=lo, deps=[(rd, cfg.qrd_lat), (so, 1)] + pace)
                            self.st_prev = st
                    prev_wr = wr
                else:
                    st = Ins('buffer_store_dwordx4 %s, %s, %s, %s offen offset:%d%s' % (
                        rng('v', base, 4), v(vQ if cfg.vmap else vO), rng('s', sO, 4), s(sOOFF), 64 * tau,
                        cfg.st_mod2), 'vstore',
                        [(v(base + q), (tagn, h, b, tau, q)) for q in range(4)] + [v(vO), s(sOOFF)] + regs('s', sO, 4), [])
                    self.add(st, lo=lo, hi=hi, deps=pre_st + [(so, 1)])
                if nxt is not None:
                    for q in (2, 3):
                        cv[q].hi = min(self.iPV[(nxt, t1)] - 2, cv[q].hi if cv[q].hi is not None else 10 ** 9)
                self.st_last = st
                last_in_block = muls[(t1, 3)]
            if h == 1 and cfg.final_T and b < 4:
                for x in self.flex[bmark:]:
                    x.meta['asap'] = True
            self.xlast = getattr(self, 'xlast', {})
            self.xlast[b & 1] = last_in_block
        if h == 0 and cfg.fullline:
            assert cfg.vmap
            t9 = T(9)
            lo_ = self.pstart[6 * cfg.loopB[0] - 6]
            hi_ = self.pstart[6 * cfg.loopB[0]] - 3
            dep = self.st_last
            if cfg.oswz:
                c = self.o_read_addr(T(8), t9, lo_, hi_, [(dep, 1)], None)
            else:
                c = self.add(V_('v_bfe_u32 %s, %s, 4, 3' % (v(t9), v(vDMA)), [v(vDMA)], [v(t9)]), lo=lo_, hi=hi_, deps=[(dep, 1)])
                c = self.add(V_('v_lshrrev_b32 %s, 2, %s' % (v(T(8)), v(t9)), [v(t9)], [v(T(8))]), lo=lo_, hi=hi_, deps=[c])
                c = self.add(V_('v_mul_u32_u24 %s, %d, %s' % (v(T(8)), CH, v(T(8))), [v(T(8))], [v(T(8))]), lo=lo_, hi=hi_, deps=[c])
                c = self.add(V_('v_and_b32 %s, 3, %s' % (v(t9), v(t9)), [v(t9)], [v(t9)]), lo=lo_, hi=hi_, deps=[c])
                c = self.add(V_('v_lshl_add_u32 %s, %s, 8, %s' % (v(T(8)), v(t9), v(T(8))), [v(t9), v(T(8))], [v(T(8))]), lo=lo_, hi=hi_, deps=[c])
                c = self.add(V_('v_bfe_u32 %s, %s, 7, 3' % (v(t9), v(vDMA)), [v(vDMA)], [v(t9)]), lo=lo_, hi=hi_, deps=[c])
                c = self.add(V_('v_lshl_add_u32 %s, %s, 4, %s' % (v(T(8)), v(t9), v(T(8))), [v(t9), v(T(8))], [v(T(8))]), lo=lo_, hi=hi_, deps=[c])
                c = self.add(V_('v_add_u32 %s, %s, %s' % (v(T(8)), s(sSTG), v(T(8))), [s(sSTG), v(T(8))], [v(T(8))]), lo=lo_, hi=hi_, deps=[c])
            self.od_addr = c
        if h == 0:
            for k in range(3):
                zi_next = self.iZ[192 + 2 + 2 * k]
                for i in range(4):
                    bb_ = 2 * k + (i >> 1)
                    self.add(V_('v_accvgpr_write_b32 %s, 0' % a(L(k) + i), [],
                                [(a(L(k) + i), ('L', 1, k, -1, i))]),
                             deps=[lread[bb_][i & 1]], hi=zi_next - 2, lo=0)

    def qb(self):
        cfg = self.cfg
        lo = self.pstart[6 * cfg.loopA[1]] + 2
        ad = self.add(V_('v_add_u32 %s, %s, %s' % (v(T(5)), s(sSTG), v(vK)), [s(sSTG), v(vK)], [(v(T(5)), 'qsaddr')]),
                      lo=lo, hi=self.pstart[184], deps=[(self.qc_chain, 1)] if self.qc_chain else [])
        self.qb_reads = {}
        for b in range(6):
            nlast, nfirst = 186 + b, 192 + b
            lst = []
            for st in range(4):
                d = Q(b, st)
                ins = Ins('ds_read_b128 %s, %s offset:%d' % (
                    rng('a', d, 4), v(T(5)), (b >> 1) * 8 * CH + 512 * (b & 1) + 64 * st), 'ds',
                    [(v(T(5)), 'qsaddr')], [(a(d + i), ('Q', 1, b, st, i)) for i in range(4)])
                lo_ = max(self.iQK[(nlast, 0, st)], self.iQK[(nlast, 1, st)])
                self.add(ins, lo=lo_, hi=self.iQK[(nfirst, 0, st)] - cfg.LAT, deps=[(ad, 1)])
                lst.append(ins)
            self.qb_reads[b] = lst
        if cfg.oswz:
            self.ostage_addr = self.o_write_addr(T(8), T(9), T(7), lo, self.pstart[184], [], 'ostage')
        else:
            self.ostage_addr = self.add(V_('v_add_u32 %s, %s, %s' % (v(T(8)), s(43), v(vDMA)), [s(43), v(vDMA)],
                                           [(v(T(8)), 'ostage')]), lo=lo, hi=self.pstart[184])

    RAW = 96

    def q_load(self, b, add):
        cfg = self.cfg
        out = []
        so = add(Ins('s_mov_b32 %s, %d' % (s(sQOFF), qoff(b)), 'salu', [], [s(sQOFF)]), None)
        for st in range(4):
            d = self.RAW + 16 * b + 4 * st
            out.append(add(Ins('buffer_load_dwordx4 %s, %s, %s, %s offen offset:%d%s' % (
                rng('v', d, 4), v(vQ), rng('s', sQ, 4), s(sQOFF), 64 * st, cfg.nt), 'vload',
                [v(vQ), s(sQOFF)] + regs('s', sQ, 4), [(v(d + i), ('QA', b, st, i)) for i in range(4)]), so))
        return out

    def prologue(self):
        cfg = self.cfg
        R = cfg.R
        o = []

        def e(text, kind='valu', rd=(), wr=()):
            i = Ins(text, kind, rd, wr)
            o.append(i)
            return i

        def srd_setup(srd, ptr, per):
            e('s_mul_i32 s3, s2, %d' % per, 'salu')
            e('s_add_u32 %s, %s, s3' % (s(srd), s(ptr)), 'salu')
            e('s_addc_u32 %s, %s, 0' % (s(srd + 1), s(ptr + 1)), 'salu')
            e('s_and_b32 %s, %s, 0xffff' % (s(srd + 1), s(srd + 1)), 'salu')
            e('s_mov_b32 %s, %d' % (s(srd + 2), per), 'salu')
            e('s_mov_b32 %s, 0x20000' % s(srd + 3), 'salu')

        def dma(J, which):
            last = None
            for i in which:
                off = (0, 32, VOFF, VOFF + (8 if cfg.vmap else 32))[i]
                wp = sWPART
                e('s_add_u32 m0, %s, %d' % (s(wp), (J % R) * SLOT + off), 'salu', wr=['m0'])
                srd = sK if i < 2 else sV
                e('s_nop 0', 'nop')
                last = e('buffer_load_dwordx4 %s, %s, %s offen%s%s lds' % (
                    v(vDMA), rng('s', srd, 4), s(sDOFF), ' offset:1024' if i & 1 else '', cfg.nt), 'dma', rd=['m0'])
                last.meta['tile'] = J
            return last

        def addq(ins, dep):
            o.append(ins)
            return ins
        e('s_cmp_ge_u32 s2, 256', 'salu')
        e('s_cbranch_scc1 L_done', 'branch')
        e('s_load_dwordx4 s[44:47], s[0:1], 0', 'salu')
        e('s_load_dwordx4 s[48:51], s[0:1], 16', 'salu')
        t = [T(i) for i in range(10)]
        e('v_lshrrev_b32 %s, 6, v0' % v(t[0]), wr=[v(t[0])])
        e('v_and_b32 %s, 63, v0' % v(t[1]), wr=[v(t[1])])
        e('v_readfirstlane_b32 %s, %s' % (s(sW), v(t[0])), rd=[v(t[0])], wr=[s(sW)])
        e('v_and_b32 %s, 15, %s' % (v(t[2]), v(t[1])))
        e('v_lshrrev_b32 %s, 4, %s' % (v(t[3]), v(t[1])))
        e('v_lshlrev_b32 %s, 4, %s' % (v(vDMA), v(t[1])))
        e('v_lshl_add_u32 %s, %s, 11, %s' % (v(vDMA), v(t[0]), v(vDMA)), wr=[v(vDMA)])
        e('v_mul_u32_u24 %s, %d, %s' % (v(t[4]), 24576, v(t[0])))
        e('v_and_b32 %s, 7, %s' % (v(t[5]), v(t[2])))
        e('v_lshl_add_u32 %s, %s, 10, %s' % (v(t[4]), v(t[5]), v(t[4])))
        e('v_lshrrev_b32 %s, 3, %s' % (v(t[5]), v(t[2])))
        e('v_lshl_add_u32 %s, %s, 8, %s' % (v(t[4]), v(t[5]), v(t[4])))
        e('v_lshl_add_u32 %s, %s, 4, %s' % (v(vQ), v(t[3]), v(t[4])), wr=[v(vQ)])
        e('s_mul_i32 %s, %s, %d' % (s(sWPART), s(sW), 2 * CH), 'salu', rd=[s(sW)], wr=[s(sWPART)])
        e('s_mov_b32 %s, 0' % s(sDOFF), 'salu')
        e('s_waitcnt lgkmcnt(0)', 'wait')
        if cfg.start_stamps:
            e('s_nop 0', 'nop').meta['stamp'] = True
        srd_setup(sK, 46, 524288)
        srd_setup(sQ, 44, 196608)
        def qa_pair(k):
            last = None
            for c in range(8 * k, 8 * k + 8):
                if c % 4 == 0:
                    e('s_add_u32 s61, s60, %d' % (4096 * (c >> 2)), 'salu')
                imm = 1024 * (c & 3)
                e('s_add_u32 m0, %s, %d' % (s(sSTG), CH * c - imm), 'salu', wr=['m0'])
                e('s_nop 0', 'nop')
                last = e('buffer_load_dwordx4 %s, %s, s61 offen offset:%d%s lds' % (
                    v(vDMA), rng('s', sQ, 4), imm, cfg.nt), 'dma', rd=['m0'])
            return last
        if cfg.qa_lds:
            e('s_mul_i32 %s, %s, %d' % (s(sSTG), s(sW), STAGEW), 'salu')
            e('s_add_u32 %s, %s, %d' % (s(sSTG), s(sSTG), STAGE0), 'salu')
            e('s_mul_i32 s60, %s, %d' % (s(sW), 24576 - 2048), 'salu')
        k0 = dma(0, (0, 1))
        if cfg.qa_lds:
            self.qa_last = {0: qa_pair(0)}
            for k_ in range(1, cfg.qa_init):
                self.qa_last[k_] = qa_pair(k_)
        else:
            q0 = self.q_load(0, addq)
            for b_ in range(1, cfg.qdepth):
                self.q_load(b_, addq)
        srd_setup(sV, 48, 524288)
        v0 = dma(0, (2, 3))
        if cfg.code_pf:
            e('s_getpc_b64 s[56:57]', 'salu')
            x = e('L_pc:', 'label')
            e('v_lshlrev_b32 %s, 7, %s' % (v(t[6]), v(t[1])))
            e('v_lshl_add_u32 %s, %s, 13, %s' % (v(t[6]), v(t[0]), v(t[6])))
            for rep in range(2):
                e('v_min_u32 %s, L_code_end-L_pc-4, %s' % (v(t[7]), v(t[6])))
                e('v_mov_b32 %s, s57' % v(t[9]))
                e('v_add_co_u32 %s, vcc, s56, %s' % (v(t[8]), v(t[7])), wr=['vcc'])
                e('v_addc_co_u32 %s, vcc, 0, %s, vcc' % (v(t[9]), v(t[9])), rd=['vcc'])
                e('global_load_dword v%d, %s, off' % (16 + rep, rng('v', t[8], 2)), 'vload', wr=[v(16 + rep)])
                if rep == 0:
                    e('v_add_u32 %s, 32768, %s' % (v(t[6]), v(t[6])))
        self.lastdma[0] = v0
        srd_setup(sO, 50, 196608)
        if cfg.vmap and cfg.fullline:
            e('v_mul_u32_u24 %s, %d, %s' % (v(vO), 24576, v(t[0])))
            e('v_lshrrev_b32 %s, 3, %s' % (v(t[5]), v(t[1])))
            e('v_lshl_add_u32 %s, %s, 10, %s' % (v(vO), v(t[5]), v(vO)))
            e('v_and_b32 %s, 7, %s' % (v(t[5]), v(t[1])))
            e('v_lshl_add_u32 %s, %s, 4, %s' % (v(vO), v(t[5]), v(vO)), wr=[v(vO)])
        elif cfg.vmap:
            e('v_mov_b32 %s, %s' % (v(vO), v(vQ)), wr=[v(vO)])
        else:
            e('v_and_b32 %s, 1, %s' % (v(t[5]), v(t[3])))
            e('v_lshl_add_u32 %s, %s, 5, %s' % (v(t[4]), v(t[5]), v(t[4])))
            e('v_lshrrev_b32 %s, 1, %s' % (v(t[5]), v(t[3])))
            e('v_lshl_add_u32 %s, %s, 4, %s' % (v(vO), v(t[5]), v(t[4])), wr=[v(vO)])
        e('v_and_b32 %s, 7, %s' % (v(t[4]), v(t[2])))
        e('v_mul_u32_u24 %s, %d, %s' % (v(vK), CH, v(t[4])))
        e('v_lshrrev_b32 %s, 3, %s' % (v(t[4]), v(t[2])))
        e('v_lshl_add_u32 %s, %s, 8, %s' % (v(vK), v(t[4]), v(vK)))
        e('v_lshl_add_u32 %s, %s, 4, %s' % (v(vK), v(t[3]), v(vK)), wr=[v(vK)])
        e('v_bfe_u32 %s, %s, 2, 3' % (v(t[4]), v(t[1])))
        if cfg.vmap:
            e('v_lshrrev_b32 %s, 1, %s' % (v(t[5]), v(t[4])))
            e('v_mul_u32_u24 %s, %d, %s' % (v(vV), 2 * CH, v(t[5])))
            e('v_and_b32 %s, 1, %s' % (v(t[5]), v(t[4])))
            e('v_mul_u32_u24 %s, 1032, %s' % (v(t[5]), v(t[5])))
            e('v_add_u32 %s, %s, %s' % (v(vV), v(t[5]), v(vV)))
        else:
            e('v_mul_u32_u24 %s, %d, %s' % (v(vV), CH, v(t[4])))
        e('v_lshrrev_b32 %s, 5, %s' % (v(t[4]), v(t[1])))
        e('v_lshl_add_u32 %s, %s, 8, %s' % (v(vV), v(t[4]), v(vV)))
        e('v_and_b32 %s, 3, %s' % (v(t[4]), v(t[1])))
        e('v_lshl_add_u32 %s, %s, %d, %s' % (v(vV), v(t[4]), 4 if cfg.vmap else 3, v(vV)))
        e('v_add_u32 %s, %d, %s' % (v(vV), VOFF, v(vV)), wr=[v(vV)])
        e('s_mov_b32 %s, 0x%08x' % (s(sC), f32bits(C_SCALE)), 'salu')
        e('s_mov_b32 %s, 0x%08x' % (s(sC + 1), f32bits(C_SCALE)), 'salu')
        e('s_mov_b32 %s, 0x%08x' % (s(sTHR), cfg.thr), 'salu')
        e('s_mov_b32 %s, 0xffff0000' % s(sMASK), 'salu')
        e('s_mov_b64 %s, 0' % rng('s', sFLAG[0], 2), 'salu')
        e('s_mov_b64 %s, 0' % rng('s', sFLAG[1], 2), 'salu')
        if not cfg.qa_lds:
            e('s_mul_i32 %s, %s, %d' % (s(sSTG), s(sW), STAGEW), 'salu')
            e('s_add_u32 %s, %s, %d' % (s(sSTG), s(sSTG), STAGE0), 'salu')
        e('s_sub_u32 %s, %s, %d' % (s(sQREL), s(sSTG), DUMMY), 'salu')
        e('s_lshl_b32 s3, %s, 11' % s(sW), 'salu')
        e('s_sub_u32 s43, %s, s3' % s(sSTG), 'salu')
        e('s_sub_u32 s63, s43, %d' % (3 * CH), 'salu')
        e('s_mov_b32 %s, -2' % s(sQI), 'salu')
        e('s_sub_u32 %s, %s, %d' % (s(sQREL), s(sQREL), 2 * CH), 'salu')
        e('s_mul_i32 %s, %s, %d' % (s(sQSO), s(sW), 24576 - 2048), 'salu')
        e('s_add_u32 %s, %s, %d' % (s(sQSO), s(sQSO), 98304 - 2048), 'salu')
        e('s_mov_b32 %s, 0' % s(sOI), 'salu')
        if cfg.st_after_dma:
            assert not cfg.qa_lds
            e('s_mov_b32 s61, 0x40000000', 'salu')
        e('v_and_b32 %s, 1, %s' % (v(t[4]), v(t[2])))
        e('v_mov_b32 %s, 0x4444' % v(t[5]))
        e('v_mov_b32 %s, 0xeeee' % v(t[6]))
        e('v_cmp_eq_u32 vcc, 0, %s' % v(t[4]), wr=['vcc'])
        e('v_cndmask_b32 %s, %s, %s, vcc' % (v(vIDX), v(t[6]), v(t[5])), rd=['vcc'], wr=[(v(vIDX), 'IDX')])
        e('v_bfe_u32 %s, %s, 1, 1' % (v(t[4]), v(t[2])))
        e('v_lshrrev_b32 %s, 1, %s' % (v(t[5]), v(t[3])))
        e('v_cmp_eq_u32 vcc, %s, %s' % (v(t[4]), v(t[5])), wr=['vcc'])
        e('v_mov_b32 %s, 0x3f803f80' % v(t[6]))
        e('v_cndmask_b32 %s, 0, %s, vcc' % (v(t[4]), v(t[6])), rd=['vcc'], wr=[v(t[4])])
        for i in range(4):
            e('v_accvgpr_write_b32 %s, %s' % (a(SA + i), v(t[4])), rd=[v(t[4])], wr=[(a(SA + i), 'SA')])
        for k in range(3):
            for i in range(4):
                e('v_accvgpr_write_b32 %s, 0' % a(L(k) + i), wr=[(a(L(k) + i), ('L', 0, k, -1, i))])
        w = e('s_waitcnt vmcnt(0)', 'wait')
        w.meta['stamp'] = True
        if cfg.qa_lds:
            w.meta['vm_for'] = self.qa_last[0]
            if cfg.qa_init == 1:
                self.qa_last[1] = qa_pair(1)
            if cfg.qa_init == 2 and cfg.p2_early:
                self.qa_last[2] = qa_pair(2)
            for J in cfg.qplan[0]:
                e('s_mov_b32 %s, %d' % (s(sDOFF), J * 8192), 'salu')
                self.lastdma[J] = dma(J, (0, 1, 2, 3))
            e('v_add_u32 %s, %s, %s' % (v(T(7)), s(sSTG), v(vK)), wr=[v(T(7))])
            for b_ in range(2):
                for st in range(4):
                    d = self.RAW + 16 * b_ + 4 * st
                    e('ds_read_b128 %s, %s offset:%d' % (rng('v', d, 4), v(T(7)), 512 * b_ + 64 * st), 'ds',
                      rd=[v(T(7))], wr=[(v(d + i), ('QA', b_, st, i)) for i in range(4)])
        else:
            w.meta['vm_for'] = q0[-1]
            if cfg.qdepth < 6:
                self.q_load(cfg.qdepth, addq)
        b = 0
        for st in range(4):
            d = self.RAW + 16 * b + 4 * st
            tb = 8 * (st & 1)
            for i in range(4):
                e('v_lshlrev_b32 %s, 16, %s' % (v(tb + 2 * i), v(d + i)), rd=[(v(d + i), ('QA', b, st, i))],
                  wr=[v(tb + 2 * i)])
                e('v_and_b32 %s, %s, %s' % (v(tb + 2 * i + 1), s(sMASK), v(d + i)), rd=[v(d + i)],
                  wr=[v(tb + 2 * i + 1)])
            for i in range(4):
                e('v_pk_mul_f32 %s, %s, %s' % (rng('v', tb + 2 * i, 2), rng('v', tb + 2 * i, 2), rng('s', sC, 2)),
                  rd=regs('v', tb + 2 * i, 2), wr=regs('v', tb + 2 * i, 2))
            for i in range(4):
                e('v_cvt_pk_bf16_f32 %s, %s, %s' % (v(d + i), v(tb + 2 * i), v(tb + 2 * i + 1)),
                  rd=regs('v', tb + 2 * i, 2), wr=[v(d + i)])
            for i in range(4):
                e('v_accvgpr_write_b32 %s, %s' % (a(Q(b, st) + i), v(d + i)), rd=[v(d + i)],
                  wr=[(a(Q(b, st) + i), ('Q', 0, b, st, i))])
        e('s_barrier', 'bar')
        for u in range(2):
            for st in range(4):
                d = KF(u, st)
                e('ds_read_b128 %s, %s offset:%d' % (rng('a', d, 4), v(vK), 512 * u + 64 * st), 'ds',
                  rd=[v(vK)], wr=[(a(d + i), ('K', 0, u, st, i)) for i in range(4)])
        return o

    def early(self):
        cfg = self.cfg
        R, D = cfg.R, cfg.D
        firstop = {}
        chain = None
        qprev = None
        tiles = list(range(1, D))
        plan = {b_: cfg.tplan.get(b_, []) for b_ in range(1, 6)}
        if cfg.qa_lds:
            assert sorted(sum(cfg.qplan.values(), [])) == tiles
        else:
            assert sorted(sum(plan.values(), [])) == tiles
        doff = None
        self.m0chain = None
        rawrd = {}
        for b in range(1, 6):
            if cfg.qa_lds and b % 2 == 0:
                k = b // 2
                wq = Ins('s_waitcnt vmcnt(0)', 'wait')
                wq.meta['vm_for'] = self.qa_last[k]
                if cfg.start_stamps:
                    wq.meta['stamp'] = True
                lo_w = self.iQK[(b - 1, 0, 0)] - 1
                self.add(wq, lo=lo_w, hi=lo_w + 2,
                         deps=([(self.qa_last[k], 1)] if self.qa_last[k].deps else []))
                mark = len(self.flex)
                if k + 1 <= 2 and (k + 1) not in self.qa_last:
                    prev = None
                    for c in range(8 * (k + 1), 8 * (k + 1) + 8):
                        imm = 1024 * (c & 3)
                        txt = ''
                        if c % 4 == 0:
                            txt += 's_add_u32 s61, s60, %d\n    ' % (4096 * (c >> 2))
                        txt += 's_add_u32 m0, %s, %d\n    s_nop 0\n    ' % (s(sSTG), CH * c - imm)
                        txt += 'buffer_load_dwordx4 %s, %s, s61 offen offset:%d%s lds' % (
                            v(vDMA), rng('s', sQ, 4), imm, cfg.nt)
                        dm = Ins(txt, 'dma', [v(vDMA)], ['scc'])
                        dm.meta['composite'] = True
                        self.add(dm, lo=0, deps=[(wq, 0)] + ([(prev, 0)] if prev else []) +
                                 ([(self.m0chain, 1)] if self.m0chain else []))
                        prev = dm
                    self.m0chain = prev
                    self.qa_last[k + 1] = prev
                for J in cfg.qplan.get(k, []):
                    prev = None
                    for i in range(4):
                        off = (0, 32, VOFF, VOFF + (8 if cfg.vmap else 32))[i]
                        txt = 's_mov_b32 %s, %d\n    ' % (s(sDOFF), J * 8192) if i == 0 else ''
                        txt += 's_add_u32 m0, %s, %d\n    s_nop 0\n    ' % (s(sWPART), (J % R) * SLOT + off)
                        txt += 'buffer_load_dwordx4 %s, %s, %s offen%s%s lds' % (
                            v(vDMA), rng('s', sK if i < 2 else sV, 4), s(sDOFF), ' offset:1024' if i & 1 else '', cfg.nt)
                        dm = Ins(txt, 'dma', [v(vDMA)], ['scc'])
                        dm.meta['composite'] = True
                        dm.meta['tile'] = J
                        self.add(dm, lo=0, deps=[(wq, 0)] + ([(prev, 0)] if prev else []) +
                                 ([(self.m0chain, 0)] if self.m0chain else []))
                        prev = dm
                    self.m0chain = prev
                    self.lastdma[J] = prev
                for x in self.flex[mark:]:
                    x.meta['asap'] = True
                for b_ in (b, b + 1):
                    for st in range(4):
                        d = self.RAW + 16 * b_ + 4 * st
                        rd = Ins('ds_read_b128 %s, %s offset:%d' % (
                            rng('v', d, 4), v(T(7)), k * 8 * CH + 512 * (b_ & 1) + 64 * st), 'ds',
                            [v(T(7))], [(v(d + i), ('QA', b_, st, i)) for i in range(4)])
                        self.add(rd, lo=0, deps=[(wq, 0)])
                        rd.meta['asap'] = True
                        rawrd[(b_, st)] = rd
            first = None
            cmark = len(self.flex)
            for st in range(4):
                dl = self.iQK[(b, 0, st)] - 2
                for i in range(4):
                    r = self.RAW + 16 * b + 4 * st + i
                    tb = T(5 + (i & 1))
                    key = (b, st, i)
                    c = self.add(V_('v_lshlrev_b32 %s, 16, %s' % (v(tb), v(r)), [(v(r), ('QA', b, st, i))],
                                    [(v(tb), ('qb', key))]), lo=0,
                                 deps=[chain] + ([(rawrd[(b, st)], 4)] if (b, st) in rawrd else []))
                    if first is None:
                        first = c
                        chain0 = c
                    c = self.add(V_('v_and_b32 %s, %s, %s' % (v(r), s(sMASK), v(r)), [(v(r), ('QA', b, st, i)), s(sMASK)],
                                    [(v(r), ('qc', key))]), lo=0, deps=[c])
                    c = self.add(V_('v_mul_f32 %s, %s, %s' % (v(tb), s(sC), v(tb)), [(v(tb), ('qb', key)), s(sC)],
                                    [(v(tb), ('qd', key))]), lo=0, deps=[c])
                    c = self.add(V_('v_mul_f32 %s, %s, %s' % (v(r), s(sC), v(r)), [(v(r), ('qc', key)), s(sC)],
                                    [(v(r), ('qe', key))]), lo=0, deps=[c])
                    c = self.add(V_('v_cvt_pk_bf16_f32 %s, %s, %s' % (v(r), v(tb), v(r)),
                                    [(v(r), ('qe', key)), (v(tb), ('qd', key))], [(v(r), ('qf', key))]), lo=0, deps=[c])
                    c = self.add(V_('v_accvgpr_write_b32 %s, %s' % (a(Q(b, st) + i), v(r)), [(v(r), ('qf', key))],
                                    [(a(Q(b, st) + i), ('Q', 0, b, st, i))]), lo=0, hi=dl, deps=[c])
                    chain = c
            firstop[b] = first
            if cfg.qa_lds and cfg.conv_asap:
                for x in self.flex[cmark:]:
                    x.meta['asap'] = True
            if cfg.start_stamps and not cfg.qa_lds:
                first.meta['stamp'] = True
            mark = len(self.flex)
            if cfg.qa_lds:
                continue
            if b + cfg.qdepth <= 5:
                def addq(ins, dep, first=first):
                    nonlocal qprev
                    deps = [(first, 1)]
                    if dep is not None:
                        deps.append((dep, 1))
                    elif qprev is not None:
                        deps.append((qprev, 1))
                    self.add(ins, lo=0, hi=None, deps=deps, prio=3)
                    ins.hi = None
                    return ins
                ql = self.q_load(b + cfg.qdepth, addq)
                qprev = ql[-1]
            for J in plan[b]:
                doff = self.add(Ins('s_mov_b32 %s, %d' % (s(sDOFF), J * 8192), 'salu', [], [s(sDOFF)]), lo=0,
                                deps=[(first, 1)] + ([(self.m0chain, 1)] if self.m0chain else []))
                self.dma_group(J, 0, None, [(doff, 1)])
            for x in self.flex[mark:]:
                x.meta['asap'] = True
        self.qoff_last = qprev
        self.qc_chain = self.add(V_('v_add_u32 %s, s63, %s' % (v(T(5)), v(vDMA)), [v(vDMA)], [v(T(5))]), lo=0,
                                 hi=self.pstart[6 * cfg.loopA[0]] - 4, deps=[chain])
        hi_final = (self.pend_[3] - 2) if cfg.dma_early else (self.pstart[5] - 4)
        self.doff_final = self.add(Ins('s_mov_b32 %s, %d' % (s(sDOFF), D * 8192), 'salu', [], [s(sDOFF)]), lo=0,
                                   hi=hi_final, deps=[(self.m0chain, 1)] if self.m0chain else [])
        k = self.pstart[0] + 1
        w = Ins('s_waitcnt vmcnt(0)', 'wait')
        w.meta['vm_for_tile0'] = True
        self.add(w, lo=k, hi=k)
        self.bar_v0 = Ins('s_barrier', 'bar')
        self.add(self.bar_v0, lo=k + 1, hi=k + 1, deps=[(w, 1)])
        self.v0wait = w

    def slowpath(self):
        o = []
        e = o.append
        e('L_slow:')
        e('s_waitcnt vmcnt(0) lgkmcnt(0)')
        e('s_mov_b32 s52, %s' % s(sSTG))
        e('v_and_b32 v1, 63, %s' % v(vDMA))
        e('v_lshrrev_b32 v162, 4, %s' % v(vDMA))
        e('v_and_b32 v162, 63, v162')
        e('v_and_b32 v2, 15, v162')
        e('v_lshrrev_b32 v3, 4, v162')
        e('v_and_b32 v4, 7, v2')
        e('v_mul_u32_u24 v160, %d, v4' % CH)
        e('v_lshrrev_b32 v4, 3, v2')
        e('v_lshl_add_u32 v160, v4, 8, v160')
        e('v_lshl_add_u32 v160, v3, 4, v160')
        e('v_add_u32 v160, s52, v160')
        e('v_bfe_u32 v4, v162, 2, 3')
        e('v_mul_u32_u24 v161, %d, v4' % CH)
        e('v_lshrrev_b32 v4, 5, v162')
        e('v_lshl_add_u32 v161, v4, 8, v161')
        e('v_and_b32 v4, 3, v162')
        e('v_lshl_add_u32 v161, v4, 3, v161')
        e('v_add_u32 v161, %d, v161' % VOFF)
        e('v_add_u32 v161, s52, v161')
        e('v_lshlrev_b32 v4, 4, v3')
        e('v_sub_u32 v163, %s, v4' % v(vQ))
        e('v_and_b32 v4, 1, v3')
        e('v_lshl_add_u32 v163, v4, 5, v163')
        e('v_lshrrev_b32 v4, 1, v3')
        e('v_lshl_add_u32 v163, v4, 4, v163')
        e('v_lshlrev_b32 v162, 4, v162')
        e('s_mov_b32 s53, 0')
        e('L_slow_head:')
        e('s_cmp_eq_u32 s53, 0')
        e('s_cselect_b64 s[54:55], %s, %s' % (rng('s', sFLAG[0], 2), rng('s', sFLAG[1], 2)))
        e('s_cmp_eq_u64 s[54:55], 0')
        e('s_cbranch_scc1 L_slow_next')
        e('s_mov_b32 s56, 0')
        e('L_slow_blk:')
        e('s_mul_i32 s57, s53, 98304')
        e('s_lshr_b32 s58, s56, 1')
        e('s_lshl_b32 s58, s58, 13')
        e('s_add_u32 s57, s57, s58')
        e('s_and_b32 s58, s56, 1')
        e('s_lshl_b32 s58, s58, 9')
        e('s_add_u32 s57, s57, s58')
        for st in range(4):
            e('buffer_load_dwordx4 v[%d:%d], %s, %s, s57 offen offset:%d' % (
                4 * st, 4 * st + 3, v(vQ), rng('s', sQ, 4), 64 * st))
        e('s_waitcnt vmcnt(0)')
        for i in range(16):
            e('v_lshlrev_b32 v42, 16, v%d' % i)
            e('v_and_b32 v43, %s, v%d' % (s(sMASK), i))
            e('v_mul_f32 v42, %s, v42' % s(sC))
            e('v_mul_f32 v43, %s, v43' % s(sC))
            e('v_cvt_pk_bf16_f32 v%d, v42, v43' % (16 + i))
        e('v_mov_b32 v32, 0xff800000')
        e('v_mov_b32 v33, 0')
        for i in range(32):
            e('v_mov_b32 v%d, 0' % (64 + i))
        e('s_mul_i32 s59, s53, 262144')
        e('s_mov_b32 s60, 0')
        e('L_slow_tile:')
        for c in range(8):
            for which, srd in ((0, sK), (VOFF, sV)):
                e('s_add_u32 m0, s52, %d' % (which + c * CH))
                e('s_add_u32 s61, s59, %d' % (c * 1024))
                e('buffer_load_dwordx4 v162, %s, s61 offen lds' % rng('s', srd, 4))
        e('s_waitcnt vmcnt(0)')
        for u in range(2):
            for st in range(4):
                d = 96 + 16 * u + 4 * st
                e('ds_read_b128 v[%d:%d], v160 offset:%d' % (d, d + 3, 512 * u + 64 * st))
        e('s_waitcnt lgkmcnt(0)')
        for t in range(8):
            for pp in range(2):
                d = 128 + 4 * t + 2 * pp
                e('ds_read_b64_tr_b16 v[%d:%d], v161 offset:%d' % (d, d + 1, 512 * pp + 32 * t))
            if t == 3:
                e('s_waitcnt lgkmcnt(0)')
        e('s_waitcnt lgkmcnt(0)')
        for u in range(2):
            for st in range(4):
                d = 34 + 4 * u
                k = 96 + 16 * u + 4 * st
                e('v_mfma_f32_16x16x32_bf16 v[%d:%d], v[%d:%d], v[%d:%d], %s' % (
                    d, d + 3, k, k + 3, 16 + 4 * st, 19 + 4 * st, '0' if st == 0 else 'v[%d:%d]' % (d, d + 3)))
        e('s_nop 15')
        e('v_max3_f32 v42, v34, v35, v36')
        e('v_max3_f32 v42, v42, v37, v38')
        e('v_max3_f32 v42, v42, v39, v40')
        e('v_max3_f32 v42, v42, v41, v32')
        e('v_mov_b32 v43, v42')
        e('s_nop 2')
        e('v_permlane16_swap_b32 v42, v43')
        e('s_nop 2')
        e('v_max_f32 v42, v42, v43')
        e('v_mov_b32 v43, v42')
        e('s_nop 2')
        e('v_permlane32_swap_b32 v42, v43')
        e('s_nop 2')
        e('v_max_f32 v42, v42, v43')
        e('v_sub_f32 v44, v32, v42')
        e('v_exp_f32 v44, v44')
        e('v_mov_b32 v32, v42')
        for r in range(8):
            e('v_sub_f32 v%d, v%d, v42' % (34 + r, 34 + r))
        for r in range(8):
            e('v_exp_f32 v%d, v%d' % (34 + r, 34 + r))
        e('s_nop 1')
        e('v_mul_f32 v33, v33, v44')
        for i in range(4):
            e('v_cvt_pk_bf16_f32 v%d, v%d, v%d' % (48 + i, 34 + 2 * i, 35 + 2 * i))
        for i in range(4):
            e('v_lshlrev_b32 v45, 16, v%d' % (48 + i))
            e('v_and_b32 v46, %s, v%d' % (s(sMASK), 48 + i))
            e('v_add_f32 v33, v33, v45')
            e('v_add_f32 v33, v33, v46')
        for i in range(32):
            e('v_mul_f32 v%d, v%d, v44' % (64 + i, 64 + i))
        e('s_nop 2')
        for t in range(8):
            d = 64 + 4 * t
            e('v_mfma_f32_16x16x32_bf16 v[%d:%d], v[%d:%d], v[48:51], v[%d:%d]' % (
                d, d + 3, 128 + 4 * t, 131 + 4 * t, d, d + 3))
        e('s_nop 15')
        e('s_add_u32 s59, s59, 8192')
        e('s_add_u32 s60, s60, 1')
        e('s_cmp_lt_u32 s60, 32')
        e('s_cbranch_scc1 L_slow_tile')
        e('v_mov_b32 v43, v33')
        e('s_nop 2')
        e('v_permlane16_swap_b32 v33, v43')
        e('s_nop 2')
        e('v_add_f32 v33, v33, v43')
        e('v_mov_b32 v43, v33')
        e('s_nop 2')
        e('v_permlane32_swap_b32 v33, v43')
        e('s_nop 2')
        e('v_add_f32 v33, v33, v43')
        e('v_rcp_f32 v33, v33')
        e('s_nop 1')
        for i in range(32):
            e('v_mul_f32 v%d, v%d, v33' % (64 + i, 64 + i))
        for tau in range(4):
            b0 = 64 + 8 * tau
            e('v_cvt_pk_bf16_f32 v%d, v%d, v%d' % (b0, b0, b0 + 1))
            e('v_cvt_pk_bf16_f32 v%d, v%d, v%d' % (b0 + 1, b0 + 2, b0 + 3))
            e('v_cvt_pk_bf16_f32 v%d, v%d, v%d' % (b0 + 2, b0 + 4, b0 + 5))
            e('v_cvt_pk_bf16_f32 v%d, v%d, v%d' % (b0 + 3, b0 + 6, b0 + 7))
            e('s_nop 2')
            e('v_permlane16_swap_b32 v%d, v%d' % (b0, b0 + 2))
            e('v_permlane16_swap_b32 v%d, v%d' % (b0 + 1, b0 + 3))
            e('s_nop 2')
            e('buffer_store_dwordx4 v[%d:%d], %s, %s, s57 offen offset:%d' % (
                b0, b0 + 3, 'v163', rng('s', sO, 4), 64 * tau))
        e('s_waitcnt vmcnt(0)')
        e('s_add_u32 s56, s56, 1')
        e('s_cmp_lt_u32 s56, 6')
        e('s_cbranch_scc1 L_slow_blk')
        e('L_slow_next:')
        e('s_add_u32 s53, s53, 1')
        e('s_cmp_lt_u32 s53, 2')
        e('s_cbranch_scc1 L_slow_head')
        e('s_endpgm')
        return o

    def build(self):
        cfg = self.cfg
        self.lastdma = {}
        self.qs_chain = self.od_chain = self.od_st = None
        self.pending_st = {}
        self.build_backbone()
        self.reserve_wait_slots()
        pro = self.prologue()
        self.early()
        self.v0wait.meta['vm_for'] = self.lastdma[0]
        self.softmax()
        self.kv_stream()
        self.qb()
        self.epilogue(0)
        self.epilogue(1)
        for J, w in self.barwait.items():
            tw = w.meta['tile_wait']
            if cfg.no_dma and self.inloop(J):
                w.text = 's_nop 0'
                w.kind = 'nop'
            elif tw == 'all':
                w.meta['vm_for_last_dma'] = True
            elif tw in self.lastdma:
                w.meta['vm_for'] = self.lastdma[tw]
            else:
                assert cfg.no_dma
                w.text = 's_nop 0'
                w.kind = 'nop'
        gaps = schedule(self.bb, self.flex)
        body = linearize(self.bb, gaps)
        prog0 = pro + body
        lastd = None
        for ins in prog0:
            if ins.kind == 'dma':
                lastd = ins
            if ins.meta.get('vm_for_last_dma'):
                ins.meta['vm_for'] = lastd
        insert_waits(prog0)
        for l0, l1 in (cfg.loopA, cfg.loopB):
            for ph in range(cfg.U):
                ws = [self.barwait[J] for J in range(l0 + ph, l1, cfg.U) if self.barwait[J].kind == 'wait']
                if ws:
                    cap = min(w.meta['vm'] for w in ws)
                    for w in ws:
                        w.meta['vm_cap'] = cap
        if cfg.xp:
            def drop(i):
                t = i.text
                if 'd' in cfg.xp and i.kind == 'dma' and rng('s', sQ, 4) in t and s(sQT2) in t: return True
                if 'w' in cfg.xp and t.startswith('ds_write_b128 %s' % v(T(5))): return True
                if 'v' in cfg.xp and i.kind == 'valu' and any(r in (v(T(k)) for k in range(5)) for r in i.wrregs()) and i.gap is not None and i.gap > self.pstart[12] and i.gap < self.pstart[174]: return True
                if 's' in cfg.xp and i.kind == 'vstore' and s(sOSO) in t: return True
                if 'r' in cfg.xp and t.startswith('ds_read_b128 v') and v(T(8)) in t: return True
                return False
            prog0 = [i for i in prog0 if not drop(i)]
            insert_waits(prog0)
            for l0, l1 in (cfg.loopA, cfg.loopB):
                for ph in range(cfg.U):
                    ws = [self.barwait[J] for J in range(l0 + ph, l1, cfg.U) if self.barwait[J].kind == 'wait']
                    for w in ws:
                        w.meta.pop('vm_cap', None)
            insert_waits(prog0)
            for l0, l1 in (cfg.loopA, cfg.loopB):
                for ph in range(cfg.U):
                    ws = [self.barwait[J] for J in range(l0 + ph, l1, cfg.U) if self.barwait[J].kind == 'wait']
                    cap = min(w.meta['vm'] for w in ws)
                    for w in ws:
                        w.meta['vm_cap'] = cap
        prog = insert_waits(prog0)
        if cfg.pk_tail:
            prog = self.pack_tail_muls(prog)
        prog, nn = fix_hazards(prog, verbose=cfg.debug)
        errs = check_tags(prog) if not cfg.xp else 0
        assert errs == 0, errs
        self.check_m0(prog)
        self.gaps = gaps
        self.prog = prog
        self.nnops = nn
        return prog

    def pack_tail_muls(self, prog):
        import re
        last = max(i for i, x in enumerate(prog) if x.kind == 'mfma')
        if self.cfg.final_T or self.cfg.pk_dumps:
            last = -1
        out = prog[:last + 1]
        rest = prog[last + 1:]
        i = 0
        pat = re.compile(r'v_mul_f32 v(\d+), v(\d+), v(\d+)$')
        inrun = False
        while i < len(rest):
            x = rest[i]
            m = pat.match(x.text)
            if m and i + 1 < len(rest):
                m2 = pat.match(rest[i + 1].text)
                d, r, sx = int(m.group(1)), int(m.group(2)), int(m.group(3))
                run = 0
                while i + run < len(rest) and pat.match(rest[i + run].text):
                    run += 1
                if m2 and d == sx and d % 2 == 0 and int(m2.group(1)) == d + 1 and int(m2.group(3)) == d + 1 \
                        and int(m2.group(2)) == r and d < 192 and (run >= 8 or inrun):
                    inrun = True
                    base = r & ~1
                    sel = 'op_sel_hi:[1,0]' if r % 2 == 0 else 'op_sel:[0,1] op_sel_hi:[1,1]'
                    y = rest[i + 1]
                    p = Ins('v_pk_mul_f32 v[%d:%d], v[%d:%d], v[%d:%d] %s' % (d, d + 1, d, d + 1, base, base + 1, sel),
                            'valu', x.rd + y.rd, x.wr + y.wr)
                    out.append(p)
                    i += 2
                    continue
            inrun = False
            out.append(x)
            i += 1
        return out

    def check_m0(self, prog):
        lastm0 = None
        used = set()
        for ins in prog:
            if 'm0' in ins.wrregs():
                lastm0 = ins
            if ins.meta.get('composite'):
                lastm0 = None
                continue
            if ins.kind == 'dma':
                assert lastm0 is not None and lastm0.uid not in used, ('M0 reuse', ins.text)
                for d, _ in ins.deps:
                    if 'm0' in d.wrregs():
                        assert d is lastm0, ('M0 clobbered', ins.text)
                used.add(lastm0.uid)

    def roll(self):
        cfg = self.cfg
        prog = self.prog
        segs = []
        cur = []
        names = ['pre']
        for ins in prog:
            cur.append(ins)
            if ins.kind == 'mfma' and 'tile_start' in ins.meta:
                segs.append(cur)
                cur = []
                names.append(ins.meta['tile_start'])
        segs.append(cur)
        seg = dict(zip(names, segs))
        txt = lambda J: [i.text for i in seg[J]]
        U = cfg.U
        loops = [cfg.loopA, cfg.loopB]
        for l0, l1 in loops:
            assert (l1 - l0) % U == 0, (l0, l1)
            for J in range(l0, l1):
                ref = txt(l0 + (J - l0) % U)
                if txt(J) != ref:
                    x, y = txt(J), ref
                    for i in range(min(len(x), len(y))):
                        if x[i] != y[i]:
                            print('tile', J, 'differs at', i, x[i], '|', y[i])
                            break
                    raise Exception('tile %d not periodic' % J)
        out = []
        nst = [0]

        def stamp(real=False, late=False):
            if not cfg.stamps or (late and cfg.start_stamps):
                return
            k = 64 + 2 * nst[0]
            nst[0] += 1
            out.append('    s_waitcnt lgkmcnt(0)')
            out.append('    %s s[%d:%d]' % ('s_memrealtime' if real else 's_memtime', k, k + 1))
            out.append('    s_waitcnt lgkmcnt(0)')

        def fmt(i):
            if cfg.bar_stamps and i.meta.get('tile_wait') is not None and i.kind == 'wait':
                return ['    s_waitcnt lgkmcnt(0)', '    s_memtime s[96:97]', '    s_waitcnt lgkmcnt(0)', '    ' + i.text,
                        '    s_memtime s[98:99]', '    s_waitcnt lgkmcnt(0)',
                        '    s_sub_u32 s98, s98, s96', '    s_add_u32 s100, s100, s98']
            if cfg.x_pad and i.kind == 'bar' and 'assert_lg_done' in i.meta:
                return ['    s_barrier'] + ['    s_nop 15'] * cfg.x_pad
            if cfg.bar_stamps and i.kind == 'bar' and 'assert_lg_done' in i.meta:
                return ['    s_memtime s[96:97]', '    s_waitcnt lgkmcnt(0)', '    s_barrier',
                        '    s_memtime s[98:99]', '    s_waitcnt lgkmcnt(0)',
                        '    s_sub_u32 s98, s98, s96', '    s_add_u32 s101, s101, s98']
            return [i.text if i.kind == 'label' else '    ' + i.text]

        def emit(J):
            if J in cfg.stamp_tiles:
                stamp()
            lastm = max([k_ for k_, i in enumerate(seg[J]) if i.kind == 'mfma'] + [-1])
            for k_, i in enumerate(seg[J]):
                if cfg.stamps and i.meta.get('stamp'):
                    stamp()
                out.extend(fmt(i))
                if J == NT - 1 and k_ == lastm and cfg.stamp_tiles:
                    stamp()
        stamp(True)
        stamp()
        if cfg.bar_stamps:
            out.append('    s_mov_b32 s100, 0')
            out.append('    s_mov_b32 s101, 0')
        emit('pre')
        J = 1
        for li, (l0, l1) in enumerate(loops):
            while J < l0:
                emit(J)
                J += 1
            stamp(late=li > 0)
            out.append('    s_mov_b32 %s, %d' % (s(sCNT), (l1 - l0) // U - 1))
            out.append('L_loop%d:' % li)
            for r in range(U):
                sg = seg[l0 + r]
                lines = [fmt(i) for i in sg]
                if r == U - 1:
                    idx = [k for k, i in enumerate(sg) if i.kind == 'mfma']
                    k = idx[-2]
                    for i in sg[k + 1:]:
                        assert 'scc' not in i.wrregs(), i.text
                    lines.insert(k + 1, ['    s_sub_u32 %s, %s, 1' % (s(sCNT), s(sCNT))])
                    lines.append(['    s_cbranch_scc0 L_loop%d' % li])
                for x in lines:
                    out.extend(x)
            stamp(late=True)
            J = l1
        while J < NT:
            emit(J)
            J += 1
        stamp()
        if cfg.stamps:
            out.append('    s_waitcnt vmcnt(0)')
            stamp()
            stamp(True)
            if cfg.dbg_wg is not None:
                n_ = nst[0]
                out.append('    s_cmp_lg_u32 s2, %d' % cfg.dbg_wg)
                out.append('    s_cbranch_scc1 L_nodbg')
                out.append('    s_cmp_lg_u32 %s, 0' % s(sW))
                out.append('    s_cbranch_scc1 L_nodbg')
                out.append('    s_load_dwordx2 s[44:45], s[0:1], 32')
                out.append('    s_waitcnt lgkmcnt(0)')
                out.append('    s_and_b32 s45, s45, 0xffff')
                out.append('    s_mov_b32 s46, 256')
                out.append('    s_mov_b32 s47, 0x20000')
                out.append('    s_mov_b64 s[32:33], exec')
                out.append('    s_mov_b64 exec, 1')
                out.append('    v_mov_b32 v1, 0')
                vals = [('s%d' % (64 + 2 * (n_ - 1)), 's64')] + [('s%d' % (64 + 2 * (n_ - 2)), 's66')]
                vals += [('s%d' % (64 + 2 * (k + 1)), 's%d' % (64 + 2 * k)) for k in range(1, n_ - 2)]
                for k, (x, y) in enumerate(vals):
                    out.append('    s_sub_u32 s3, %s, %s' % (x, y))
                    out.append('    v_mov_b32 v0, s3')
                    out.append('    buffer_store_dword v0, v1, s[44:47], 0 offen offset:%d' % (4 * k))
                    out.append('    s_waitcnt vmcnt(0)')
                out.append('    s_mov_b64 exec, s[32:33]')
                out.append('L_nodbg:')
            out.append('    s_load_dwordx2 s[44:45], s[0:1], 40')
            out.append('    s_waitcnt lgkmcnt(0)')
            out.append('    s_and_b32 s45, s45, 0xffff')
            out.append('    s_mov_b32 s46, 0x100000')
            out.append('    s_mov_b32 s47, 0x20000')
            out.append('    s_lshl_b32 s3, s2, 2')
            out.append('    s_add_u32 s3, s3, %s' % s(sW))
            out.append('    s_lshl_b32 s3, s3, 7')
            extra = [100, 101] if cfg.bar_stamps else []
            for k, sr in enumerate([64 + 2 * k for k in range(nst[0])] + extra):
                out.append('    v_mov_b32 v0, s%d' % sr)
                out.append('    v_mov_b32 v1, s3')
                out.append('    s_mov_b64 s[32:33], exec')
                out.append('    s_mov_b64 exec, 1')
                out.append('    buffer_store_dword v0, v1, s[44:47], 0 offen offset:%d' % (4 * k))
                out.append('    s_waitcnt vmcnt(0)')
                out.append('    s_mov_b64 exec, s[32:33]')
        out.append('    s_or_b64 s[54:55], %s, %s' % (rng('s', sFLAG[0], 2), rng('s', sFLAG[1], 2)))
        out.append('    s_cbranch_scc1 L_slow')
        out.append('L_done:')
        out.append('    s_endpgm')
        out.append('L_code_end:')
        for l in self.slowpath():
            out.append(l if l.endswith(':') else '    ' + l)
        return out, seg


HEADER = """; Kernarg layout for this problem (48 bytes, ptrs only, base s[0:1]):
; @launch grid=(256,1,1) block=(256,1,1) lds=%d
.amdgcn_target "amdgcn-amd-amdhsa--gfx950"
.text
.globl NAME_kernel
.p2align 8
.type NAME_kernel,@function
NAME_kernel:
"""
FOOTER = """
.section .rodata,"a"
.p2align 6
.amdhsa_kernel NAME_kernel
  .amdhsa_next_free_vgpr 512
  .amdhsa_next_free_sgpr 102
  .amdhsa_accum_offset 256
  .amdhsa_group_segment_fixed_size 0
  .amdhsa_kernarg_size 48
  .amdhsa_user_sgpr_count 2
  .amdhsa_user_sgpr_kernarg_segment_ptr 1
  .amdhsa_system_sgpr_workgroup_id_x 1
.end_amdhsa_kernel
"""


def generate(cfg):
    g = Gen(cfg)
    g.build()
    lines, seg = g.roll()
    lds = LDS_BYTES
    src = (HEADER % lds).replace('NAME', NAME) + '\n'.join(lines) + '\n' + FOOTER.replace('NAME', NAME)
    return src, g, seg


if __name__ == '__main__':
    cfg = Cfg()
    out = sys.argv[1] if len(sys.argv) > 1 else 'cdna_kernels/%s.s' % NAME
    for kv in sys.argv[2:]:
        k, val = kv.split('=')
        setattr(cfg, k, eval(val))
    src, g, seg = generate(cfg)
    open(out, 'w').write(src)
    print('nops inserted', g.nnops, 'total est cycles', est_cycles(g.prog), 'lines', src.count('\n'))
    print(' '.join('%s:%d' % (J, est_cycles(seg[J])) for J in seg))
```
